```python
import torch

def _softmax(x, axis=-1):
    return torch.softmax(x, dim=axis)

def _gelu(x):
    return torch.nn.functional.gelu(x, approximate='tanh')

def _silu(x):
    return torch.nn.functional.silu(x)

def _sigmoid(x):
    return torch.sigmoid(x)

def _layernorm(x, axis=-1, eps=1e-05):
    m = x.mean(dim=axis, keepdim=True)
    v = x.var(dim=axis, keepdim=True, unbiased=False)
    return (x - m) / torch.sqrt(v + eps)

def _scatter_add(tgt, idx, src, axis=0):
    return tgt.clone().index_add_(axis, idx, src)

def _segment_sum(src, seg, n):
    out = torch.zeros((n,) + src.shape[1:], dtype=src.dtype)
    return out.index_add_(0, seg, src)

def _pad(x, pw):
    flat = tuple((v for pair in reversed(pw) for v in pair))
    return torch.nn.functional.pad(x, flat)
kernel_name = 'interleave_layers__ssm_conv_h3__mixer_gmlp__prompt'

def setup_inputs():

    _w = lambda a: (lambda t: t.to(torch.bfloat16) if t.is_floating_point() else t)(torch.as_tensor(a))

    def _A_setup():
        B, S, D = (1, 2048, 640)
        ks = 4
        return {'q': _w((lambda *s: torch.randn(*s, dtype=torch.bfloat16) * 0.05)(B, S, D)), 'k': _w((lambda *s: torch.randn(*s, dtype=torch.bfloat16) * 0.8)(B, S, D)), 'v': _w((lambda *s: torch.randn(*s, dtype=torch.bfloat16) * 0.8)(B, S, D)), 'shift_k': _w((lambda *s: torch.randn(*s, dtype=torch.bfloat16) * 0.8)(D, ks) * 0.5), 'ssm_k': _w((lambda *s: torch.randn(*s, dtype=torch.bfloat16) * 0.8)(D, S) * (1.0 / S ** 0.5)), 'ssm_D': _w((lambda *s: torch.randn(*s, dtype=torch.bfloat16) * 0.8)(D))}
    _A_in = _A_setup()

    def _B_setup():
        B, S, D, F = (1, 2048, 640, 1536)
        Fh = F // 2
        return {'x': _w((lambda *s: torch.randn(*s, dtype=torch.bfloat16) * 0.05)(B, S, D)), 'w_in': _w((lambda *s: torch.randn(*s, dtype=torch.bfloat16) * 0.4)(D, 2 * Fh)), 'w_sp': _w(0.01 * (lambda *s: torch.randn(*s, dtype=torch.bfloat16) * 0.4)(S, S)), 'b_sp': _w(1.0 + 0.01 * (lambda *s: torch.randn(*s, dtype=torch.bfloat16) * 0.1)(S)), 'w_out': _w((lambda *s: torch.randn(*s, dtype=torch.bfloat16) * 0.1)(Fh, D))}
    _B_in = _B_setup()
    return {'A_q': _A_in['q'], 'A_k': _A_in['k'], 'A_v': _A_in['v'], 'A_shift_k': _A_in['shift_k'], 'A_ssm_k': _A_in['ssm_k'], 'A_ssm_D': _A_in['ssm_D'], 'B_x': _B_in['x'], 'B_w_in': _B_in['w_in'], 'B_w_sp': _B_in['w_sp'], 'B_b_sp': _B_in['b_sp'], 'B_w_out': _B_in['w_out']}

def reference(A_q, A_k, A_v, A_shift_k, A_ssm_k, A_ssm_D, B_x, B_w_in, B_w_sp, B_b_sp, B_w_out):

    def _A_ref(q, k, v, shift_k, ssm_k, ssm_D):
        B, S, D = q.shape
        ks = shift_k.shape[-1]
        k_pad = _pad(k, ((0, 0), (ks - 1, 0), (0, 0)))
        k_shift = torch.zeros_like(k)
        for t in range(ks):
            k_shift = k_shift + k_pad[:, t:t + S, :] * shift_k[:, ks - 1 - t][None, None, :]
        kv = k_shift * v
        L = 2 * S
        kv_pad = _pad(kv, ((0, 0), (0, S), (0, 0)))
        kf_pad = _pad(ssm_k, ((0, 0), (0, S)))
        kv_f = (lambda x, axes=(-2, -1): torch.fft.rfft2(x.float(), dim=axes))(kv_pad[:, None, :, :], axes=(1, 2))
        kf_f = (lambda x, axes=(-2, -1): torch.fft.rfft2(x.float(), dim=axes))(kf_pad[:, None, :], axes=(1, 2))
        kf_f = (lambda x, *d: x.permute(*d))(kf_f, 1, 2, 0)
        y_f = kv_f * kf_f[None, :, :, :]
        y = (lambda x, s, axes=(-2, -1): torch.fft.irfft2(x, s=s, dim=axes).to(torch.bfloat16))(y_f, (1, L), axes=(1, 2))[:, 0, :S, :]
        y = y + kv * ssm_D[None, None, :]
        return q * y

    def _B_ref(x, w_in, w_sp, b_sp, w_out):
        B, S, D = x.shape
        F = w_in.shape[-1]
        Fh = F // 2
        z = _gelu(torch.einsum('bsd,df->bsf', x, w_in))
        z1 = z[..., :Fh].clone()
        z2 = _layernorm(z[..., Fh:], axis=-1)
        g = torch.einsum('ts,bsf->btf', w_sp, z2) + b_sp[None, :, None]
        return torch.einsum('bsf,fd->bsd', z1 * g, w_out)
    x = A_q
    x = x + _A_ref(_layernorm(x, axis=-1), A_k, A_v, A_shift_k, A_ssm_k, A_ssm_D)
    x = x + _B_ref(_layernorm(x, axis=-1), B_w_in, B_w_sp, B_b_sp, B_w_out)
    x = x + _A_ref(_layernorm(x, axis=-1), A_k, A_v, A_shift_k, A_ssm_k, A_ssm_D)
    x = x + _B_ref(_layernorm(x, axis=-1), B_w_in, B_w_sp, B_b_sp, B_w_out)
    return x
```

```python
class Asm:
    def __init__(self):
        self.lines = []
        self.kernels = []
        self.lbl = 0
    def __call__(self, s):
        for ln in s.strip('\n').split('\n'):
            self.lines.append('  ' + ln.strip())
    def label(self, name):
        self.lines.append(name + ':')
    def newlabel(self, pfx='L'):
        self.lbl += 1
        return f'{pfx}_{self.lbl}'
    def comment(self, s):
        self.lines.append('  ; ' + s)
    def begin_kernel(self, name):
        self.lines.append(f'.globl {name}')
        self.lines.append('.p2align 8')
        self.lines.append(f'.type {name},@function')
        self.lines.append(f'{name}:')
    def end_kernel(self, name, vgpr, sgpr=102):
        self.lines.append('  s_endpgm')
        self.kernels.append((name, vgpr, sgpr))
    def text(self, launches, header=''):
        out = []
        out.append(header.rstrip('\n'))
        for (k, g, b, lds) in launches:
            out.append(f'; @launch kernel={k} grid=({g},1,1) block=({b},1,1) lds={lds}')
        out.append('.amdgcn_target "amdgcn-amd-amdhsa--gfx950"')
        out.append('.text')
        out += self.lines
        out.append('.section .rodata,"a"')
        for (name, vgpr, sgpr) in self.kernels:
            acc = (vgpr + 3) // 4 * 4
            out.append('.p2align 6')
            out.append(f'.amdhsa_kernel {name}')
            out.append(f'  .amdhsa_next_free_vgpr {vgpr}')
            out.append(f'  .amdhsa_next_free_sgpr {sgpr}')
            out.append(f'  .amdhsa_accum_offset {acc}')
            out.append('  .amdhsa_group_segment_fixed_size 0')
            out.append('  .amdhsa_kernarg_size 112')
            out.append('  .amdhsa_user_sgpr_count 2')
            out.append('  .amdhsa_user_sgpr_kernarg_segment_ptr 1')
            out.append('  .amdhsa_system_sgpr_workgroup_id_x 1')
            out.append('.end_amdhsa_kernel')
        return '\n'.join(out) + '\n'

def vr(lo, n=1):
    return f'v{lo}' if n == 1 else f'v[{lo}:{lo+n-1}]'
def sr(lo, n=1):
    return f's{lo}' if n == 1 else f's[{lo}:{lo+n-1}]'
```

```python
import sys
sys.path.insert(0, 'dev')
from asmlib import *

S, D, F, FH = 2048, 640, 1536, 768
WINT  = 0x0000000
WOUTT = 0x0200000
UT    = 0x0300000
YT    = 0x0600000
YY    = 0x0900000
X1    = 0x0C00000
HH    = 0x0F00000
ZZ    = 0x1200000
Z2NT  = 0x1800000
PP    = 0x1B00000
X2    = 0x1E00000
SZ_SD = S * D * 2

P_Q, P_K, P_V, P_SK, P_SSMK, P_SSMD, P_BX, P_WIN, P_WSP, P_BSP, P_WOUT, P_OUT, P_DBG, P_WS = \
    [16 + 2 * i for i in range(14)]

def load_ptrs(a):
    a('''s_load_dwordx16 s[16:31], s[0:1], 0
         s_load_dwordx8 s[32:39], s[0:1], 64
         s_load_dwordx4 s[40:43], s[0:1], 96''')

def srd_ptr(a, d, p, nbytes, off=0):
    if off:
        a(f's_add_u32 s{d}, s{p}, {off}')
        a(f's_addc_u32 s{d+1}, s{p+1}, 0')
    else:
        a(f's_mov_b32 s{d}, s{p}')
        a(f's_mov_b32 s{d+1}, s{p+1}')
    a(f's_mov_b32 s{d+2}, {nbytes}')
    a(f's_mov_b32 s{d+3}, 0x20000')

def srd_ws(a, d, off, nbytes):
    srd_ptr(a, d, P_WS, nbytes, off)

def unpack(a, lo, hi, src):
    a(f'v_lshlrev_b32 v{lo}, 16, v{src}')
    a(f'v_and_b32 v{hi}, 0xffff0000, v{src}')

def rb2(a, x0, x1, tmp):
    a(f'v_cvt_pk_bf16_f32 v{tmp}, v{x0}, v{x1}')
    unpack(a, x0, x1, tmp)

def gen_prep(a):
    name = 'prep_kernel'
    a.begin_kernel(name)
    Lend = a.newlabel('Lend'); Lw1 = a.newlabel('Lw1'); Lw2 = a.newlabel('Lw2'); Ltr = a.newlabel('Ltr'); Ltr2 = a.newlabel('Ltr2')
    a(f's_cmp_ge_u32 s2, 680')
    a(f's_cbranch_scc1 {Lend}')
    load_ptrs(a)
    a('v_and_b32 v1, 7, v0          ; cg')
    a('v_lshrrev_b32 v2, 3, v0')
    a('s_waitcnt lgkmcnt(0)')
    a('s_cmp_ge_u32 s2, 320')
    a(f's_cbranch_scc1 {Lw1}')
    a('s_mov_b32 s4, 0x1999999a')
    a('s_mul_hi_u32 s5, s2, s4      ; sblk')
    a('s_mul_i32 s6, s5, 10')
    a('s_sub_u32 s6, s2, s6         ; dblk')
    srd_ptr(a, 44, P_K, SZ_SD)
    srd_ptr(a, 48, P_V, SZ_SD)
    srd_ptr(a, 56, P_SK, D * 8)
    srd_ws(a, 52, UT, SZ_SD)
    a('s_mul_i32 s7, s5, 64*1280')
    a('s_lshl_b32 s8, s6, 7')
    a('s_add_u32 s7, s7, s8')
    a('v_mul_u32_u24 v3, 2560, v2')
    a('v_lshl_add_u32 v3, v1, 4, v3')
    a('v_add_u32 v3, s7, v3')
    for i in range(5):
        if i < 3:
            a(f'v_subrev_u32 v{10+i}, {1280*(3-i)}, v3')
            a(f'buffer_load_dwordx4 v[{16+4*i}:{19+4*i}], v{10+i}, s[44:47], 0 offen')
        else:
            a(f'buffer_load_dwordx4 v[{16+4*i}:{19+4*i}], v3, s[44:47], 0 offen offset:{1280*(i-3)}')
    for i in range(2):
        a(f'buffer_load_dwordx4 v[{36+4*i}:{39+4*i}], v3, s[48:51], 0 offen offset:{1280*i}')
    a('s_lshl_b32 s8, s6, 9')
    a('v_lshlrev_b32 v5, 6, v1')
    a('v_add_u32 v5, s8, v5')
    for i in range(4):
        a(f'buffer_load_dwordx4 v[{44+4*i}:{47+4*i}], v5, s[56:59], 0 offen offset:{16*i}')
    a('s_waitcnt vmcnt(0)')
    KF = 64
    SK = 70
    VF = 74
    A0, A1, T0, T1, TMP = 76, 77, 78, 79, 80
    RES = 84
    for e in range(8):
        dw = e // 2; hi = e & 1
        def ext(dst, src):
            if hi: a(f'v_and_b32 v{dst}, 0xffff0000, v{src}')
            else:  a(f'v_lshlrev_b32 v{dst}, 16, v{src}')
        for i in range(5): ext(KF + i, 16 + 4 * i + dw)
        for i in range(2): ext(VF + i, 36 + 4 * i + dw)
        unpack(a, SK + 0, SK + 1, 44 + 2 * e)
        unpack(a, SK + 2, SK + 3, 44 + 2 * e + 1)
        a(f'v_mul_f32 v{A0}, v{KF+0}, v{SK+3}')
        a(f'v_mul_f32 v{A1}, v{KF+1}, v{SK+3}')
        rb2(a, A0, A1, TMP)
        for i in range(1, 4):
            a(f'v_mul_f32 v{T0}, v{KF+i}, v{SK+3-i}')
            a(f'v_mul_f32 v{T1}, v{KF+i+1}, v{SK+3-i}')
            rb2(a, T0, T1, TMP)
            a(f'v_add_f32 v{A0}, v{A0}, v{T0}')
            a(f'v_add_f32 v{A1}, v{A1}, v{T1}')
            rb2(a, A0, A1, TMP)
        a(f'v_mul_f32 v{A0}, v{A0}, v{VF}')
        a(f'v_mul_f32 v{A1}, v{A1}, v{VF+1}')
        a(f'v_cvt_pk_bf16_f32 v{RES+e}, v{A0}, v{A1}')
    a('s_mov_b32 s60, 4096')
    a('s_lshl_b32 s61, s6, 18       ; 64*dblk*4096')
    a('s_lshl_b32 s8, s5, 7')
    a('s_add_u32 s61, s61, s8')
    a(f's_branch {Ltr2}')
    a.label(Lw1)
    a('s_cmp_ge_u32 s2, 560')
    a(f's_cbranch_scc1 {Lw2}')
    a('s_sub_u32 s3, s2, 320')
    a('s_mov_b32 s4, 0x0aaaaaab')
    a('s_mul_hi_u32 s5, s3, s4      ; kblk')
    a('s_mul_i32 s6, s5, 24')
    a('s_sub_u32 s6, s3, s6         ; fblk')
    srd_ptr(a, 44, P_WIN, D * F * 2)
    srd_ws(a, 52, WINT, D * F * 2)
    a('s_mov_b32 s9, 3072')
    a('s_mul_i32 s7, s5, 64*3072')
    a('s_lshl_b32 s8, s6, 7')
    a('s_add_u32 s7, s7, s8')
    a('s_mov_b32 s60, 1280')
    a('s_mul_i32 s61, s6, 64*1280')
    a('s_lshl_b32 s8, s5, 7')
    a('s_add_u32 s61, s61, s8')
    a(f's_branch {Ltr}')
    a.label(Lw2)
    a('s_sub_u32 s3, s2, 560')
    a('s_mov_b32 s4, 0x1999999a')
    a('s_mul_hi_u32 s5, s3, s4      ; fblk')
    a('s_mul_i32 s6, s5, 10')
    a('s_sub_u32 s6, s3, s6         ; dblk')
    srd_ptr(a, 44, P_WOUT, FH * D * 2)
    srd_ws(a, 52, WOUTT, FH * D * 2)
    a('s_mov_b32 s9, 1280')
    a('s_mul_i32 s7, s5, 64*1280')
    a('s_lshl_b32 s8, s6, 7')
    a('s_add_u32 s7, s7, s8')
    a('s_mov_b32 s60, 1536')
    a('s_mul_i32 s61, s6, 64*1536')
    a('s_lshl_b32 s8, s5, 7')
    a('s_add_u32 s61, s61, s8')
    a.label(Ltr)
    a('v_lshlrev_b32 v3, 1, v2')
    a('v_mul_lo_u32 v3, v3, s9')
    a('v_lshl_add_u32 v3, v1, 4, v3')
    a('v_add_u32 v3, s7, v3')
    a('v_add_u32 v4, s9, v3')
    a('buffer_load_dwordx4 v[16:19], v3, s[44:47], 0 offen')
    a('buffer_load_dwordx4 v[20:23], v4, s[44:47], 0 offen')
    a('s_mov_b32 s10, 0x05040100')
    a('s_mov_b32 s11, 0x07060302')
    a('s_waitcnt vmcnt(0)')
    for j in range(4):
        a(f'v_perm_b32 v{84+2*j}, v{20+j}, v{16+j}, s10')
        a(f'v_perm_b32 v{85+2*j}, v{20+j}, v{16+j}, s11')
    a.label(Ltr2)
    a('v_mul_u32_u24 v5, 1088, v1')
    a('v_lshl_add_u32 v5, v2, 2, v5')
    for e in range(8):
        a(f'ds_write_b32 v5, v{84+e} offset:{136*e}')
    a('v_lshrrev_b32 v6, 2, v0       ; c')
    a('v_and_b32 v7, 3, v0           ; seg')
    a('v_mul_u32_u24 v8, 136, v6')
    a('v_lshl_add_u32 v8, v7, 5, v8')
    a('v_mul_lo_u32 v9, v6, s60')
    a('v_lshl_add_u32 v9, v7, 5, v9')
    a('v_add_u32 v9, s61, v9')
    a('s_waitcnt lgkmcnt(0)')
    a('s_barrier')
    for i in range(4):
        a(f'ds_read_b64 v[{16+2*i}:{17+2*i}], v8 offset:{8*i}')
    a('s_waitcnt lgkmcnt(0)')
    a('buffer_store_dwordx4 v[16:19], v9, s[52:55], 0 offen')
    a('buffer_store_dwordx4 v[20:23], v9, s[52:55], 0 offen offset:16')
    a.label(Lend)
    a.end_kernel(name, 96, 72)
    return (name, 680, 256, 64 * 136)

def gen_conv(a):
    name = 'conv_kernel'
    a.begin_kernel(name)
    Lend = a.newlabel('Lend')
    WB = 40960; UB = 33280
    a('s_cmp_ge_u32 s2, 214')
    a(f's_cbranch_scc1 {Lend}')
    load_ptrs(a)
    a('v_lshrrev_b32 v1, 6, v0')
    a('v_and_b32 v0, 63, v0')
    a('s_nop 0')
    a('v_readfirstlane_b32 s3, v1     ; wave')
    a('s_nop 3')
    a('s_mul_i32 s4, s2, 3')
    a('s_add_u32 s4, s4, s3           ; channel d')
    a('s_cmp_ge_u32 s4, 640')
    a(f's_cbranch_scc1 {Lend}')
    a(f's_mul_i32 s5, s3, {WB}')
    a('s_lshl_b32 s6, s4, 12          ; d*4096')
    a('s_waitcnt lgkmcnt(0)')
    srd_ptr(a, 44, P_SSMK, SZ_SD)
    srd_ws(a, 48, UT, SZ_SD)
    srd_ws(a, 52, YT, SZ_SD)
    srd_ptr(a, 56, P_SSMD, D * 2)
    a('v_lshlrev_b32 v2, 4, v0')
    for j in range(4):
        a(f'buffer_load_dwordx4 v[{100+4*j}:{103+4*j}], v2, s[48:51], s6 offen offset:{1024*j}')
    a('v_lshrrev_b32 v3, 3, v0')
    a('v_and_b32 v4, 7, v0')
    a('v_add_u32 v3, v3, v4')
    a('v_subrev_u32 v3, 7, v3')
    a('v_max_i32 v4, 0, v3')
    a('v_lshlrev_b32 v4, 1, v4')
    a('buffer_load_ushort v5, v4, s[44:47], s6 offen')
    a('s_lshl_b32 s7, s4, 1')
    a('v_mov_b32 v6, 0')
    a('buffer_load_ushort v7, v6, s[56:59], s7 offen')
    a('v_and_b32 v8, 15, v0           ; ii / m')
    a('v_lshrrev_b32 v9, 4, v0        ; kq / q')
    a('v_lshlrev_b32 v10, 2, v9')
    a('v_and_b32 v11, 2, v9')
    a('v_lshlrev_b32 v11, 1, v11')
    a('v_xor_b32 v10, v10, v11        ; a[q]')
    a('v_lshlrev_b32 v10, 1, v10')
    a('v_lshl_add_u32 v10, v8, 6, v10')
    for c in range(4):
        for j in range(2):
            r = 120 + 2 * (2 * c + j)
            a(f'buffer_load_dwordx2 v[{r}:{r+1}], v10, s[48:51], s6 offen offset:{1024*c+32*j}')
    a('v_lshlrev_b32 v11, 1, v0')
    a('v_add_u32 v11, 2, v11')
    a('s_add_u32 s8, s5, 512')
    a('s_mov_b32 s9, s6')
    for i in range(32):
        a('s_mov_b32 m0, s8')
        a('s_add_u32 s8, s8, 1024')
        a('buffer_load_dwordx4 v11, s[44:47], s9 offen lds')
        a('s_add_u32 s9, s9, 128')
    a('v_mov_b32 v12, 0')
    a('v_mov_b32 v13, 0')
    a('v_mov_b32 v14, 0')
    a('v_mov_b32 v15, 0')
    a('v_min_u32 v16, 23, v0')
    a('v_lshlrev_b32 v16, 4, v16')
    a('v_add_u32 v16, s5, v16')
    a('ds_write_b128 v16, v[12:15]')
    a('v_lshlrev_b32 v16, 4, v0')
    a('v_add_u32 v16, s5, v16')
    a(f'ds_write_b128 v16, v[12:15] offset:{UB+64*96}')
    a('v_min_u32 v16, 25, v0')
    a('v_lshlrev_b32 v16, 4, v16')
    a('v_add_u32 v16, s5, v16')
    a(f'ds_write_b128 v16, v[12:15] offset:{UB+64*96+1024}')
    a('s_waitcnt vmcnt(40)')
    a('v_cmp_gt_i32 vcc, 0, v3')
    a('s_nop 1')
    a('v_cndmask_b32 v5, v5, v12, vcc')
    a('v_lshlrev_b32 v16, 1, v0')
    a('v_add_u32 v16, s5, v16')
    a('ds_write_b16 v16, v5 offset:384')
    a('v_sub_u32 v16, 63, v0          ; 63-l ; pc = (63-l) + 64*(3-j)')
    a('v_lshrrev_b32 v17, 2, v16')
    a('v_and_b32 v16, 3, v16')
    a('v_mul_u32_u24 v17, 96, v17')
    a('v_lshl_add_u32 v17, v16, 4, v17')
    a('v_add_u32 v17, s5, v17')
    for j in range(4):
        s0 = 100 + 4 * j
        t0 = 20 + 4 * j
        for x in range(4):
            a(f'v_alignbit_b32 v{t0+x}, v{s0+3-x}, v{s0+3-x}, 16')
        a(f'ds_write_b128 v17, v[{t0}:{t0+3}] offset:{UB + 96*16*(3-j)}')
    a('v_lshrrev_b32 v16, 1, v8')
    a('v_and_b32 v16, 4, v16')
    a('v_xor_b32 v16, v8, v16         ; rr')
    a('v_lshl_add_u32 v16, v9, 3, v16')
    a('v_lshlrev_b32 v16, 4, v16')
    a('v_add_u32 v16, s5, v16         ; A addr')
    a('v_sub_u32 v17, 15, v8')
    a('v_mul_u32_u24 v17, 96, v17')
    a('v_lshl_add_u32 v17, v9, 4, v17')
    a('v_add_u32 v17, s5, v17')
    a(f'v_add_u32 v17, {UB}, v17        ; B addr')
    ACC = 64
    for i in range(32):
        a(f'v_mov_b32 v{ACC+i}, 0')
    a('s_waitcnt vmcnt(0) lgkmcnt(0)')
    FR = [20, 140]
    def reads(t):
        f = FR[t & 1]
        n = 0
        for j in range(2):
            a(f'ds_read_b128 v[{f+4*j}:{f+4*j+3}], v16 offset:{512*t+256*j}'); n += 1
        for c in range(t >> 4, 4):
            a(f'ds_read_b128 v[{f+8+4*c}:{f+11+4*c}], v17 offset:{96*(48-16*c+t)}'); n += 1
        return n
    reads(0)
    for t in range(64):
        nn = reads(t + 1) if t + 1 < 64 else 0
        a(f's_waitcnt lgkmcnt({nn})')
        f = FR[t & 1]
        for c in range(t >> 4, 4):
            for j in range(2):
                ac = ACC + 4 * (2 * c + j)
                a(f'v_mfma_f32_16x16x32_bf16 v[{ac}:{ac+3}], v[{f+4*j}:{f+4*j+3}], v[{f+8+4*c}:{f+11+4*c}], v[{ac}:{ac+3}]')
    a('s_nop 7')
    a('s_nop 1')
    a('v_lshlrev_b32 v7, 16, v7       ; D as f32')
    for c in range(4):
        for j in range(2):
            ac = ACC + 4 * (2 * c + j)
            ur = 120 + 2 * (2 * c + j)
            rb2(a, ac, ac + 1, 18)
            rb2(a, ac + 2, ac + 3, 19)
            unpack(a, 20, 21, ur)
            unpack(a, 22, 23, ur + 1)
            for x in range(4):
                a(f'v_mul_f32 v{20+x}, v{20+x}, v7')
            rb2(a, 20, 21, 18)
            rb2(a, 22, 23, 19)
            for x in range(4):
                a(f'v_add_f32 v{ac+x}, v{ac+x}, v{20+x}')
            a(f'v_cvt_pk_bf16_f32 v{ur}, v{ac}, v{ac+1}')
            a(f'v_cvt_pk_bf16_f32 v{ur+1}, v{ac+2}, v{ac+3}')
            a(f'buffer_store_dwordx2 v[{ur}:{ur+1}], v10, s[52:55], s6 offen offset:{1024*c+32*j}')
    a.label(Lend)
    a.end_kernel(name, 168, 72)
    return (name, 214, 192, 3 * WB)

def reduce2(a, va, vb, sbase):
    for n in (8, 4, 2, 1):
        a('s_nop 1')
        a(f'v_add_f32_dpp v{va}, v{va}, v{va} row_ror:{n} row_mask:0xf bank_mask:0xf')
        a(f'v_add_f32_dpp v{vb}, v{vb}, v{vb} row_ror:{n} row_mask:0xf bank_mask:0xf')
    a('s_nop 0')
    for i in range(4):
        a(f'v_readlane_b32 s{sbase+i}, v{va}, {16*i}')
    for i in range(4):
        a(f'v_readlane_b32 s{sbase+4+i}, v{vb}, {16*i}')
    a(f'v_mov_b32 v{va}, s{sbase}')
    a(f'v_add_f32 v{va}, s{sbase+1}, v{va}')
    a(f'v_add_f32 v{va}, s{sbase+2}, v{va}')
    a(f'v_add_f32 v{va}, s{sbase+3}, v{va}')
    a(f'v_mov_b32 v{vb}, s{sbase+4}')
    a(f'v_add_f32 v{vb}, s{sbase+5}, v{vb}')
    a(f'v_add_f32 v{vb}, s{sbase+6}, v{vb}')
    a(f'v_add_f32 v{vb}, s{sbase+7}, v{vb}')

def ln_rows2(a, xa, xb, n, ntot, t, outa, outb, sbase):
    sa, sb_, ma, mb, ra, rb_ = t, t + 1, t + 2, t + 3, t + 4, t + 5
    tm = t + 6
    da = t + 8; db = t + 8 + n
    inv = 1.0 / ntot
    import struct
    invh = '0x%08x' % struct.unpack('<I', struct.pack('<f', inv))[0]
    for (x, s_) in ((xa, sa), (xb, sb_)):
        a(f'v_add_f32 v{s_}, v{x}, v{x+1}')
        for i in range(2, n):
            a(f'v_add_f32 v{s_}, v{s_}, v{x+i}')
    reduce2(a, sa, sb_, sbase)
    a(f'v_mul_f32 v{ma}, {invh}, v{sa}')
    a(f'v_mul_f32 v{mb}, {invh}, v{sb_}')
    for (x, d, m, s_) in ((xa, da, ma, sa), (xb, db, mb, sb_)):
        for i in range(n):
            a(f'v_sub_f32 v{d+i}, v{x+i}, v{m}')
        a(f'v_mul_f32 v{s_}, v{d}, v{d}')
        for i in range(1, n):
            a(f'v_fmac_f32 v{s_}, v{d+i}, v{d+i}')
    reduce2(a, sa, sb_, sbase)
    a(f'v_mul_f32 v{sa}, {invh}, v{sa}')
    a(f'v_mul_f32 v{sb_}, {invh}, v{sb_}')
    rb2(a, ma, mb, tm)
    rb2(a, sa, sb_, tm)
    a(f'v_add_f32 v{sa}, 0x3727c5ac, v{sa}')
    a(f'v_add_f32 v{sb_}, 0x3727c5ac, v{sb_}')
    rb2(a, sa, sb_, tm)
    a(f'v_sqrt_f32 v{sa}, v{sa}')
    a(f'v_sqrt_f32 v{sb_}, v{sb_}')
    a('s_nop 0')
    rb2(a, sa, sb_, tm)
    a(f'v_rcp_f32 v{ra}, v{sa}')
    a(f'v_rcp_f32 v{rb_}, v{sb_}')
    a('s_nop 0')
    for (x, o, m, r) in ((xa, outa, ma, ra), (xb, outb, mb, rb_)):
        for i in range(0, n, 2):
            a(f'v_sub_f32 v{o+i}, v{x+i}, v{m}')
            a(f'v_sub_f32 v{o+i+1}, v{x+i+1}, v{m}')
            rb2(a, o + i, o + i + 1, tm)
            a(f'v_mul_f32 v{o+i}, v{o+i}, v{r}')
            a(f'v_mul_f32 v{o+i+1}, v{o+i+1}, v{r}')
            rb2(a, o + i, o + i + 1, tm)

def gen_e(a, first):
    name = 'e1_kernel' if first else 'e2_kernel'
    a.begin_kernel(name)
    Lend = a.newlabel('Lend')
    a('s_cmp_ge_u32 s2, 256')
    a(f's_cbranch_scc1 {Lend}')
    load_ptrs(a)
    a('v_lshrrev_b32 v1, 6, v0       ; wave')
    a('v_and_b32 v2, 63, v0          ; lane')
    a('s_waitcnt lgkmcnt(0)')
    if first:
        srd_ptr(a, 44, P_Q, SZ_SD)
        srd_ws(a, 48, YT, SZ_SD)
    else:
        srd_ws(a, 44, X2, SZ_SD)
    srd_ws(a, 52, YY, SZ_SD)
    srd_ws(a, 56, X1, SZ_SD)
    srd_ws(a, 60, HH, SZ_SD)
    a('s_mul_i32 s3, s2, 8*1280')
    a('v_mul_u32_u24 v3, 2560, v1')
    a('v_lshl_add_u32 v3, v2, 2, v3')
    a('v_add_u32 v3, s3, v3')
    XR = 16
    YR = 26
    for r in range(2):
        for j in range(5):
            a(f'buffer_load_dword v{XR+5*r+j}, v3, s[44:47], 0 offen offset:{1280*r+256*j}')
    if first:
        a('s_lshl_b32 s4, s2, 4')
        a('v_lshlrev_b32 v4, 12, v0')
        a('v_add_u32 v4, s4, v4')
        a('v_add_u32 v5, 0x100000, v4')
        a('v_add_u32 v6, 0x200000, v4')
        a('buffer_load_dwordx4 v[36:39], v4, s[48:51], 0 offen')
        a('buffer_load_dwordx4 v[40:43], v5, s[48:51], 0 offen')
        a('buffer_load_dwordx4 v[44:47], v6, s[48:51], 0 offen')
        a('v_lshlrev_b32 v4, 4, v0')
        a('s_waitcnt vmcnt(0)')
        a('ds_write_b128 v4, v[36:39]')
        a('ds_write_b128 v4, v[40:43] offset:4096')
        a('ds_write_b128 v4, v[44:47] offset:8192')
        a('v_lshlrev_b32 v5, 5, v2')
        a('v_lshl_add_u32 v5, v1, 2, v5')
        a('s_waitcnt lgkmcnt(0)')
        a('s_barrier')
        for j in range(5):
            a(f'ds_read_b32 v{36+2*j}, v5 offset:{2048*j}')
            a(f'ds_read_b32 v{37+2*j}, v5 offset:{2048*j+16}')
        a('s_mov_b32 s10, 0x05040100')
        a('s_mov_b32 s11, 0x07060302')
        a('s_waitcnt lgkmcnt(0)')
        for j in range(5):
            a(f'v_perm_b32 v{YR+j}, v{37+2*j}, v{36+2*j}, s10')
            a(f'v_perm_b32 v{YR+5+j}, v{37+2*j}, v{36+2*j}, s11')
        for r in range(2):
            for j in range(5):
                a(f'buffer_store_dword v{YR+5*r+j}, v3, s[52:55], 0 offen offset:{1280*r+256*j}')
    else:
        for r in range(2):
            for j in range(5):
                a(f'buffer_load_dword v{YR+5*r+j}, v3, s[52:55], 0 offen offset:{1280*r+256*j}')
        a('s_waitcnt vmcnt(0)')
    XA, XB = 48, 58
    NA, NB = 68, 78
    T = 90
    for j in range(5):
        unpack(a, XA + 2 * j, XA + 2 * j + 1, XR + j)
        unpack(a, XB + 2 * j, XB + 2 * j + 1, XR + 5 + j)
    ln_rows2(a, XA, XB, 10, 640, T, NA, NB, 64)
    for (x, n_, yr) in ((XA, NA, YR), (XB, NB, YR + 5)):
        for j in range(5):
            unpack(a, T, T + 1, yr + j)
            a(f'v_mul_f32 v{n_+2*j}, v{n_+2*j}, v{T}')
            a(f'v_mul_f32 v{n_+2*j+1}, v{n_+2*j+1}, v{T+1}')
            rb2(a, n_ + 2 * j, n_ + 2 * j + 1, T + 2)
            a(f'v_add_f32 v{x+2*j}, v{x+2*j}, v{n_+2*j}')
            a(f'v_add_f32 v{x+2*j+1}, v{x+2*j+1}, v{n_+2*j+1}')
    for r, x in enumerate((XA, XB)):
        for j in range(5):
            a(f'v_cvt_pk_bf16_f32 v{XR+5*r+j}, v{x+2*j}, v{x+2*j+1}')
            unpack(a, x + 2 * j, x + 2 * j + 1, XR + 5 * r + j)
            a(f'buffer_store_dword v{XR+5*r+j}, v3, s[56:59], 0 offen offset:{1280*r+256*j}')
    ln_rows2(a, XA, XB, 10, 640, T, NA, NB, 64)
    for r, n_ in enumerate((NA, NB)):
        for j in range(5):
            a(f'v_cvt_pk_bf16_f32 v{YR+5*r+j}, v{n_+2*j}, v{n_+2*j+1}')
            a(f'buffer_store_dword v{YR+5*r+j}, v3, s[60:63], 0 offen offset:{1280*r+256*j}')
    a.label(Lend)
    a.end_kernel(name, 128, 80)
    return (name, 256, 256, 12288 if first else 0)

def gen_ln2(a):
    name = 'ln2_kernel'
    a.begin_kernel(name)
    Lend = a.newlabel('Lend')
    a('s_cmp_ge_u32 s2, 128')
    a(f's_cbranch_scc1 {Lend}')
    load_ptrs(a)
    a('v_lshrrev_b32 v1, 6, v0       ; wave')
    a('v_and_b32 v2, 63, v0          ; lane')
    a('s_waitcnt lgkmcnt(0)')
    srd_ws(a, 44, ZZ, S * F * 2)
    srd_ws(a, 48, Z2NT, FH * S * 2)
    a('s_mul_i32 s3, s2, 16*3072')
    a('s_add_u32 s3, s3, 1536')
    a('v_mul_u32_u24 v3, 4*3072, v1')
    a('v_lshl_add_u32 v3, v2, 2, v3')
    a('v_add_u32 v3, s3, v3')
    R = 16
    for r in range(4):
        if r: a(f'v_add_u32 v{3+r}, {3072*r}, v3')
    for r in range(4):
        for j in range(6):
            a(f'buffer_load_dword v{R+6*r+j}, v{3+r}, s[44:47], 0 offen offset:{256*j}')
    a('v_lshlrev_b32 v8, 6, v2')
    a('v_lshl_add_u32 v8, v1, 3, v8')
    a('s_waitcnt vmcnt(0)')
    XA, XB, T = 48, 60, 80
    for p in range(2):
        for j in range(6):
            unpack(a, XA + 2 * j, XA + 2 * j + 1, R + 12 * p + j)
            unpack(a, XB + 2 * j, XB + 2 * j + 1, R + 12 * p + 6 + j)
        ln_rows2(a, XA, XB, 12, 768, T, XA, XB, 64)
        for i in range(12):
            a(f'v_cvt_pk_bf16_f32 v{T+i}, v{XA+i}, v{XB+i}')
            a(f'ds_write_b32 v8, v{T+i} offset:{4096*(i//2) + 32*(i&1) + 4*p}')
    a('v_lshlrev_b32 v9, 5, v0')
    a('s_lshl_b32 s4, s2, 5')
    a('v_lshlrev_b32 v10, 12, v0')
    a('v_add_u32 v10, s4, v10')
    a('s_waitcnt lgkmcnt(0)')
    a('s_barrier')
    for i in range(3):
        a(f'ds_read_b128 v[{16+8*i}:{19+8*i}], v9 offset:{8192*i}')
        a(f'ds_read_b128 v[{20+8*i}:{23+8*i}], v9 offset:{8192*i+16}')
    a('s_waitcnt lgkmcnt(0)')
    for i in range(3):
        if i: a(f'v_add_u32 v10, 0x100000, v10')
        a(f'buffer_store_dwordx4 v[{16+8*i}:{19+8*i}], v10, s[48:51], 0 offen')
        a(f'buffer_store_dwordx4 v[{20+8*i}:{23+8*i}], v10, s[48:51], 0 offen offset:16')
    a.label(Lend)
    a.end_kernel(name, 128, 80)
    return (name, 128, 256, 24576)

def gen_gemm(a, name, kind, BM, BN, K, WM, WN, NS, ntm, ntn, ldA, ldB, final=False):
    wm = BM // WM // 16; wn = BN // WN // 16
    nst = K // 64
    STG = (BM + BN) * 128
    ngA = BM // 8; ngB = BN // 8
    nAw = (ngA + 3) // 4; nBw = (ngB + 3) // 4
    npw = nAw + nBw
    a.begin_kernel(name)
    Lend = a.newlabel('Lend')
    a(f's_cmp_ge_u32 s2, {ntm*ntn}')
    a(f's_cbranch_scc1 {Lend}')
    load_ptrs(a)
    a('v_lshrrev_b32 v1, 6, v0')
    a('v_and_b32 v0, 63, v0')
    a('s_nop 0')
    a('v_readfirstlane_b32 s3, v1     ; wave')
    assert ntm in (8, 16)
    a(f's_and_b32 s4, s2, {ntm-1}')
    a(f's_lshr_b32 s5, s2, {ntm.bit_length()-1}')
    a(f's_mul_i32 s6, s4, {BM}          ; m0')
    a(f's_mul_i32 s7, s5, {BN}          ; n0')
    a('s_waitcnt lgkmcnt(0)')
    if kind == 'g1':
        srd_ws(a, 44, WINT, D * F * 2); srd_ws(a, 48, HH, SZ_SD); srd_ws(a, 52, ZZ, S * F * 2); ldo = 3072
    elif kind == 'g2':
        srd_ws(a, 44, Z2NT, FH * S * 2); srd_ptr(a, 48, P_WSP, S * S * 2); srd_ws(a, 52, PP, S * FH * 2); ldo = 1536
        srd_ws(a, 56, ZZ, S * F * 2); srd_ptr(a, 60, P_BSP, S * 2)
    else:
        srd_ws(a, 44, WOUTT, FH * D * 2); srd_ws(a, 48, PP, S * FH * 2); ldo = 1280
        if final: srd_ptr(a, 52, P_OUT, SZ_SD)
        else: srd_ws(a, 52, X2, SZ_SD)
        srd_ws(a, 56, X1, SZ_SD)
    a(f's_mul_i32 s8, s6, {ldA}         ; A soffset')
    a(f's_mul_i32 s9, s7, {ldB}         ; B soffset')
    a('v_lshrrev_b32 v2, 3, v0        ; l>>3')
    a('v_lshrrev_b32 v3, 4, v0        ; l>>4')
    a('v_and_b32 v4, 7, v0            ; l&7')
    VA = 8; VB = VA + nAw
    SMA = 64; SMB = SMA + nAw
    def grp_setup(i, ng, ld, vdst, sdst, ldsbase):
        if 4 * i + 3 < ng:
            a(f's_add_u32 s10, s3, {4*i}')
        else:
            assert ng - 4 * i == 2
            a('s_and_b32 s10, s3, 1')
            a(f's_add_u32 s10, s10, {4*i}')
        a('s_lshl_b32 s11, s10, 2')
        a('v_add_u32 v5, s11, v3')
        a('v_and_b32 v5, 7, v5')
        a('v_xor_b32 v5, v5, v4')
        a('s_lshl_b32 s11, s10, 3')
        a('v_add_u32 v6, s11, v2          ; row')
        a(f's_mov_b32 s12, {ld}')
        a('v_mul_lo_u32 v6, v6, s12')
        a(f'v_lshl_add_u32 v{vdst}, v5, 4, v6')
        a(f's_lshl_b32 s{sdst}, s10, 10')
        if ldsbase: a(f's_add_u32 s{sdst}, s{sdst}, {ldsbase}')
    for i in range(nAw): grp_setup(i, ngA, ldA, VA + i, SMA + i, 0)
    for i in range(nBw): grp_setup(i, ngB, ldB, VB + i, SMB + i, BM * 128)
    def issue(st):
        buf = (st % NS) * STG
        for i in range(nAw):
            a(f's_add_u32 m0, s{SMA+i}, {buf}')
            a('s_nop 0')
            a(f'buffer_load_dwordx4 v{VA+i}, s[44:47], s8 offen lds')
        for i in range(nBw):
            a(f's_add_u32 m0, s{SMB+i}, {buf}')
            a('s_nop 0')
            a(f'buffer_load_dwordx4 v{VB+i}, s[48:51], s9 offen lds')
        a('s_add_u32 s8, s8, 128')
        a('s_add_u32 s9, s9, 128')
    for st in range(min(NS - 1, nst)):
        issue(st)
    if WN == 4:   a('s_mov_b32 s13, 0'); a('s_mov_b32 s14, s3')
    elif WN == 2: a('s_lshr_b32 s13, s3, 1'); a('s_and_b32 s14, s3, 1')
    else:         a('s_mov_b32 s13, s3'); a('s_mov_b32 s14, 0')
    a('v_and_b32 v5, 15, v0')
    a('v_lshrrev_b32 v6, 1, v5')
    a('v_xor_b32 v6, v6, v3')
    a('v_lshlrev_b32 v6, 4, v6')
    a('v_lshl_add_u32 v6, v5, 7, v6')
    a('v_xor_b32 v7, 64, v6           ; ks=1')
    nwin = (NS * STG + 65535) // 65536
    RA = 24; RBb = RA + 2 * nwin
    a(f's_mul_i32 s10, s13, {wm*16*128}')
    a(f's_mul_i32 s11, s14, {wn*16*128}')
    a(f's_add_u32 s11, s11, {BM*128}')
    for w in range(nwin):
        for ks in range(2):
            a(f'v_add_u32 v{RA+2*w+ks}, s10, v{6+ks}')
            a(f'v_add_u32 v{RBb+2*w+ks}, s11, v{6+ks}')
            if w:
                a(f'v_add_u32 v{RA+2*w+ks}, {65536*w}, v{RA+2*w+ks}')
                a(f'v_add_u32 v{RBb+2*w+ks}, {65536*w}, v{RBb+2*w+ks}')
    FR = 40
    nfr = wm + wn
    ACC = FR + 2 * nfr * 4
    for i in range(wm * wn * 4):
        a(f'v_mov_b32 v{ACC+i}, 0')
    for st in range(nst):
        later = min(NS - 2, nst - 1 - st)
        a(f's_waitcnt vmcnt({later*npw})')
        a('s_barrier')
        if st + NS - 1 < nst: issue(st + NS - 1)
        buf = (st % NS) * STG
        for ks in range(2):
            for i in range(wm):
                off = buf + i * 2048
                w = off >> 16
                a(f'ds_read_b128 v[{FR+(ks*nfr+i)*4}:{FR+(ks*nfr+i)*4+3}], v{RA+2*w+ks} offset:{off&65535}')
            for j in range(wn):
                off = buf + j * 2048
                w = off >> 16
                a(f'ds_read_b128 v[{FR+(ks*nfr+wm+j)*4}:{FR+(ks*nfr+wm+j)*4+3}], v{RBb+2*w+ks} offset:{off&65535}')
        for ks in range(2):
            a(f's_waitcnt lgkmcnt({nfr if ks == 0 else 0})')
            for i in range(wm):
                for j in range(wn):
                    ac = ACC + 4 * (i * wn + j)
                    fa = FR + (ks * nfr + i) * 4; fb = FR + (ks * nfr + wm + j) * 4
                    a(f'v_mfma_f32_16x16x32_bf16 v[{ac}:{ac+3}], v[{fa}:{fa+3}], v[{fb}:{fb+3}], v[{ac}:{ac+3}]')
    a(f's_mov_b32 s12, {ldo}')
    a('v_mul_lo_u32 v2, v5, s12')
    a('v_lshl_add_u32 v2, v3, 3, v2')
    a(f's_mul_i32 s10, s14, {wn*16}')
    a('s_add_u32 s10, s10, s7          ; n base')
    a(f's_mul_i32 s11, s13, {wm*16}')
    a('s_add_u32 s11, s11, s6          ; m base')
    a(f's_mul_i32 s15, s10, {ldo}')
    a('s_lshl_b32 s11, s11, 1')
    a('s_add_u32 s15, s15, s11')
    T = FR
    if kind == 'g2':
        a('s_mov_b32 s12, 3072')
        a('v_mul_lo_u32 v4, v5, s12')
        a('v_lshl_add_u32 v4, v3, 3, v4')
        a('s_mul_i32 s72, s10, 3072')
        a('s_add_u32 s72, s72, s11')
        a('v_lshlrev_b32 v6, 1, v5')
        a('s_lshl_b32 s73, s10, 1')
        ZR = ACC + wm * wn * 4
        BR = ZR + wm * wn * 2
        for j in range(wn):
            for i in range(wm):
                r = ZR + 2 * (i * wn + j)
                a(f'buffer_load_dwordx2 v[{r}:{r+1}], v4, s[56:59], s72 offen offset:{32*i}')
            a(f'buffer_load_ushort v{BR+j}, v6, s[60:63], s73 offen offset:{32*j}')
            if j + 1 < wn: a(f's_add_u32 s72, s72, {16*3072}')
        top = BR + wn
    elif kind == 'g3':
        ZR = ACC + wm * wn * 4
        a('s_mov_b32 s72, s15')
        for j in range(wn):
            for i in range(wm):
                r = ZR + 2 * (i * wn + j)
                a(f'buffer_load_dwordx2 v[{r}:{r+1}], v2, s[56:59], s72 offen offset:{32*i}')
            if j + 1 < wn: a(f's_add_u32 s72, s72, {16*ldo}')
        top = ZR + wm * wn * 2
    else:
        top = ACC + wm * wn * 4
    a('s_nop 7')
    a('s_waitcnt vmcnt(0)')
    for j in range(wn):
        if kind == 'g2':
            a(f'v_lshlrev_b32 v{BR+j}, 16, v{BR+j}')
        for i in range(wm):
            ac = ACC + 4 * (i * wn + j)
            rb2(a, ac, ac + 1, T)
            rb2(a, ac + 2, ac + 3, T + 1)
            if kind == 'g1':
                c1 = -2.0 * 1.4426950408889634 * 0.7978845608028654
                c2 = c1 * 0.044715
                import struct
                h = lambda f: '0x%08x' % struct.unpack('<I', struct.pack('<f', f))[0]
                a(f's_mov_b32 s74, {h(c1)}')
                for x in range(4):
                    a(f'v_mul_f32 v{T+4+x}, v{ac+x}, v{ac+x}')
                for x in range(4):
                    a(f'v_mul_f32 v{T+4+x}, {h(c2)}, v{T+4+x}')
                for x in range(4):
                    a(f'v_add_f32 v{T+4+x}, s74, v{T+4+x}')
                for x in range(4):
                    a(f'v_mul_f32 v{T+4+x}, v{T+4+x}, v{ac+x}')
                for x in range(4):
                    a(f'v_exp_f32 v{T+4+x}, v{T+4+x}')
                a('s_nop 0')
                for x in range(4):
                    a(f'v_add_f32 v{T+4+x}, 1.0, v{T+4+x}')
                for x in range(4):
                    a(f'v_rcp_f32 v{T+4+x}, v{T+4+x}')
                a('s_nop 0')
                for x in range(4):
                    a(f'v_mul_f32 v{ac+x}, v{ac+x}, v{T+4+x}')
            elif kind == 'g2':
                r = ZR + 2 * (i * wn + j)
                for x in range(4):
                    a(f'v_add_f32 v{ac+x}, v{ac+x}, v{BR+j}')
                rb2(a, ac, ac + 1, T)
                rb2(a, ac + 2, ac + 3, T + 1)
                unpack(a, T + 4, T + 5, r)
                unpack(a, T + 6, T + 7, r + 1)
                for x in range(4):
                    a(f'v_mul_f32 v{ac+x}, v{ac+x}, v{T+4+x}')
            else:
                r = ZR + 2 * (i * wn + j)
                unpack(a, T + 4, T + 5, r)
                unpack(a, T + 6, T + 7, r + 1)
                for x in range(4):
                    a(f'v_add_f32 v{ac+x}, v{ac+x}, v{T+4+x}')
            a(f'v_cvt_pk_bf16_f32 v{ac}, v{ac}, v{ac+1}')
            a(f'v_cvt_pk_bf16_f32 v{ac+1}, v{ac+2}, v{ac+3}')
            a(f'buffer_store_dwordx2 v[{ac}:{ac+1}], v2, s[52:55], s15 offen offset:{32*i}')
        if j + 1 < wn: a(f's_add_u32 s15, s15, {16*ldo}')
    a.label(Lend)
    a.end_kernel(name, max(top, 64), 80)
    return (name, ntm * ntn, 256, NS * STG)

def main():
    a = Asm()
    prep = gen_prep(a)
    conv = gen_conv(a)
    e1 = gen_e(a, True)
    e2 = gen_e(a, False)
    ln2 = gen_ln2(a)
    g1 = gen_gemm(a, 'g1_kernel', 'g1', 96, 128, 640, 2, 2, 5, 16, 16, 1280, 1280)
    g2 = gen_gemm(a, 'g2_kernel', 'g2', 96, 64, 2048, 2, 2, 7, 8, 32, 4096, 4096)
    g3 = gen_gemm(a, 'g3_kernel', 'g3', 80, 64, 768, 1, 4, 8, 8, 32, 1536, 1536)
    g3f = gen_gemm(a, 'g3f_kernel', 'g3', 80, 64, 768, 1, 4, 8, 8, 32, 1536, 1536, final=True)
    launches = [prep, conv, e1, g1, ln2, g2, g3, e2, g1, ln2, g2, g3f]
    hdr = open('interleave_layers__ssm_conv_h3__mixer_gmlp__prompt.s.ref').read().split('; Override launch')[0]
    txt = a.text(launches, hdr)
    out = sys.argv[1] if len(sys.argv) > 1 else 'interleave_layers__ssm_conv_h3__mixer_gmlp__prompt.s'
    open(out, 'w').write(txt)
    print('wrote', out, len(txt), 'bytes')

if __name__ == '__main__':
    main()
```

```python
import sys
sys.path.insert(0, 'dev')
from asmlib import *

S, D, F, FH = 2048, 640, 1536, 768
WINT  = 0x0000000
WOUTT = 0x0200000
LDT = 4224
UT    = 0x0300000
YT    = 0x0600000
YY    = 0x0900000
X1    = 0x0C00000
HH    = 0x0F00000
ZZ    = 0x1200000
Z2NT  = 0x1800000
PP    = 0x1C00000
X2    = 0x1F00000
SZ_SD = S * D * 2
SZ_T = D * LDT
SZ_Z2 = FH * LDT

P_Q, P_K, P_V, P_SK, P_SSMK, P_SSMD, P_BX, P_WIN, P_WSP, P_BSP, P_WOUT, P_OUT, P_DBG, P_WS = \
    [16 + 2 * i for i in range(14)]

import struct
def fhex(f): return '0x%08x' % struct.unpack('<I', struct.pack('<f', f))[0]

STAMP = False
_stampn = [0]
def stamp_reset():
    _stampn[0] = 0
def stamp(a):
    if not STAMP: return
    i = _stampn[0]; _stampn[0] += 1
    assert i < 60
    a('s_memtime s[98:99]')
    a('s_waitcnt lgkmcnt(0)')
    a(f'v_writelane_b32 v255, s98, {i}')
def stamp_flush(a, wg=0):
    if not STAMP: return
    L = a.newlabel('Lst')
    a(f's_cmp_lg_u32 s2, {wg}')
    a(f's_cbranch_scc1 {L}')
    a('s_cmp_lg_u32 s3, 0')
    a(f's_cbranch_scc1 {L}')
    a('v_mbcnt_lo_u32_b32 v250, -1, 0')
    a('v_mbcnt_hi_u32_b32 v250, -1, v250')
    a('v_lshlrev_b32 v250, 2, v250')
    a('global_store_dword v250, v255, s[40:41]')
    a.label(L)

def load_ptrs(a):
    a('''s_load_dwordx16 s[16:31], s[0:1], 0
         s_load_dwordx8 s[32:39], s[0:1], 64
         s_load_dwordx4 s[40:43], s[0:1], 96''')

def srd_ptr(a, d, p, nbytes, off=0):
    if off:
        a(f's_add_u32 s{d}, s{p}, {off}')
        a(f's_addc_u32 s{d+1}, s{p+1}, 0')
    else:
        a(f's_mov_b32 s{d}, s{p}')
        a(f's_mov_b32 s{d+1}, s{p+1}')
    a(f's_mov_b32 s{d+2}, {nbytes}')
    a(f's_mov_b32 s{d+3}, 0x20000')

def srd_ws(a, d, off, nbytes):
    srd_ptr(a, d, P_WS, nbytes, off)

def unpack(a, lo, hi, src):
    a(f'v_lshlrev_b32 v{lo}, 16, v{src}')
    a(f'v_and_b32 v{hi}, 0xffff0000, v{src}')

def rb2(a, x0, x1, tmp):
    a(f'v_cvt_pk_bf16_f32 v{tmp}, v{x0}, v{x1}')
    unpack(a, x0, x1, tmp)

def gen_prep(a, zero=None):
    name = 'prep_kernel'
    a.begin_kernel(name)
    Lend = a.newlabel('Lend'); Lw1 = a.newlabel('Lw1'); Lw2 = a.newlabel('Lw2'); Ltr = a.newlabel('Ltr'); Ltr2 = a.newlabel('Ltr2')
    nz = (zero[1] + 4095) // 4096 if zero else 0
    a(f's_cmp_ge_u32 s2, {680+nz}')
    a(f's_cbranch_scc1 {Lend}')
    load_ptrs(a)
    a('v_and_b32 v1, 7, v0          ; cg')
    a('v_lshrrev_b32 v2, 3, v0')
    a('s_waitcnt lgkmcnt(0)')
    if zero:
        Lnz = a.newlabel('Lnz')
        a('s_cmp_lt_u32 s2, 680')
        a(f's_cbranch_scc1 {Lnz}')
        srd_ws(a, 44, zero[0], zero[1])
        a('s_sub_u32 s3, s2, 680')
        a('s_lshl_b32 s3, s3, 12')
        a('v_lshlrev_b32 v3, 4, v0')
        for i in range(4): a(f'v_mov_b32 v{4+i}, 0')
        a('buffer_store_dwordx4 v[4:7], v3, s[44:47], s3 offen')
        a(f's_branch {Lend}')
        a.label(Lnz)
    a('s_cmp_ge_u32 s2, 320')
    a(f's_cbranch_scc1 {Lw1}')
    a('s_mov_b32 s4, 0x1999999a')
    a('s_mul_hi_u32 s5, s2, s4      ; sblk')
    a('s_mul_i32 s6, s5, 10')
    a('s_sub_u32 s6, s2, s6         ; dblk')
    srd_ptr(a, 44, P_K, SZ_SD)
    srd_ptr(a, 48, P_V, SZ_SD)
    srd_ptr(a, 56, P_SK, D * 8)
    srd_ws(a, 52, UT, SZ_T)
    a('s_mul_i32 s7, s5, 64*1280')
    a('s_lshl_b32 s8, s6, 7')
    a('s_add_u32 s7, s7, s8')
    a('v_mul_u32_u24 v3, 2560, v2')
    a('v_lshl_add_u32 v3, v1, 4, v3')
    a('v_add_u32 v3, s7, v3')
    for i in range(5):
        if i < 3:
            a(f'v_subrev_u32 v{10+i}, {1280*(3-i)}, v3')
            a(f'buffer_load_dwordx4 v[{16+4*i}:{19+4*i}], v{10+i}, s[44:47], 0 offen')
        else:
            a(f'buffer_load_dwordx4 v[{16+4*i}:{19+4*i}], v3, s[44:47], 0 offen offset:{1280*(i-3)}')
    for i in range(2):
        a(f'buffer_load_dwordx4 v[{36+4*i}:{39+4*i}], v3, s[48:51], 0 offen offset:{1280*i}')
    a('s_lshl_b32 s8, s6, 9')
    a('v_lshlrev_b32 v5, 6, v1')
    a('v_add_u32 v5, s8, v5')
    for i in range(4):
        a(f'buffer_load_dwordx4 v[{44+4*i}:{47+4*i}], v5, s[56:59], 0 offen offset:{16*i}')
    a('s_waitcnt vmcnt(0)')
    KF = 64
    SK = 70
    VF = 74
    A0, A1, T0, T1, TMP = 76, 77, 78, 79, 80
    RES = 84
    for e in range(8):
        dw = e // 2; hi = e & 1
        def ext(dst, src):
            if hi: a(f'v_and_b32 v{dst}, 0xffff0000, v{src}')
            else:  a(f'v_lshlrev_b32 v{dst}, 16, v{src}')
        for i in range(5): ext(KF + i, 16 + 4 * i + dw)
        for i in range(2): ext(VF + i, 36 + 4 * i + dw)
        unpack(a, SK + 0, SK + 1, 44 + 2 * e)
        unpack(a, SK + 2, SK + 3, 44 + 2 * e + 1)
        a(f'v_mul_f32 v{A0}, v{KF+0}, v{SK+3}')
        a(f'v_mul_f32 v{A1}, v{KF+1}, v{SK+3}')
        rb2(a, A0, A1, TMP)
        for i in range(1, 4):
            a(f'v_mul_f32 v{T0}, v{KF+i}, v{SK+3-i}')
            a(f'v_mul_f32 v{T1}, v{KF+i+1}, v{SK+3-i}')
            rb2(a, T0, T1, TMP)
            a(f'v_add_f32 v{A0}, v{A0}, v{T0}')
            a(f'v_add_f32 v{A1}, v{A1}, v{T1}')
            rb2(a, A0, A1, TMP)
        a(f'v_mul_f32 v{A0}, v{A0}, v{VF}')
        a(f'v_mul_f32 v{A1}, v{A1}, v{VF+1}')
        a(f'v_cvt_pk_bf16_f32 v{RES+e}, v{A0}, v{A1}')
    a(f's_mov_b32 s60, {LDT}')
    a(f's_mul_i32 s61, s6, {64*LDT}')
    a('s_lshl_b32 s8, s5, 7')
    a('s_add_u32 s61, s61, s8')
    a(f's_branch {Ltr2}')
    a.label(Lw1)
    a('s_cmp_ge_u32 s2, 560')
    a(f's_cbranch_scc1 {Lw2}')
    a('s_sub_u32 s3, s2, 320')
    a('s_mov_b32 s4, 0x0aaaaaab')
    a('s_mul_hi_u32 s5, s3, s4      ; kblk')
    a('s_mul_i32 s6, s5, 24')
    a('s_sub_u32 s6, s3, s6         ; fblk')
    srd_ptr(a, 44, P_WIN, D * F * 2)
    srd_ws(a, 52, WINT, D * F * 2)
    a('s_mov_b32 s9, 3072')
    a('s_mul_i32 s7, s5, 64*3072')
    a('s_lshl_b32 s8, s6, 7')
    a('s_add_u32 s7, s7, s8')
    a('s_mov_b32 s60, 1280')
    a('s_mul_i32 s61, s6, 64*1280')
    a('s_lshl_b32 s8, s5, 7')
    a('s_add_u32 s61, s61, s8')
    a(f's_branch {Ltr}')
    a.label(Lw2)
    a('s_sub_u32 s3, s2, 560')
    a('s_mov_b32 s4, 0x1999999a')
    a('s_mul_hi_u32 s5, s3, s4      ; fblk')
    a('s_mul_i32 s6, s5, 10')
    a('s_sub_u32 s6, s3, s6         ; dblk')
    srd_ptr(a, 44, P_WOUT, FH * D * 2)
    srd_ws(a, 52, WOUTT, FH * D * 2)
    a('s_mov_b32 s9, 1280')
    a('s_mul_i32 s7, s5, 64*1280')
    a('s_lshl_b32 s8, s6, 7')
    a('s_add_u32 s7, s7, s8')
    a('s_mov_b32 s60, 1536')
    a('s_mul_i32 s61, s6, 64*1536')
    a('s_lshl_b32 s8, s5, 7')
    a('s_add_u32 s61, s61, s8')
    a.label(Ltr)
    a('v_lshlrev_b32 v3, 1, v2')
    a('v_mul_lo_u32 v3, v3, s9')
    a('v_lshl_add_u32 v3, v1, 4, v3')
    a('v_add_u32 v3, s7, v3')
    a('v_add_u32 v4, s9, v3')
    a('buffer_load_dwordx4 v[16:19], v3, s[44:47], 0 offen')
    a('buffer_load_dwordx4 v[20:23], v4, s[44:47], 0 offen')
    a('s_mov_b32 s10, 0x05040100')
    a('s_mov_b32 s11, 0x07060302')
    a('s_waitcnt vmcnt(0)')
    for j in range(4):
        a(f'v_perm_b32 v{84+2*j}, v{20+j}, v{16+j}, s10')
        a(f'v_perm_b32 v{85+2*j}, v{20+j}, v{16+j}, s11')
    a.label(Ltr2)
    a('v_mul_u32_u24 v5, 1088, v1')
    a('v_lshl_add_u32 v5, v2, 2, v5')
    for e in range(8):
        a(f'ds_write_b32 v5, v{84+e} offset:{136*e}')
    a('v_lshrrev_b32 v6, 2, v0       ; c')
    a('v_and_b32 v7, 3, v0           ; seg')
    a('v_mul_u32_u24 v8, 136, v6')
    a('v_lshl_add_u32 v8, v7, 5, v8')
    a('v_mul_lo_u32 v9, v6, s60')
    a('v_lshl_add_u32 v9, v7, 5, v9')
    a('v_add_u32 v9, s61, v9')
    a('s_waitcnt lgkmcnt(0)')
    a('s_barrier')
    for i in range(4):
        a(f'ds_read_b64 v[{16+2*i}:{17+2*i}], v8 offset:{8*i}')
    a('s_waitcnt lgkmcnt(0)')
    a('buffer_store_dwordx4 v[16:19], v9, s[52:55], 0 offen')
    a('buffer_store_dwordx4 v[20:23], v9, s[52:55], 0 offen offset:16')
    a.label(Lend)
    a.end_kernel(name, 96, 72)
    return (name, 680 + nz, 256, 64 * 136)

def gen_conv(a):
    name = 'conv_kernel'
    a.begin_kernel(name)
    Lend = a.newlabel('Lend')
    UB = 37504; WB = UB + 7680
    a('s_cmp_ge_u32 s2, 214')
    a(f's_cbranch_scc1 {Lend}')
    stamp_reset(); stamp(a)
    load_ptrs(a)
    a('v_lshrrev_b32 v1, 6, v0')
    a('v_and_b32 v0, 63, v0')
    a('s_nop 0')
    a('v_readfirstlane_b32 s3, v1     ; wave')
    a('s_nop 3')
    a('s_mul_i32 s4, s2, 3')
    a('s_add_u32 s4, s4, s3           ; channel d')
    a('s_cmp_ge_u32 s4, 640')
    a(f's_cbranch_scc1 {Lend}')
    a(f's_mul_i32 s5, s3, {WB}')
    a('s_lshl_b32 s6, s4, 12')
    a(f's_mul_i32 s13, s4, {LDT}       ; d*LDT')
    a('s_waitcnt lgkmcnt(0)')
    stamp(a)
    a(f's_add_u32 s44, s{P_SSMK}, s6')
    a(f's_addc_u32 s45, s{P_SSMK+1}, 0')
    a('s_mov_b32 s46, 4096')
    a('s_mov_b32 s47, 0x20000')
    srd_ws(a, 48, UT, SZ_T)
    srd_ws(a, 52, YT, SZ_T)
    srd_ptr(a, 56, P_SSMD, D * 2)
    a('v_lshlrev_b32 v2, 4, v0')
    HR = 140
    for j in range(4):
        a(f'buffer_load_dwordx4 v[{HR+8*j}:{HR+8*j+3}], v2, s[44:47], 0 offen offset:{1024*j}')
        a(f'buffer_load_dwordx4 v[{HR+8*j+4}:{HR+8*j+7}], v2, s[44:47], 0 offen offset:{1024*j+16}')
    for j in range(4):
        a(f'buffer_load_dwordx4 v[{100+4*j}:{103+4*j}], v2, s[48:51], s13 offen offset:{1024*j}')
    a('v_lshrrev_b32 v3, 3, v0')
    a('v_and_b32 v4, 7, v0')
    a('v_add_u32 v3, v3, v4')
    a('v_subrev_u32 v3, 7, v3')
    a('v_max_i32 v4, 0, v3')
    a('v_lshlrev_b32 v4, 1, v4')
    a('buffer_load_ushort v5, v4, s[44:47], 0 offen')
    a('s_lshl_b32 s7, s4, 1')
    a('v_mov_b32 v6, 0')
    a('buffer_load_ushort v7, v6, s[56:59], s7 offen')
    a('v_and_b32 v8, 15, v0           ; ii / m')
    a('v_lshrrev_b32 v9, 4, v0        ; kq / q')
    a('v_lshlrev_b32 v10, 2, v9')
    a('v_and_b32 v11, 2, v9')
    a('v_lshlrev_b32 v11, 1, v11')
    a('v_xor_b32 v10, v10, v11        ; a[q] = r0 (mod 16)')
    a('v_sub_u32 v18, 15, v8')
    a('v_mul_u32_u24 v18, 96, v18')
    a('v_lshlrev_b32 v19, 1, v10')
    a('v_sub_u32 v18, v18, v19')
    a('v_add_u32 v18, s5, v18')
    a(f'v_add_u32 v18, {UB+56-32}, v18')
    a('v_lshlrev_b32 v10, 1, v10')
    a('v_lshl_add_u32 v10, v8, 6, v10')
    a('v_add_u32 v10, s5, v10')
    a('v_mov_b32 v12, 0')
    a('v_mov_b32 v13, 0')
    a('v_mov_b32 v14, 0')
    a('v_mov_b32 v15, 0')
    a('v_min_u32 v16, 26, v0')
    a('v_lshlrev_b32 v16, 4, v16')
    a('v_add_u32 v16, s5, v16')
    a('ds_write_b128 v16, v[12:15]')
    a('v_lshlrev_b32 v16, 4, v0')
    a('v_add_u32 v16, s5, v16')
    a(f'ds_write_b128 v16, v[12:15] offset:{UB+64*96}')
    a('v_min_u32 v16, 25, v0')
    a('v_lshlrev_b32 v16, 4, v16')
    a('v_add_u32 v16, s5, v16')
    a(f'ds_write_b128 v16, v[12:15] offset:{UB+64*96+1024}')
    a('v_mul_u32_u24 v16, 144, v0')
    a('v_add_u32 v16, s5, v16          ; 144*l + base')
    E0 = 20
    E1 = 29
    D1 = 39
    for j in range(4):
        d = HR + 8 * j
        a(f's_waitcnt vmcnt({12 - 2*j})')
        for k in range(7):
            a(f'v_alignbit_b32 v{E0+k}, v{d+k+1}, v{d+k}, 16')
        for k in range(1, 7):
            a(f'v_alignbit_b32 v{E1+k}, v{d+k+1}, v{d+k}, 16')
            a(f'v_mov_b32 v{D1+k}, v{d+k}')
        for p in range(8):
            off = 9216 * j + 16 * (p + (34 if p == 0 else 35))
            if p % 2 == 0:
                k = p // 2
                src = d + k if k % 2 == 0 else D1 + k
            else:
                k = (p - 1) // 2
                src = E0 + k if k % 2 == 0 else E1 + k
            assert src % 2 == 0
            a(f'ds_write_b128 v16, v[{src}:{src+3}] offset:{off}')
        a('s_nop 1')
    a('s_waitcnt vmcnt(0)')
    a('v_cmp_gt_i32 vcc, 0, v3')
    a('s_nop 1')
    a('v_cndmask_b32 v5, v5, v12, vcc')
    a('v_lshlrev_b32 v16, 1, v0')
    a('v_add_u32 v16, s5, v16')
    a('ds_write_b16 v16, v5 offset:432')
    a('v_sub_u32 v16, 63, v0          ; 63-l ; pc = (63-l) + 64*(3-j)')
    a('v_lshrrev_b32 v17, 2, v16')
    a('v_and_b32 v16, 3, v16')
    a('v_mul_u32_u24 v17, 96, v17')
    a('v_lshl_add_u32 v17, v16, 4, v17')
    a('v_add_u32 v17, s5, v17')
    for j in range(4):
        s0 = 100 + 4 * j
        t0 = 48 + 4 * j
        for x in range(4):
            a(f'v_alignbit_b32 v{t0+x}, v{s0+3-x}, v{s0+3-x}, 16')
        a(f'ds_write_b128 v17, v[{t0}:{t0+3}] offset:{UB + 96*16*(3-j)}')
    a('v_lshrrev_b32 v16, 1, v8')
    a('v_and_b32 v16, 4, v16')
    a('v_xor_b32 v16, v8, v16         ; rr')
    a('v_lshl_add_u32 v16, v9, 3, v16')
    a('v_lshrrev_b32 v17, 3, v16')
    a('v_add_u32 v16, v16, v17        ; x + (x>>3)')
    a('v_lshlrev_b32 v16, 4, v16')
    a('v_add_u32 v16, s5, v16         ; A addr')
    a('v_sub_u32 v17, 15, v8')
    a('v_mul_u32_u24 v17, 96, v17')
    a('v_lshl_add_u32 v17, v9, 4, v17')
    a('v_add_u32 v17, s5, v17')
    a(f'v_add_u32 v17, {UB}, v17        ; B addr')
    ACC = 64
    for i in range(32):
        a(f'v_mov_b32 v{ACC+i}, 0')
    FR = [20, 140]
    def reads(t):
        f = FR[t & 1]
        n = 0
        for j in range(2):
            a(f'ds_read_b128 v[{f+4*j}:{f+4*j+3}], v16 offset:{576*t+288*j}'); n += 1
        for c in range(t >> 4, 4):
            a(f'ds_read_b128 v[{f+8+4*c}:{f+11+4*c}], v17 offset:{96*(48-16*c+t)}'); n += 1
        return n
    a('s_waitcnt lgkmcnt(0)')
    stamp(a)
    reads(0)
    for t in range(64):
        nn = reads(t + 1) if t + 1 < 64 else 0
        a(f's_waitcnt lgkmcnt({nn})')
        f = FR[t & 1]
        for c in range(t >> 4, 4):
            for j in range(2):
                ac = ACC + 4 * (2 * c + j)
                a(f'v_mfma_f32_16x16x32_bf16 v[{ac}:{ac+3}], v[{f+4*j}:{f+4*j+3}], v[{f+8+4*c}:{f+11+4*c}], v[{ac}:{ac+3}]')
    stamp(a)
    for c in range(4):
        for j in range(2):
            ur = 120 + 2 * (2 * c + j)
            a(f'ds_read_b64 v[{ur}:{ur+1}], v18 offset:{96*(48-16*c) + 32*(1-j)}')
    a('v_lshlrev_b32 v7, 16, v7       ; D as f32')
    a('s_nop 7')
    a('s_waitcnt lgkmcnt(0)')
    for c in range(4):
        for j in range(2):
            ac = ACC + 4 * (2 * c + j)
            ur = 120 + 2 * (2 * c + j)
            rb2(a, ac, ac + 1, 18)
            rb2(a, ac + 2, ac + 3, 19)
            unpack(a, 23, 22, ur)
            unpack(a, 21, 20, ur + 1)
            for x in range(4):
                a(f'v_mul_f32 v{20+x}, v{20+x}, v7')
            rb2(a, 20, 21, 18)
            rb2(a, 22, 23, 19)
            for x in range(4):
                a(f'v_add_f32 v{ac+x}, v{ac+x}, v{20+x}')
            a(f'v_cvt_pk_bf16_f32 v{ur}, v{ac}, v{ac+1}')
            a(f'v_cvt_pk_bf16_f32 v{ur+1}, v{ac+2}, v{ac+3}')
            a(f'ds_write_b64 v10, v[{ur}:{ur+1}] offset:{1024*c+32*j}')
    a('v_add_u32 v16, s5, v2')
    a('s_waitcnt lgkmcnt(0)')
    for x in range(4):
        a(f'ds_read_b128 v[{20+4*x}:{23+4*x}], v16 offset:{1024*x}')
    for x in range(4):
        a(f's_waitcnt lgkmcnt({3-x})')
        a(f'buffer_store_dwordx4 v[{20+4*x}:{23+4*x}], v2, s[52:55], s13 offen offset:{1024*x}')
    if STAMP:
        stamp(a)
        a('s_waitcnt vmcnt(0)')
        stamp(a)
        stamp_flush(a, 37)
    a.label(Lend)
    a.end_kernel(name, 256 if STAMP else 176, 102 if STAMP else 72)
    return (name, 214, 192, 3 * WB)

def reduce2(a, va, vb, sbase):
    for n in (8, 4, 2, 1):
        a('s_nop 1')
        a(f'v_add_f32_dpp v{va}, v{va}, v{va} row_ror:{n} row_mask:0xf bank_mask:0xf')
        a(f'v_add_f32_dpp v{vb}, v{vb}, v{vb} row_ror:{n} row_mask:0xf bank_mask:0xf')
    a('s_nop 0')
    for i in range(4):
        a(f'v_readlane_b32 s{sbase+i}, v{va}, {16*i}')
    for i in range(4):
        a(f'v_readlane_b32 s{sbase+4+i}, v{vb}, {16*i}')
    a(f'v_mov_b32 v{va}, s{sbase}')
    a(f'v_add_f32 v{va}, s{sbase+1}, v{va}')
    a(f'v_add_f32 v{va}, s{sbase+2}, v{va}')
    a(f'v_add_f32 v{va}, s{sbase+3}, v{va}')
    a(f'v_mov_b32 v{vb}, s{sbase+4}')
    a(f'v_add_f32 v{vb}, s{sbase+5}, v{vb}')
    a(f'v_add_f32 v{vb}, s{sbase+6}, v{vb}')
    a(f'v_add_f32 v{vb}, s{sbase+7}, v{vb}')

def ln_rows2(a, xa, xb, n, ntot, t, outa, outb, sbase):
    sa, sb_, ma, mb, ra, rb_ = t, t + 1, t + 2, t + 3, t + 4, t + 5
    tm = t + 6
    da = t + 8; db = t + 8 + n
    inv = 1.0 / ntot
    import struct
    invh = '0x%08x' % struct.unpack('<I', struct.pack('<f', inv))[0]
    for (x, s_) in ((xa, sa), (xb, sb_)):
        a(f'v_add_f32 v{s_}, v{x}, v{x+1}')
        for i in range(2, n):
            a(f'v_add_f32 v{s_}, v{s_}, v{x+i}')
    reduce2(a, sa, sb_, sbase)
    a(f'v_mul_f32 v{ma}, {invh}, v{sa}')
    a(f'v_mul_f32 v{mb}, {invh}, v{sb_}')
    for (x, d, m, s_) in ((xa, da, ma, sa), (xb, db, mb, sb_)):
        for i in range(n):
            a(f'v_sub_f32 v{d+i}, v{x+i}, v{m}')
        a(f'v_mul_f32 v{s_}, v{d}, v{d}')
        for i in range(1, n):
            a(f'v_fmac_f32 v{s_}, v{d+i}, v{d+i}')
    reduce2(a, sa, sb_, sbase)
    a(f'v_mul_f32 v{sa}, {invh}, v{sa}')
    a(f'v_mul_f32 v{sb_}, {invh}, v{sb_}')
    rb2(a, ma, mb, tm)
    rb2(a, sa, sb_, tm)
    a(f'v_add_f32 v{sa}, 0x3727c5ac, v{sa}')
    a(f'v_add_f32 v{sb_}, 0x3727c5ac, v{sb_}')
    rb2(a, sa, sb_, tm)
    a(f'v_sqrt_f32 v{sa}, v{sa}')
    a(f'v_sqrt_f32 v{sb_}, v{sb_}')
    a('s_nop 0')
    rb2(a, sa, sb_, tm)
    a(f'v_rcp_f32 v{ra}, v{sa}')
    a(f'v_rcp_f32 v{rb_}, v{sb_}')
    a('s_nop 0')
    for (x, o, m, r) in ((xa, outa, ma, ra), (xb, outb, mb, rb_)):
        for i in range(0, n, 2):
            a(f'v_sub_f32 v{o+i}, v{x+i}, v{m}')
            a(f'v_sub_f32 v{o+i+1}, v{x+i+1}, v{m}')
            rb2(a, o + i, o + i + 1, tm)
            a(f'v_mul_f32 v{o+i}, v{o+i}, v{r}')
            a(f'v_mul_f32 v{o+i+1}, v{o+i+1}, v{r}')
            rb2(a, o + i, o + i + 1, tm)

def ln_row1(a, x, n, ntot, t, out, sbase):
    s1, s2, m, r, tm = t, t + 1, t + 2, t + 3, t + 4
    d = t + 8
    invh = fhex(1.0 / ntot)
    sp = sbase + 8
    a('s_nop 0')
    a(f'v_readfirstlane_b32 s{sp}, v{x}')
    a('s_nop 1')
    for i in range(n):
        a(f'v_subrev_f32 v{d+i}, s{sp}, v{x+i}')
    a(f'v_add_f32 v{s1}, v{d}, v{d+1}')
    a(f'v_mul_f32 v{s2}, v{d}, v{d}')
    for i in range(1, n):
        if i >= 2: a(f'v_add_f32 v{s1}, v{s1}, v{d+i}')
        a(f'v_fmac_f32 v{s2}, v{d+i}, v{d+i}')
    reduce2(a, s1, s2, sbase)
    a(f'v_mul_f32 v{s1}, {invh}, v{s1}')
    a(f'v_mul_f32 v{s2}, {invh}, v{s2}')
    a(f'v_fma_f32 v{s2}, -v{s1}, v{s1}, v{s2}  ; var')
    a(f'v_max_f32 v{s2}, 0, v{s2}')
    a(f'v_add_f32 v{m}, s{sp}, v{s1}           ; mean')
    rb2(a, m, s2, tm)
    a(f'v_add_f32 v{s2}, 0x3727c5ac, v{s2}')
    a(f'v_cvt_pk_bf16_f32 v{tm}, v{s2}, v{s2}')
    a(f'v_lshlrev_b32 v{s2}, 16, v{tm}')
    a(f'v_sqrt_f32 v{s2}, v{s2}')
    a('s_nop 0')
    a(f'v_cvt_pk_bf16_f32 v{tm}, v{s2}, v{s2}')
    a(f'v_lshlrev_b32 v{s2}, 16, v{tm}')
    a(f'v_rcp_f32 v{r}, v{s2}')
    for i in range(n):
        a(f'v_sub_f32 v{out+i}, v{x+i}, v{m}')
    for i in range(0, n, 2):
        rb2(a, out + i, out + i + 1, tm + (i // 2) % 2)
    for i in range(n):
        a(f'v_mul_f32 v{out+i}, v{out+i}, v{r}')
    for i in range(0, n, 2):
        rb2(a, out + i, out + i + 1, tm + (i // 2) % 2)

def gen_e(a, first):
    name = 'e1_kernel' if first else 'e2_kernel'
    a.begin_kernel(name)
    Lend = a.newlabel('Lend')
    a('s_cmp_ge_u32 s2, 256')
    a(f's_cbranch_scc1 {Lend}')
    stamp_reset(); stamp(a)
    load_ptrs(a)
    a('v_lshrrev_b32 v1, 6, v0')
    a('v_and_b32 v2, 63, v0          ; lane')
    a('s_and_b32 s5, s2, 7')
    a('s_lshl_b32 s5, s5, 5')
    a('s_lshr_b32 s6, s2, 3')
    a('s_add_u32 s5, s5, s6')
    a('s_waitcnt lgkmcnt(0)')
    stamp(a)
    if first:
        srd_ptr(a, 44, P_Q, SZ_SD)
        srd_ws(a, 48, YT, SZ_T)
    else:
        srd_ws(a, 44, X2, SZ_SD)
    srd_ws(a, 52, YY, SZ_SD)
    srd_ws(a, 56, X1, SZ_SD)
    srd_ws(a, 60, HH, SZ_SD)
    a('s_mul_i32 s3, s5, 8*1280')
    a('v_mul_u32_u24 v3, 1280, v1')
    a('v_lshl_add_u32 v3, v2, 2, v3')
    a('v_add_u32 v3, s3, v3')
    XR = 16; YR = 22
    if first:
        a('s_lshl_b32 s4, s5, 4')
        a(f'v_mul_u32_u24 v4, {LDT}, v0')
        a('v_add_u32 v4, s4, v4')
        a(f'v_add_u32 v5, {512*LDT}, v4')
        a('buffer_load_dwordx4 v[36:39], v4, s[48:51], 0 offen')
        a('buffer_load_dwordx4 v[40:43], v5, s[48:51], 0 offen')
    for j in range(5):
        a(f'buffer_load_dword v{XR+j}, v3, s[44:47], 0 offen offset:{256*j}')
    if first:
        a('v_lshlrev_b32 v4, 4, v0')
        a('s_waitcnt vmcnt(5)')
        a('ds_write_b128 v4, v[36:39]')
        a('ds_write_b128 v4, v[40:43] offset:8192')
        a('v_lshlrev_b32 v5, 5, v2')
        a('v_lshl_add_u32 v5, v1, 1, v5')
        a('s_waitcnt lgkmcnt(0)')
        a('s_barrier')
        for j in range(5):
            a(f'ds_read_u16 v{YR+j}, v5 offset:{2048*j}')
            a(f'ds_read_u16 v{36+j}, v5 offset:{2048*j+16}')
        a('s_waitcnt vmcnt(0) lgkmcnt(0)')
        for j in range(5):
            a(f'v_lshl_or_b32 v{YR+j}, v{36+j}, 16, v{YR+j}')
        for j in range(5):
            a(f'buffer_store_dword v{YR+j}, v3, s[52:55], 0 offen offset:{256*j}')
    else:
        for j in range(5):
            a(f'buffer_load_dword v{YR+j}, v3, s[52:55], 0 offen offset:{256*j}')
        a('s_waitcnt vmcnt(0)')
    XA = 48; NA = 60; T = 72
    stamp(a)
    for j in range(5):
        unpack(a, XA + 2 * j, XA + 2 * j + 1, XR + j)
    ln_row1(a, XA, 10, 640, T, NA, 64)
    for j in range(5):
        unpack(a, T + 2 * j, T + 2 * j + 1, YR + j)
    for i in range(10):
        a(f'v_mul_f32 v{NA+i}, v{NA+i}, v{T+i}')
    for j in range(5):
        rb2(a, NA + 2 * j, NA + 2 * j + 1, T + 10 + (j & 1))
    for i in range(10):
        a(f'v_add_f32 v{XA+i}, v{XA+i}, v{NA+i}')
    for j in range(5):
        a(f'v_cvt_pk_bf16_f32 v{XR+j}, v{XA+2*j}, v{XA+2*j+1}')
        unpack(a, XA + 2 * j, XA + 2 * j + 1, XR + j)
        a(f'buffer_store_dword v{XR+j}, v3, s[56:59], 0 offen offset:{256*j}')
    ln_row1(a, XA, 10, 640, T, NA, 64)
    for j in range(5):
        a(f'v_cvt_pk_bf16_f32 v{YR+j}, v{NA+2*j}, v{NA+2*j+1}')
        a(f'buffer_store_dword v{YR+j}, v3, s[60:63], 0 offen offset:{256*j}')
    if STAMP:
        stamp(a)
        a('s_waitcnt vmcnt(0)')
        stamp(a)
        stamp_flush(a, 37)
    a.label(Lend)
    a.end_kernel(name, 256 if STAMP else 96, 102 if STAMP else 80)
    return (name, 256, 512, 16384 if first else 0)

def gen_ln2(a):
    name = 'ln2_kernel'
    a.begin_kernel(name)
    Lend = a.newlabel('Lend')
    a('s_cmp_ge_u32 s2, 128')
    a(f's_cbranch_scc1 {Lend}')
    stamp_reset(); stamp(a)
    load_ptrs(a)
    a('v_lshrrev_b32 v1, 6, v0       ; wave')
    a('v_and_b32 v2, 63, v0          ; lane')
    a('s_and_b32 s5, s2, 7')
    a('s_lshl_b32 s5, s5, 4')
    a('s_lshr_b32 s6, s2, 3')
    a('s_add_u32 s5, s5, s6')
    a('s_waitcnt lgkmcnt(0)')
    stamp(a)
    srd_ws(a, 44, ZZ, S * F * 2)
    srd_ws(a, 48, Z2NT, SZ_Z2)
    a('s_mul_i32 s3, s5, 16*3072')
    a('s_add_u32 s3, s3, 1536')
    a('v_mul_u32_u24 v3, 4*3072, v1')
    a('v_lshl_add_u32 v3, v2, 2, v3')
    a('v_add_u32 v3, s3, v3')
    R = 16
    for r in range(4):
        if r: a(f'v_add_u32 v{3+r}, {3072*r}, v3')
    for r in range(4):
        for j in range(6):
            a(f'buffer_load_dword v{R+6*r+j}, v{3+r}, s[44:47], 0 offen offset:{256*j}')
    a('v_lshlrev_b32 v8, 6, v2')
    a('v_lshl_add_u32 v8, v1, 3, v8')
    a('s_waitcnt vmcnt(0)')
    XA, XB, T = 48, 60, 80
    stamp(a)
    for p in range(2):
        for j in range(6):
            unpack(a, XA + 2 * j, XA + 2 * j + 1, R + 12 * p + j)
            unpack(a, XB + 2 * j, XB + 2 * j + 1, R + 12 * p + 6 + j)
        ln_rows2(a, XA, XB, 12, 768, T, XA, XB, 64)
        for i in range(12):
            a(f'v_cvt_pk_bf16_f32 v{T+i}, v{XA+i}, v{XB+i}')
            a(f'ds_write_b32 v8, v{T+i} offset:{4096*(i//2) + 32*(i&1) + 4*p}')
    a('v_lshlrev_b32 v9, 5, v0')
    a('s_lshl_b32 s4, s5, 5')
    a(f'v_mul_u32_u24 v10, {LDT}, v0')
    a('v_add_u32 v10, s4, v10')
    a('s_waitcnt lgkmcnt(0)')
    a('s_barrier')
    for i in range(3):
        a(f'ds_read_b128 v[{16+8*i}:{19+8*i}], v9 offset:{8192*i}')
        a(f'ds_read_b128 v[{20+8*i}:{23+8*i}], v9 offset:{8192*i+16}')
    a('s_waitcnt lgkmcnt(0)')
    for i in range(3):
        if i: a(f'v_add_u32 v10, {256*LDT}, v10')
        a(f'buffer_store_dwordx4 v[{16+8*i}:{19+8*i}], v10, s[48:51], 0 offen')
        a(f'buffer_store_dwordx4 v[{20+8*i}:{23+8*i}], v10, s[48:51], 0 offen offset:16')
    if STAMP:
        stamp(a)
        a('s_waitcnt vmcnt(0)')
        stamp(a)
        stamp_flush(a, 37)
    a.label(Lend)
    a.end_kernel(name, 256 if STAMP else 128, 102 if STAMP else 80)
    return (name, 128, 256, 24576)

def gen_gemm(a, name, kind, BM, BN, K, WM, WN, NS, ntm, ntn, ldA, ldB, final=False):
    wm = BM // WM // 16; wn = BN // WN // 16
    nst = K // 64
    STG = (BM + BN) * 128
    ngA = BM // 8; ngB = BN // 8
    nAw = (ngA + 3) // 4; nBw = (ngB + 3) // 4
    npw = nAw + nBw
    a.begin_kernel(name)
    Lend = a.newlabel('Lend')
    a(f's_cmp_ge_u32 s2, {ntm*ntn}')
    a(f's_cbranch_scc1 {Lend}')
    stamp_reset(); stamp(a)
    load_ptrs(a)
    a('v_lshrrev_b32 v1, 6, v0')
    a('v_and_b32 v0, 63, v0')
    a('s_nop 0')
    a('v_readfirstlane_b32 s3, v1     ; wave')
    assert ntm in (8, 16)
    a('s_and_b32 s10, s2, 7')
    a('s_lshr_b32 s11, s2, 3')
    if ntm == 8:
        a('s_and_b32 s4, s11, 7')
        a('s_lshr_b32 s5, s11, 3')
        a('s_lshl_b32 s10, s10, 2')
        a('s_add_u32 s5, s5, s10')
    else:
        a('s_and_b32 s4, s11, 7')
        a('s_and_b32 s12, s10, 1')
        a('s_lshl_b32 s12, s12, 3')
        a('s_add_u32 s4, s4, s12')
        a('s_lshr_b32 s5, s11, 3')
        a('s_lshr_b32 s10, s10, 1')
        a('s_lshl_b32 s10, s10, 2')
        a('s_add_u32 s5, s5, s10')
    a(f's_mul_i32 s6, s4, {BM}          ; m0')
    a(f's_mul_i32 s7, s5, {BN}          ; n0')
    a('s_waitcnt lgkmcnt(0)')
    stamp(a)
    if kind == 'g1':
        srd_ws(a, 44, WINT, D * F * 2); srd_ws(a, 48, HH, SZ_SD); srd_ws(a, 52, ZZ, S * F * 2); ldo = 3072
    elif kind == 'g2':
        srd_ws(a, 44, Z2NT, FH * S * 2); srd_ptr(a, 48, P_WSP, S * S * 2); srd_ws(a, 52, PP, S * FH * 2); ldo = 1536
        srd_ws(a, 56, ZZ, S * F * 2); srd_ptr(a, 60, P_BSP, S * 2)
    else:
        srd_ws(a, 44, WOUTT, FH * D * 2); srd_ws(a, 48, PP, S * FH * 2); ldo = 1280
        if final: srd_ptr(a, 52, P_OUT, SZ_SD)
        else: srd_ws(a, 52, X2, SZ_SD)
        srd_ws(a, 56, X1, SZ_SD)
    a(f's_mul_i32 s8, s6, {ldA}         ; A soffset')
    a(f's_mul_i32 s9, s7, {ldB}         ; B soffset')
    a('v_lshrrev_b32 v2, 3, v0        ; l>>3')
    a('v_lshrrev_b32 v3, 4, v0        ; l>>4')
    a('v_and_b32 v4, 7, v0            ; l&7')
    VA = 8; VB = VA + nAw
    SMA = 64; SMB = SMA + nAw
    def grp_setup(i, ng, ld, vdst, sdst, ldsbase):
        if 4 * i + 3 < ng:
            a(f's_add_u32 s10, s3, {4*i}')
        else:
            assert ng - 4 * i == 2
            a('s_and_b32 s10, s3, 1')
            a(f's_add_u32 s10, s10, {4*i}')
        a('s_lshl_b32 s11, s10, 2')
        a('v_add_u32 v5, s11, v3')
        a('v_and_b32 v5, 7, v5')
        a('v_xor_b32 v5, v5, v4')
        a('s_lshl_b32 s11, s10, 3')
        a('v_add_u32 v6, s11, v2          ; row')
        a(f's_mov_b32 s12, {ld}')
        a('v_mul_lo_u32 v6, v6, s12')
        a(f'v_lshl_add_u32 v{vdst}, v5, 4, v6')
        a(f's_lshl_b32 s{sdst}, s10, 10')
        if ldsbase: a(f's_add_u32 s{sdst}, s{sdst}, {ldsbase}')
    for i in range(nAw): grp_setup(i, ngA, ldA, VA + i, SMA + i, 0)
    for i in range(nBw): grp_setup(i, ngB, ldB, VB + i, SMB + i, BM * 128)
    def issue(st):
        buf = (st % NS) * STG
        for i in range(nAw):
            a(f's_add_u32 m0, s{SMA+i}, {buf}')
            a('s_nop 0')
            a(f'buffer_load_dwordx4 v{VA+i}, s[44:47], s8 offen lds')
        for i in range(nBw):
            a(f's_add_u32 m0, s{SMB+i}, {buf}')
            a('s_nop 0')
            a(f'buffer_load_dwordx4 v{VB+i}, s[48:51], s9 offen lds')
        a('s_add_u32 s8, s8, 128')
        a('s_add_u32 s9, s9, 128')
    for st in range(min(NS - 1, nst)):
        issue(st)
    if WN == 4:   a('s_mov_b32 s13, 0'); a('s_mov_b32 s14, s3')
    elif WN == 2: a('s_lshr_b32 s13, s3, 1'); a('s_and_b32 s14, s3, 1')
    else:         a('s_mov_b32 s13, s3'); a('s_mov_b32 s14, 0')
    a('v_and_b32 v5, 15, v0')
    a('v_lshrrev_b32 v6, 1, v5')
    a('v_xor_b32 v6, v6, v3')
    a('v_lshlrev_b32 v6, 4, v6')
    a('v_lshl_add_u32 v6, v5, 7, v6')
    a('v_xor_b32 v7, 64, v6           ; ks=1')
    nwin = (NS * STG + 65535) // 65536
    RA = 24; RBb = RA + 2 * nwin
    a(f's_mul_i32 s10, s13, {wm*16*128}')
    a(f's_mul_i32 s11, s14, {wn*16*128}')
    a(f's_add_u32 s11, s11, {BM*128}')
    for w in range(nwin):
        for ks in range(2):
            a(f'v_add_u32 v{RA+2*w+ks}, s10, v{6+ks}')
            a(f'v_add_u32 v{RBb+2*w+ks}, s11, v{6+ks}')
            if w:
                a(f'v_add_u32 v{RA+2*w+ks}, {65536*w}, v{RA+2*w+ks}')
                a(f'v_add_u32 v{RBb+2*w+ks}, {65536*w}, v{RBb+2*w+ks}')
    FR = 40
    nfr = wm + wn
    ACC = FR + 2 * nfr * 4
    for i in range(wm * wn * 4):
        a(f'v_mov_b32 v{ACC+i}, 0')
    for st in range(nst):
        later = min(NS - 2, nst - 1 - st)
        a(f's_waitcnt vmcnt({later*npw})')
        a('s_barrier')
        if st in (0, 1, nst // 2, nst - 1): stamp(a)
        if st + NS - 1 < nst: issue(st + NS - 1)
        buf = (st % NS) * STG
        for ks in range(2):
            for i in range(wm):
                off = buf + i * 2048
                w = off >> 16
                a(f'ds_read_b128 v[{FR+(ks*nfr+i)*4}:{FR+(ks*nfr+i)*4+3}], v{RA+2*w+ks} offset:{off&65535}')
            for j in range(wn):
                off = buf + j * 2048
                w = off >> 16
                a(f'ds_read_b128 v[{FR+(ks*nfr+wm+j)*4}:{FR+(ks*nfr+wm+j)*4+3}], v{RBb+2*w+ks} offset:{off&65535}')
        for ks in range(2):
            a(f's_waitcnt lgkmcnt({nfr if ks == 0 else 0})')
            for i in range(wm):
                for j in range(wn):
                    ac = ACC + 4 * (i * wn + j)
                    fa = FR + (ks * nfr + i) * 4; fb = FR + (ks * nfr + wm + j) * 4
                    a(f'v_mfma_f32_16x16x32_bf16 v[{ac}:{ac+3}], v[{fa}:{fa+3}], v[{fb}:{fb+3}], v[{ac}:{ac+3}]')
    stamp(a)
    a(f's_mov_b32 s12, {ldo}')
    a('v_mul_lo_u32 v2, v5, s12')
    a('v_lshl_add_u32 v2, v3, 3, v2')
    a(f's_mul_i32 s10, s14, {wn*16}')
    a('s_add_u32 s10, s10, s7          ; n base')
    a(f's_mul_i32 s11, s13, {wm*16}')
    a('s_add_u32 s11, s11, s6          ; m base')
    a(f's_mul_i32 s15, s10, {ldo}')
    a('s_lshl_b32 s11, s11, 1')
    a('s_add_u32 s15, s15, s11')
    T = FR
    if kind == 'g2':
        a('s_mov_b32 s12, 3072')
        a('v_mul_lo_u32 v4, v5, s12')
        a('v_lshl_add_u32 v4, v3, 3, v4')
        a('s_mul_i32 s72, s10, 3072')
        a('s_add_u32 s72, s72, s11')
        a('v_lshlrev_b32 v6, 1, v5')
        a('s_lshl_b32 s73, s10, 1')
        ZR = ACC + wm * wn * 4
        BR = ZR + wm * wn * 2
        for j in range(wn):
            for i in range(wm):
                r = ZR + 2 * (i * wn + j)
                a(f'buffer_load_dwordx2 v[{r}:{r+1}], v4, s[56:59], s72 offen offset:{32*i}')
            a(f'buffer_load_ushort v{BR+j}, v6, s[60:63], s73 offen offset:{32*j}')
            if j + 1 < wn: a(f's_add_u32 s72, s72, {16*3072}')
        top = BR + wn
    elif kind == 'g3':
        ZR = ACC + wm * wn * 4
        a('s_mov_b32 s72, s15')
        for j in range(wn):
            for i in range(wm):
                r = ZR + 2 * (i * wn + j)
                a(f'buffer_load_dwordx2 v[{r}:{r+1}], v2, s[56:59], s72 offen offset:{32*i}')
            if j + 1 < wn: a(f's_add_u32 s72, s72, {16*ldo}')
        top = ZR + wm * wn * 2
    else:
        top = ACC + wm * wn * 4
    a('s_nop 7')
    a('s_waitcnt vmcnt(0)')
    for j in range(wn):
        if kind == 'g2':
            a(f'v_lshlrev_b32 v{BR+j}, 16, v{BR+j}')
        for i in range(wm):
            ac = ACC + 4 * (i * wn + j)
            rb2(a, ac, ac + 1, T)
            rb2(a, ac + 2, ac + 3, T + 1)
            if kind == 'g1':
                c1 = -2.0 * 1.4426950408889634 * 0.7978845608028654
                c2 = c1 * 0.044715
                import struct
                h = lambda f: '0x%08x' % struct.unpack('<I', struct.pack('<f', f))[0]
                a(f's_mov_b32 s74, {h(c1)}')
                for x in range(4):
                    a(f'v_mul_f32 v{T+4+x}, v{ac+x}, v{ac+x}')
                for x in range(4):
                    a(f'v_mul_f32 v{T+4+x}, {h(c2)}, v{T+4+x}')
                for x in range(4):
                    a(f'v_add_f32 v{T+4+x}, s74, v{T+4+x}')
                for x in range(4):
                    a(f'v_mul_f32 v{T+4+x}, v{T+4+x}, v{ac+x}')
                for x in range(4):
                    a(f'v_exp_f32 v{T+4+x}, v{T+4+x}')
                a('s_nop 0')
                for x in range(4):
                    a(f'v_add_f32 v{T+4+x}, 1.0, v{T+4+x}')
                for x in range(4):
                    a(f'v_rcp_f32 v{T+4+x}, v{T+4+x}')
                a('s_nop 0')
                for x in range(4):
                    a(f'v_mul_f32 v{ac+x}, v{ac+x}, v{T+4+x}')
            elif kind == 'g2':
                r = ZR + 2 * (i * wn + j)
                for x in range(4):
                    a(f'v_add_f32 v{ac+x}, v{ac+x}, v{BR+j}')
                rb2(a, ac, ac + 1, T)
                rb2(a, ac + 2, ac + 3, T + 1)
                unpack(a, T + 4, T + 5, r)
                unpack(a, T + 6, T + 7, r + 1)
                for x in range(4):
                    a(f'v_mul_f32 v{ac+x}, v{ac+x}, v{T+4+x}')
            else:
                r = ZR + 2 * (i * wn + j)
                unpack(a, T + 4, T + 5, r)
                unpack(a, T + 6, T + 7, r + 1)
                for x in range(4):
                    a(f'v_add_f32 v{ac+x}, v{ac+x}, v{T+4+x}')
            a(f'v_cvt_pk_bf16_f32 v{ac}, v{ac}, v{ac+1}')
            a(f'v_cvt_pk_bf16_f32 v{ac+1}, v{ac+2}, v{ac+3}')
            a(f'buffer_store_dwordx2 v[{ac}:{ac+1}], v2, s[52:55], s15 offen offset:{32*i}')
        if j + 1 < wn: a(f's_add_u32 s15, s15, {16*ldo}')
    if STAMP:
        stamp(a)
        a('s_waitcnt vmcnt(0)')
        stamp(a)
        stamp_flush(a, 37)
    a.label(Lend)
    a.end_kernel(name, 256 if STAMP else max(top, 64), 102 if STAMP else 80)
    return (name, ntm * ntn, 256, NS * STG)


def gen_gemm2(a, name, kind, BM, BN, K, WM, WN, KS, NS, ntm, ntn, ldA, ldB, final=False):
    assert WM * WN * KS == 8
    wm = BM // WM // 16; wn = BN // WN // 16
    nst = K // 64
    STG = (BM + BN) * 128
    ngA = BM // 8; ngB = BN // 8
    slots = []
    for g0 in range(0, ngA, 8): slots.append(('A', g0, min(8, ngA - g0)))
    for g0 in range(0, ngB, 8): slots.append(('B', g0, min(8, ngB - g0)))
    npw = sum(1 for s_ in slots if s_[2] == 8)
    a.begin_kernel(name)
    Lend = a.newlabel('Lend')
    a(f's_cmp_ge_u32 s2, {ntm*ntn}')
    a(f's_cbranch_scc1 {Lend}')
    stamp_reset(); stamp(a)
    load_ptrs(a)
    a('v_mov_b32 v23, v0              ; tid')
    a('v_lshrrev_b32 v1, 6, v0')
    a('v_and_b32 v0, 63, v0')
    a('s_nop 0')
    a('v_readfirstlane_b32 s3, v1     ; wave')
    a('s_and_b32 s10, s2, 7')
    a('s_lshr_b32 s11, s2, 3')
    lg = ntm.bit_length() - 1
    a(f's_and_b32 s4, s11, {ntm-1}      ; mt')
    a(f's_lshr_b32 s5, s11, {lg}')
    a(f's_lshl_b32 s10, s10, {5-lg}')
    a('s_add_u32 s5, s5, s10')
    a(f's_mul_i32 s6, s4, {BM}          ; m0')
    a(f's_mul_i32 s7, s5, {BN}          ; n0')
    a(f's_mul_i32 s8, s6, {ldA}         ; A soffset')
    a(f's_mul_i32 s9, s7, {ldB}         ; B soffset')
    a('v_lshrrev_b32 v2, 3, v0        ; l>>3')
    a('v_lshrrev_b32 v3, 4, v0        ; l>>4')
    a('v_and_b32 v4, 7, v0            ; l&7')
    VS = 8; SS = 64
    for i, (op, g0, nw) in enumerate(slots):
        ld = ldA if op == 'A' else ldB
        a(f's_add_u32 s10, s3, {g0}')
        a('s_lshl_b32 s11, s10, 2')
        a('v_add_u32 v5, s11, v3')
        a('v_and_b32 v5, 7, v5')
        a('v_xor_b32 v5, v5, v4')
        a('s_lshl_b32 s11, s10, 3')
        a('v_add_u32 v6, s11, v2          ; row')
        a(f's_mov_b32 s12, {ld}')
        a('v_mul_lo_u32 v6, v6, s12')
        a(f'v_lshl_add_u32 v{VS+i}, v5, 4, v6')
        a(f's_lshl_b32 s{SS+i}, s10, 10')
        if op == 'B': a(f's_add_u32 s{SS+i}, s{SS+i}, {BM*128}')
    a('s_and_b32 s10, s3, 3')
    a('s_lshr_b32 s75, s3, 2')
    if KS == 2:
        if WN == 4:   a('s_mov_b32 s13, 0'); a('s_mov_b32 s14, s10')
        elif WN == 2: a('s_lshr_b32 s13, s10, 1'); a('s_and_b32 s14, s10, 1')
        else:         a('s_mov_b32 s13, s10'); a('s_mov_b32 s14, 0')
    else:
        assert WM == 2 and WN == 4
        a('s_mov_b32 s13, s75'); a('s_mov_b32 s14, s10')
    a('s_waitcnt lgkmcnt(0)')
    stamp(a)
    if kind == 'g1':
        srd_ws(a, 44, WINT, D * F * 2); srd_ws(a, 48, HH, SZ_SD); srd_ws(a, 52, ZZ, S * F * 2); ldo = 3072
    elif kind == 'g2':
        srd_ws(a, 44, Z2NT, SZ_Z2); srd_ptr(a, 48, P_WSP, S * S * 2); srd_ws(a, 52, PP, S * FH * 2); ldo = 1536
        srd_ws(a, 56, ZZ, S * F * 2); srd_ptr(a, 60, P_BSP, S * 2)
    else:
        srd_ws(a, 44, WOUTT, FH * D * 2); srd_ws(a, 48, PP, S * FH * 2); ldo = 1280
        if final: srd_ptr(a, 52, P_OUT, SZ_SD)
        else: srd_ws(a, 52, X2, SZ_SD)
        srd_ws(a, 56, X1, SZ_SD)
    def issue(st):
        buf = (st % NS) * STG
        for i, (op, g0, nw) in enumerate(slots):
            Ls = None
            if nw < 8:
                Ls = a.newlabel('Lsk')
                a(f's_cmp_ge_u32 s3, {nw}')
                a(f's_cbranch_scc1 {Ls}')
            a(f's_add_u32 m0, s{SS+i}, {buf}')
            a('s_nop 0')
            if op == 'A': a(f'buffer_load_dwordx4 v{VS+i}, s[44:47], s8 offen lds')
            else:         a(f'buffer_load_dwordx4 v{VS+i}, s[48:51], s9 offen lds')
            if Ls: a.label(Ls)
        a('s_add_u32 s8, s8, 128')
        a('s_add_u32 s9, s9, 128')
    for st in range(0, min(NS - 1, nst)):
        issue(st)
    T_ = wm * wn
    tiles = [(i, j) for i in range(wm) for j in range(wn)]
    if KS == 2:
        h = (T_ + 1) // 2
        keep = [tiles[:h], tiles[h:]]
    else:
        keep = [tiles]
    nwin = (NS * STG + 65535) // 65536
    RA = 24; RBb = RA + 2 * nwin
    FR = 40
    nfr = wm + wn
    nks = 2 if KS == 1 else 1
    ACC = FR + max(nks * nfr * 4, 24)
    CPR = BM // 8
    NCH = BN * CPR
    NR = (NCH + 511) // 512
    RS = BM * 2 + 16
    TOFF = 65536
    OLDS = ACC + T_ * 4
    OGL = OLDS + NR
    ZR = (OGL + NR + 3) // 4 * 4
    BR = ZR + 4 * NR
    top = BR + wn
    magic = {12: 43691, 10: 52429}[CPR]
    a('v_and_b32 v5, 15, v0')
    a(f's_mul_i32 s15, s7, {ldo}')
    a('s_lshl_b32 s11, s6, 1')
    a('s_add_u32 s15, s15, s11')
    if kind == 'g2':
        a('s_mul_i32 s72, s7, 3072')
        a('s_add_u32 s72, s72, s11')
    for r in range(NR):
        a(f'v_add_u32 v6, {512*r}, v23')
        a(f'v_mul_u32_u24 v7, {magic}, v6')
        a('v_lshrrev_b32 v7, 19, v7       ; row')
        a(f'v_mul_u32_u24 v20, {CPR}, v7')
        a('v_sub_u32 v20, v6, v20         ; c')
        a(f'v_mul_u32_u24 v{OLDS+r}, {RS}, v7')
        a(f'v_lshl_add_u32 v{OLDS+r}, v20, 4, v{OLDS+r}')
        a(f'v_add_u32 v{OLDS+r}, {TOFF}, v{OLDS+r}')
        a(f'v_mul_u32_u24 v{OGL+r}, {ldo}, v7')
        a(f'v_lshl_add_u32 v{OGL+r}, v20, 4, v{OGL+r}')
        if kind == 'g2':
            a(f'v_mul_u32_u24 v21, 3072, v7')
            a('v_lshl_add_u32 v21, v20, 4, v21')
        if 512 * (r + 1) > NCH:
            a(f'v_cmp_gt_u32 vcc, {NCH}, v6')
            a('v_mov_b32 v22, 0x7ffffff0')
            a('s_nop 0')
            a(f'v_cndmask_b32 v{OGL+r}, v22, v{OGL+r}, vcc')
            if kind == 'g2': a('v_cndmask_b32 v21, v22, v21, vcc')
            a(f'v_mov_b32 v22, {TOFF}')
            a(f'v_cndmask_b32 v{OLDS+r}, v22, v{OLDS+r}, vcc')
        if kind == 'g2':
            a(f'buffer_load_dwordx4 v[{ZR+4*r}:{ZR+4*r+3}], v21, s[56:59], s72 offen')
        elif kind == 'g3':
            a(f'buffer_load_dwordx4 v[{ZR+4*r}:{ZR+4*r+3}], v{OGL+r}, s[56:59], s15 offen')
    npre = NR if kind != 'g1' else 0
    if kind == 'g2':
        a(f's_mul_i32 s10, s14, {wn*16}')
        a('s_add_u32 s10, s10, s7          ; n base')
        a('s_lshl_b32 s73, s10, 1')
        a('v_lshlrev_b32 v22, 1, v5')
        for j in range(wn):
            a(f'buffer_load_ushort v{BR+j}, v22, s[60:63], s73 offen offset:{32*j}')
        npre += wn
    a(f's_mul_i32 s10, s14, {wn*16*RS}')
    a(f's_mul_i32 s11, s13, {wm*16*2}')
    a('s_add_u32 s10, s10, s11')
    a(f's_add_u32 s10, s10, {TOFF}')
    a(f'v_mul_u32_u24 v20, {RS}, v5')
    a('v_lshl_add_u32 v20, v3, 3, v20')
    a('v_add_u32 v20, s10, v20')
    a('v_lshrrev_b32 v6, 1, v5')
    a('v_xor_b32 v6, v6, v3')
    a('v_lshlrev_b32 v6, 4, v6')
    a('v_lshl_add_u32 v6, v5, 7, v6')
    if KS == 2:
        a('s_lshl_b32 s10, s75, 6')
        a('v_xor_b32 v6, s10, v6')
    else:
        a('v_xor_b32 v7, 64, v6           ; ks=1')
    a(f's_mul_i32 s10, s13, {wm*16*128}')
    a(f's_mul_i32 s11, s14, {wn*16*128}')
    a(f's_add_u32 s11, s11, {BM*128}')
    for w in range(nwin):
        for ks in range(nks):
            a(f'v_add_u32 v{RA+2*w+ks}, s10, v{6+ks}')
            a(f'v_add_u32 v{RBb+2*w+ks}, s11, v{6+ks}')
            if w:
                a(f'v_add_u32 v{RA+2*w+ks}, {65536*w}, v{RA+2*w+ks}')
                a(f'v_add_u32 v{RBb+2*w+ks}, {65536*w}, v{RBb+2*w+ks}')
    for i in range(T_ * 4):
        a(f'v_mov_b32 v{ACC+i}, 0')
    for st in range(nst):
        later = min(NS - 2, nst - 1 - st)
        extra = npre if st < NS - 1 and st == 0 else 0
        cnt = later * npw + (npre if st == 0 else 0)
        a(f's_waitcnt vmcnt({cnt})')
        a('s_barrier')
        if st in (0, 1, nst // 2, nst - 1): stamp(a)
        doiss = st + NS - 1 < nst
        if doiss:
            L1 = a.newlabel('Le')
            a('s_cmp_lg_u32 s75, 0')
            a(f's_cbranch_scc1 {L1}')
            issue(st + NS - 1)
            a.label(L1)
        buf = (st % NS) * STG
        for ks in range(nks):
            for i in range(wm):
                off = buf + i * 2048
                w = off >> 16
                a(f'ds_read_b128 v[{FR+(ks*nfr+i)*4}:{FR+(ks*nfr+i)*4+3}], v{RA+2*w+ks} offset:{off&65535}')
            for j in range(wn):
                off = buf + j * 2048
                w = off >> 16
                a(f'ds_read_b128 v[{FR+(ks*nfr+wm+j)*4}:{FR+(ks*nfr+wm+j)*4+3}], v{RBb+2*w+ks} offset:{off&65535}')
        for ks in range(nks):
            a(f's_waitcnt lgkmcnt({nfr if ks < nks-1 else 0})')
            for i in range(wm):
                for j in range(wn):
                    ac = ACC + 4 * (i * wn + j)
                    fa = FR + (ks * nfr + i) * 4; fb = FR + (ks * nfr + wm + j) * 4
                    a(f'v_mfma_f32_16x16x32_bf16 v[{ac}:{ac+3}], v[{fa}:{fa+3}], v[{fb}:{fb+3}], v[{ac}:{ac+3}]')
        if doiss:
            L2 = a.newlabel('Ll')
            a('s_cmp_eq_u32 s75, 0')
            a(f's_cbranch_scc1 {L2}')
            issue(st + NS - 1)
            a.label(L2)
    stamp(a)
    T = FR
    def epi1(tl):
        for (i, j) in tl:
            ac = ACC + 4 * (i * wn + j)
            if kind == 'g3':
                a(f'v_cvt_pk_bf16_f32 v{ac}, v{ac}, v{ac+1}')
                a(f'v_cvt_pk_bf16_f32 v{ac+1}, v{ac+2}, v{ac+3}')
            else:
                rb2(a, ac, ac + 1, T)
                rb2(a, ac + 2, ac + 3, T + 1)
                if kind == 'g1':
                    for x in range(4):
                        a(f'v_mul_f32 v{T+4+x}, v{ac+x}, v{ac+x}')
                    for x in range(4):
                        a(f'v_fma_f32 v{T+4+x}, v{T+4+x}, s77, v{T+3}')
                    for x in range(4):
                        a(f'v_mul_f32 v{T+4+x}, v{T+4+x}, v{ac+x}')
                    for x in range(4):
                        a(f'v_exp_f32 v{T+4+x}, v{T+4+x}')
                    a('s_nop 0')
                    for x in range(4):
                        a(f'v_add_f32 v{T+4+x}, 1.0, v{T+4+x}')
                    for x in range(4):
                        a(f'v_rcp_f32 v{T+4+x}, v{T+4+x}')
                    a('s_nop 0')
                    for x in range(4):
                        a(f'v_mul_f32 v{ac+x}, v{ac+x}, v{T+4+x}')
                else:
                    for x in range(4):
                        a(f'v_add_f32 v{ac+x}, v{ac+x}, v{BR+j}')
                a(f'v_cvt_pk_bf16_f32 v{ac}, v{ac}, v{ac+1}')
                a(f'v_cvt_pk_bf16_f32 v{ac+1}, v{ac+2}, v{ac+3}')
            a(f'ds_write_b64 v20, v[{ac}:{ac+1}] offset:{16*j*RS+32*i}')
    if kind == 'g1':
        c1 = -2.0 * 1.4426950408889634 * 0.7978845608028654
        a(f's_mov_b32 s77, {fhex(c1*0.044715)}')
        a(f'v_mov_b32 v{T+3}, {fhex(c1)}')
    if kind == 'g2':
        for j in range(wn):
            a(f'v_lshlrev_b32 v{BR+j}, 16, v{BR+j}')
    a('s_barrier')
    a('s_nop 4')
    if KS == 1:
        epi1(tiles)
    else:
        a('v_lshlrev_b32 v6, 4, v0')
        a(f's_mul_i32 s10, s3, {T_*1024}')
        a('s_xor_b32 s11, s3, 4')
        a(f's_mul_i32 s11, s11, {T_*1024}')
        a('v_add_u32 v7, s11, v6')
        a('v_add_u32 v6, s10, v6')
        Lk1 = a.newlabel('Lk1'); Lkd = a.newlabel('Lkd')
        a('s_cmp_lg_u32 s75, 0')
        a(f's_cbranch_scc1 {Lk1}')
        for ksi in range(2):
            if ksi == 1: a.label(Lk1)
            send = keep[1 - ksi]; kp = keep[ksi]
            for (i, j) in send:
                ac = ACC + 4 * (i * wn + j)
                a(f'ds_write_b128 v6, v[{ac}:{ac+3}] offset:{1024*(i*wn+j)}')
            a('s_waitcnt lgkmcnt(0)')
            a('s_barrier')
            for n_, (i, j) in enumerate(kp):
                a(f'ds_read_b128 v[{T+8+4*n_}:{T+11+4*n_}], v7 offset:{1024*(i*wn+j)}')
            a('s_waitcnt lgkmcnt(0)')
            for n_, (i, j) in enumerate(kp):
                ac = ACC + 4 * (i * wn + j)
                for x in range(4):
                    a(f'v_add_f32 v{ac+x}, v{ac+x}, v{T+8+4*n_+x}')
            epi1(kp)
            if ksi == 0: a(f's_branch {Lkd}')
        a.label(Lkd)
    a('s_waitcnt lgkmcnt(0)')
    a('s_barrier')
    for r in range(NR):
        a(f'ds_read_b128 v[{ACC+4*r}:{ACC+4*r+3}], v{OLDS+r}')
    for r in range(NR):
        a(f's_waitcnt lgkmcnt({NR-1-r})')
        if kind != 'g1':
            for x in range(4):
                unpack(a, T, T + 1, ACC + 4 * r + x)
                unpack(a, T + 2, T + 3, ZR + 4 * r + x)
                op = 'v_mul_f32' if kind == 'g2' else 'v_add_f32'
                a(f'{op} v{T}, v{T}, v{T+2}')
                a(f'{op} v{T+1}, v{T+1}, v{T+3}')
                a(f'v_cvt_pk_bf16_f32 v{ACC+4*r+x}, v{T}, v{T+1}')
        a(f'buffer_store_dwordx4 v[{ACC+4*r}:{ACC+4*r+3}], v{OGL+r}, s[52:55], s15 offen')
    if STAMP:
        stamp(a)
        a('s_waitcnt vmcnt(0)')
        stamp(a)
        stamp_flush(a, 37)
    a.label(Lend)
    a.end_kernel(name, 256 if STAMP else max(top, 64), 102 if STAMP else 80)
    return (name, ntm * ntn, 512, max(NS * STG, TOFF + BN * RS))

def main():
    global STAMP
    if len(sys.argv) > 2 and sys.argv[2] == 'stamp': STAMP = True
    a = Asm()
    prep = gen_prep(a)
    conv = gen_conv(a)
    e1 = gen_e(a, True)
    e2 = gen_e(a, False)
    ln2 = gen_ln2(a)
    g1 = gen_gemm2(a, 'g1_kernel', 'g1', 96, 128, 640, 2, 4, 1, 5, 16, 16, 1280, 1280)
    g2 = gen_gemm2(a, 'g2_kernel', 'g2', 96, 64, 2048, 2, 2, 2, 7, 8, 32, LDT, 4096)
    g3 = gen_gemm2(a, 'g3_kernel', 'g3', 80, 64, 768, 1, 4, 2, 8, 8, 32, 1536, 1536)
    g3f = gen_gemm2(a, 'g3f_kernel', 'g3', 80, 64, 768, 1, 4, 2, 8, 8, 32, 1536, 1536, final=True)
    launches = [prep, conv, e1, g1, ln2, g2, g3, e2, g1, ln2, g2, g3f]
    hdr = open('interleave_layers__ssm_conv_h3__mixer_gmlp__prompt.s.ref').read().split('; Override launch')[0]
    txt = a.text(launches, hdr)
    out = sys.argv[1] if len(sys.argv) > 1 else 'interleave_layers__ssm_conv_h3__mixer_gmlp__prompt.s'
    open(out, 'w').write(txt)
    print('wrote', out, len(txt), 'bytes')

if __name__ == '__main__':
    main()
```

```python
import sys
sys.path.insert(0, 'dev')
from asmlib import *
import gen
from gen import *

CNT   = 0x2200000
NCNT  = 512
ST2   = 0x2210000
STX   = 0x2310000
ZERO_BYTES = 0x210000
Z2NTB = 0x2500000
Z2 = [Z2NT, Z2NTB]

FAST = False
def SC(): return '' if FAST else 'sc1'

class Gemm:
    def __init__(self, a, BM, BN, K, WM, WN, KS, NS, ldA, ldB, srdA, srdB):
        self.a = a; self.BM = BM; self.BN = BN; self.K = K; self.WM = WM; self.WN = WN; self.KS = KS; self.NS = NS
        self.ldA = ldA; self.ldB = ldB; self.srdA = srdA; self.srdB = srdB
        assert WM * WN * KS == 8
        self.wm = BM // WM // 16; self.wn = BN // WN // 16
        self.nst = K // 64
        self.STG = (BM + BN) * 128
        ngA = BM // 8; ngB = BN // 8
        self.slots = []
        for g0 in range(0, ngA, 8): self.slots.append(('A', g0, min(8, ngA - g0)))
        for g0 in range(0, ngB, 8): self.slots.append(('B', g0, min(8, ngB - g0)))
        self.npw = sum(1 for s_ in self.slots if s_[2] == 8)
        self.nA = sum(1 for s_ in self.slots if s_[2] == 8 and s_[0] == 'A')
        self.nB = sum(1 for s_ in self.slots if s_[2] == 8 and s_[0] == 'B')
        self.VS = 8; self.SS = 64
        self.nwin = (NS * self.STG + 65535) // 65536
        self.RA = 24; self.RB = self.RA + 2 * self.nwin
        self.FR = 40
        self.nfr = self.wm + self.wn
        self.nks = 2 if KS == 1 else 1
        self.ACC = self.FR + max(self.nks * self.nfr * 4, 24)
        self.T_ = self.wm * self.wn
        self.tiles = [(i, j) for i in range(self.wm) for j in range(self.wn)]
        h = (self.T_ + 1) // 2
        self.keep = [self.tiles[:h], self.tiles[h:]] if KS == 2 else [self.tiles]
        self.free = self.ACC + self.T_ * 4
        self.bcache = ''
        self.arow_split = None
        self.a_tile_off = None
    def setup(self):
        a = self.a
        a(f's_mul_i32 s8, s6, {self.ldA}         ; A soffset')
        a(f's_mul_i32 s9, s7, {self.ldB}         ; B soffset')
        for i, (op, g0, nw) in enumerate(self.slots):
            ld = self.ldA if op == 'A' else self.ldB
            a(f's_add_u32 s10, s3, {g0}')
            a('s_lshl_b32 s11, s10, 2')
            a('v_add_u32 v6, s11, v3')
            a('v_and_b32 v6, 7, v6')
            a('v_xor_b32 v6, v6, v4')
            a('s_lshl_b32 s11, s10, 3')
            if op == 'A' and self.arow_split:
                gs, add = self.arow_split
                a(f's_cmp_ge_u32 s10, {gs}')
                a(f's_cselect_b32 s12, {add}, 0')
                a('s_add_u32 s11, s11, s12')
            a('v_add_u32 v7, s11, v2          ; row')
            a(f's_mov_b32 s12, {ld}')
            a('v_mul_lo_u32 v7, v7, s12')
            a(f'v_lshl_add_u32 v{self.VS+i}, v6, 4, v7')
            a(f's_lshl_b32 s{self.SS+i}, s10, 10')
            if op == 'B': a(f's_add_u32 s{self.SS+i}, s{self.SS+i}, {self.BM*128}')
        a('s_and_b32 s10, s3, 3')
        WN, WM, KS = self.WN, self.WM, self.KS
        if KS == 2:
            if WN == 4:   a('s_mov_b32 s13, 0'); a('s_mov_b32 s14, s10')
            elif WN == 2: a('s_lshr_b32 s13, s10, 1'); a('s_and_b32 s14, s10, 1')
            else:         a('s_mov_b32 s13, s10'); a('s_mov_b32 s14, 0')
        elif WM == 2 and WN == 4:
            a('s_mov_b32 s13, s75'); a('s_mov_b32 s14, s10')
        elif WM == 4 and WN == 2:
            a('s_and_b32 s13, s3, 1')
            a('s_lshl_b32 s11, s75, 1')
            a('s_add_u32 s13, s13, s11         ; wmi = (w&1) + 2*(w>>2)')
            a('s_lshr_b32 s14, s10, 1          ; wni = (w>>1)&1')
        else: assert 0
        a('v_lshrrev_b32 v6, 1, v5')
        a('v_xor_b32 v6, v6, v3')
        a('v_lshlrev_b32 v6, 4, v6')
        a('v_lshl_add_u32 v6, v5, 7, v6')
        if KS == 2:
            a('s_lshl_b32 s10, s75, 6')
            a('v_xor_b32 v6, s10, v6')
        else:
            a('v_xor_b32 v7, 64, v6           ; ks=1')
        a(f's_mul_i32 s10, s13, {self.a_wave_stride if self.a_tile_off else self.wm*16*128}')
        a(f's_mul_i32 s11, s14, {self.wn*16*128}')
        a(f's_add_u32 s11, s11, {self.BM*128}')
        for w in range(self.nwin):
            for ks in range(self.nks):
                a(f'v_add_u32 v{self.RA+2*w+ks}, s10, v{6+ks}')
                a(f'v_add_u32 v{self.RB+2*w+ks}, s11, v{6+ks}')
                if w:
                    a(f'v_add_u32 v{self.RA+2*w+ks}, {65536*w}, v{self.RA+2*w+ks}')
                    a(f'v_add_u32 v{self.RB+2*w+ks}, {65536*w}, v{self.RB+2*w+ks}')
    def issue(self, st, parts='AB'):
        a = self.a
        buf = (st % self.NS) * self.STG
        for i, (op, g0, nw) in enumerate(self.slots):
            if op not in parts: continue
            Ls = None
            if nw < 8:
                Ls = a.newlabel('Lsk')
                a(f's_cmp_ge_u32 s3, {nw}')
                a(f's_cbranch_scc1 {Ls}')
            a(f's_add_u32 m0, s{self.SS+i}, {buf}')
            a('s_nop 0')
            if op == 'A': a(f'buffer_load_dwordx4 v{self.VS+i}, s[{self.srdA}:{self.srdA+3}], s8 offen lds')
            else:         a(f'buffer_load_dwordx4 v{self.VS+i}, s[{self.srdB}:{self.srdB+3}], s9 offen {self.bcache} lds')
            if Ls: a.label(Ls)
        if 'A' in parts: a('s_add_u32 s8, s8, 128')
        if 'B' in parts: a('s_add_u32 s9, s9, 128')
    def prologue(self, parts='AB'):
        for st in range(min(self.NS - 1, self.nst)): self.issue(st, parts)
    def zero_acc(self):
        for i in range(self.T_ * 4): self.a(f'v_mov_b32 v{self.ACC+i}, 0')
    def mainloop(self, first_extra=0, swap=False, split_prologue=False):
        a = self.a; NS = self.NS; nst = self.nst; npw = self.npw
        wm, wn, nfr, nks, FR, ACC = self.wm, self.wn, self.nfr, self.nks, self.FR, self.ACC
        for st in range(nst):
            later = min(NS - 2, nst - 1 - st)
            if split_prologue and st < NS - 1:
                npro = min(NS - 1, nst)
                cnt = (npro - 1 - st) * self.nB + max(0, min(st, nst - npro)) * npw
            else:
                cnt = later * npw + (first_extra if st == 0 else 0)
            a(f's_waitcnt vmcnt({cnt})')
            a('s_barrier')
            doiss = st + NS - 1 < nst
            if doiss:
                L1 = a.newlabel('Le')
                a('s_cmp_lg_u32 s75, 0')
                a(f's_cbranch_scc1 {L1}')
                self.issue(st + NS - 1)
                a.label(L1)
            buf = (st % NS) * self.STG
            for ks in range(nks):
                for i in range(wm):
                    off = buf + (self.a_tile_off[i] if self.a_tile_off else i * 2048); w = off >> 16
                    a(f'ds_read_b128 v[{FR+(ks*nfr+i)*4}:{FR+(ks*nfr+i)*4+3}], v{self.RA+2*w+ks} offset:{off&65535}')
                for j in range(wn):
                    off = buf + j * 2048; w = off >> 16
                    a(f'ds_read_b128 v[{FR+(ks*nfr+wm+j)*4}:{FR+(ks*nfr+wm+j)*4+3}], v{self.RB+2*w+ks} offset:{off&65535}')
            for ks in range(nks):
                a(f's_waitcnt lgkmcnt({nfr if ks < nks-1 else 0})')
                for i in range(wm):
                    for j in range(wn):
                        ac = ACC + 4 * (i * wn + j)
                        fa = FR + (ks * nfr + i) * 4; fb = FR + (ks * nfr + wm + j) * 4
                        if swap is True or (swap and i in swap): fa, fb = fb, fa
                        a(f'v_mfma_f32_16x16x32_bf16 v[{ac}:{ac+3}], v[{fa}:{fa+3}], v[{fb}:{fb+3}], v[{ac}:{ac+3}]')
            if doiss:
                L2 = a.newlabel('Ll')
                a('s_cmp_eq_u32 s75, 0')
                a(f's_cbranch_scc1 {L2}')
                self.issue(st + NS - 1)
                a.label(L2)

def common_prologue(a):
    a('v_mov_b32 v23, v0              ; tid')
    a('v_lshrrev_b32 v1, 6, v0')
    a('v_and_b32 v0, 63, v0')
    a('s_nop 0')
    a('v_readfirstlane_b32 s3, v1     ; wave')
    a('v_lshrrev_b32 v2, 3, v0        ; l>>3')
    a('v_lshrrev_b32 v3, 4, v0        ; l>>4')
    a('v_and_b32 v4, 7, v0            ; l&7')
    a('v_and_b32 v5, 15, v0           ; l&15')
    a('s_lshr_b32 s75, s3, 2')
    a('s_and_b32 s10, s2, 7')
    a('s_lshr_b32 s11, s2, 3')
    a('s_and_b32 s4, s11, 7            ; member j')
    a('s_lshr_b32 s5, s11, 3')
    a('s_lshl_b32 s10, s10, 2')
    a('s_add_u32 s5, s5, s10')

def chunk_map(a, NRW, CPR, RS, TOFF, ldo, OLDS, OGL, extra=None):
    NCH = NRW * CPR
    NR = (NCH + 511) // 512
    for r in range(NR):
        a(f'v_add_u32 v6, {512*r}, v23')
        if CPR & (CPR - 1) == 0:
            sh = CPR.bit_length() - 1
            a(f'v_lshrrev_b32 v7, {sh}, v6')
            a(f'v_and_b32 v20, {CPR-1}, v6')
        else:
            magic = (1 << 19) // CPR + 1
            a(f'v_mul_u32_u24 v7, {magic}, v6')
            a('v_lshrrev_b32 v7, 19, v7       ; row')
            a(f'v_mul_u32_u24 v20, {CPR}, v7')
            a('v_sub_u32 v20, v6, v20         ; c')
        a(f'v_mul_u32_u24 v{OLDS+r}, {RS}, v7')
        a(f'v_lshl_add_u32 v{OLDS+r}, v20, 4, v{OLDS+r}')
        a(f'v_add_u32 v{OLDS+r}, {TOFF}, v{OLDS+r}')
        outs = [(OGL, ldo)] + (extra or [])
        for (rb_, ld) in outs:
            a(f'v_mul_u32_u24 v{rb_+r}, {ld}, v7')
            a(f'v_lshl_add_u32 v{rb_+r}, v20, 4, v{rb_+r}')
        if 512 * (r + 1) > NCH:
            a(f'v_cmp_gt_u32 vcc, {NCH}, v6')
            a('v_mov_b32 v22, 0x7ffffff0')
            a('s_nop 0')
            for (rb_, ld) in outs:
                a(f'v_cndmask_b32 v{rb_+r}, v22, v{rb_+r}, vcc')
            a(f'v_mov_b32 v22, {TOFF}')
            a(f'v_cndmask_b32 v{OLDS+r}, v22, v{OLDS+r}, vcc')
    return NR

def gelu4(a, ac, T):
    rb2(a, ac, ac + 1, T)
    rb2(a, ac + 2, ac + 3, T + 1)
    for x in (0, 2):
        a(f'v_pk_mul_f32 v[{T+4+x}:{T+5+x}], v[{ac+x}:{ac+x+1}], v[{ac+x}:{ac+x+1}]')
    for x in (0, 2):
        a(f'v_pk_fma_f32 v[{T+4+x}:{T+5+x}], v[{T+4+x}:{T+5+x}], s[78:79], v[{T+2}:{T+3}]')
    for x in (0, 2):
        a(f'v_pk_mul_f32 v[{T+4+x}:{T+5+x}], v[{T+4+x}:{T+5+x}], v[{ac+x}:{ac+x+1}]')
    for x in range(4):
        a(f'v_exp_f32 v{T+4+x}, v{T+4+x}')
    a('s_nop 0')
    for x in (0, 2):
        a(f'v_pk_add_f32 v[{T+4+x}:{T+5+x}], v[{T+4+x}:{T+5+x}], 1.0 op_sel_hi:[1,0]')
    for x in range(4):
        a(f'v_rcp_f32 v{T+4+x}, v{T+4+x}')
    a('s_nop 0')
    for x in (0, 2):
        a(f'v_pk_mul_f32 v[{ac+x}:{ac+x+1}], v[{ac+x}:{ac+x+1}], v[{T+4+x}:{T+5+x}]')

def gelu_consts(a, T):
    c1 = -2.0 * 1.4426950408889634 * 0.7978845608028654
    a(f's_mov_b32 s78, {fhex(c1*0.044715)}')
    a(f's_mov_b32 s79, {fhex(c1*0.044715)}')
    a(f'v_mov_b32 v{T+2}, {fhex(c1)}')
    a(f'v_mov_b32 v{T+3}, {fhex(c1)}')

def dpp_rowsum(a, regs):
    for n in (8, 4, 2, 1):
        if len(regs) < 3: a('s_nop 1')
        for r in regs:
            a(f'v_add_f32_dpp v{r}, v{r}, v{r} row_ror:{n} row_mask:0xf bank_mask:0xf')

def sync_signal(a, cnt_sreg):
    a('s_waitcnt vmcnt(0)')
    a('s_barrier')
    L = a.newlabel('Lsg')
    a('s_cmp_lg_u32 s3, 0')
    a(f's_cbranch_scc1 {L}')
    a('v_mov_b32 v6, 0')
    a('v_mov_b32 v7, 1')
    a('s_mov_b64 s[88:89], exec')
    a('s_mov_b64 exec, 1')
    a(f'buffer_atomic_add v7, v6, s[84:87], s{cnt_sreg} offen {SC()}')
    a('s_mov_b64 exec, s[88:89]')
    a.label(L)

def sync_wait(a, cnt_sreg, n, pre=None, wave=0):
    L = a.newlabel('Lsw'); Lp = a.newlabel('Lsp')
    a(f's_cmp_lg_u32 s3, {wave}')
    a(f's_cbranch_scc1 {L}')
    a('v_mov_b32 v6, 0')
    a.label(Lp)
    a(f'buffer_load_dword v7, v6, s[84:87], s{cnt_sreg} offen sc1')
    a('s_waitcnt vmcnt(0)')
    a(f'v_cmp_gt_u32 vcc, {n}, v7')
    a(f's_cbranch_vccnz {Lp}')
    a.label(L)
    if pre: pre()
    a('s_barrier')

def phase_g1(a, layer, wait_cnt=None):
    srd_ws(a, 44, WINT, D * F * 2); srd_ws(a, 48, HH, SZ_SD)
    g = Gemm(a, 192, 64, 640, 4, 2, 1, 4, 1280, 1280, 44, 48)
    g.arow_split = (12, 768 - 96)
    a('s_mul_i32 s6, s4, 96')
    a('s_lshl_b32 s7, s5, 6')
    g.setup()
    split = wait_cnt is not None
    if split:
        g.bcache = 'sc1'
        sync_wait(a, wait_cnt, 8, pre=lambda: g.prologue('A'))
        stamp(a)
        g.prologue('B')
    else:
        g.prologue()
    g.zero_acc()
    T = g.FR; ACC = g.ACC; wm, wn = g.wm, g.wn
    TOFF = 65536; TOFF2 = 98304
    RS = 96 * 2 + 16; RS2 = 128 + 16
    OL1 = g.free; OG1 = OL1 + 2; OL2 = OG1 + 2; OG2 = OL2 + 2
    PB = (OG2 + 2 + 3) // 4 * 4
    CH = PB + 16
    srd_ws(a, 52, ZZ, S * F * 2)
    srd_ws(a, 60, Z2[layer], SZ_Z2)
    srd_ws(a, 56, ST2 + layer * 32 * 16384, 32 * 16384)
    NR1 = chunk_map(a, 64, 12, RS, TOFF, 3072, OL1, OG1)
    NR2 = chunk_map(a, 96, 8, RS2, TOFF2, LDT, OL2, OG2)
    a('s_mul_i32 s15, s7, 3072')
    a('s_lshl_b32 s11, s6, 1')
    a('s_add_u32 s15, s15, s11')
    a(f's_mul_i32 s72, s6, {LDT}')
    a('s_lshl_b32 s11, s7, 1')
    a('s_add_u32 s72, s72, s11')
    a('s_and_b32 s73, s13, 1')
    Lz2 = a.newlabel('Lz2'); Lj1 = a.newlabel('Lj1')
    a('s_cmp_lg_u32 s75, 0')
    a(f's_cbranch_scc1 {Lz2}')
    a(f's_mul_i32 s10, s14, {32*RS}')
    a('s_mul_i32 s11, s73, 96')
    a('s_add_u32 s10, s10, s11')
    a(f's_add_u32 s10, s10, {TOFF}')
    a(f'v_mul_u32_u24 v20, {RS}, v5')
    a('v_lshl_add_u32 v20, v3, 3, v20')
    a('v_add_u32 v20, s10, v20')
    g.mainloop(split_prologue=split)
    gelu_consts(a, T)
    a('s_nop 4')
    for (i, j) in g.tiles:
        ac = ACC + 4 * (i * wn + j)
        gelu4(a, ac, T)
        a(f'v_cvt_pk_bf16_f32 v{ac}, v{ac}, v{ac+1}')
        a(f'v_cvt_pk_bf16_f32 v{ac+1}, v{ac+2}, v{ac+3}')
    a(f's_branch {Lj1}')
    a.label(Lz2)
    a('s_setprio 2')
    a(f's_mul_i32 s10, s73, {48*RS2}')
    a('s_mul_i32 s11, s14, 64')
    a('s_add_u32 s10, s10, s11')
    a(f's_add_u32 s10, s10, {TOFF2}')
    a(f'v_mul_u32_u24 v20, {RS2}, v5')
    a('v_lshl_add_u32 v20, v3, 3, v20')
    a('v_add_u32 v20, s10, v20')
    g.mainloop(swap=True, split_prologue=split)
    stamp(a)
    gelu_consts(a, T)
    a('s_nop 4')
    for (i, j) in g.tiles:
        ac = ACC + 4 * (i * wn + j)
        gelu4(a, ac, T)
        rb2(a, ac, ac + 1, T)
        rb2(a, ac + 2, ac + 3, T + 1)
    SM = T + 8; M2 = T + 16
    for j in range(wn):
        for x in (0, 2):
            r = SM + 4 * j + x
            a(f'v_pk_add_f32 v[{r}:{r+1}], v[{ACC+4*j+x}:{ACC+4*j+x+1}], v[{ACC+4*(wn+j)+x}:{ACC+4*(wn+j)+x+1}]')
            a(f'v_pk_add_f32 v[{r}:{r+1}], v[{r}:{r+1}], v[{ACC+4*(2*wn+j)+x}:{ACC+4*(2*wn+j)+x+1}]')
    a('s_nop 1')
    dpp_rowsum(a, [SM + k for k in range(8)])
    for k in range(8):
        a(f'v_mul_f32 v{SM+k}, {fhex(1.0/48)}, v{SM+k}')
    for j in range(wn):
        for i in range(wm):
            ac = ACC + 4 * (i * wn + j)
            for x in (0, 2):
                a(f'v_pk_add_f32 v[{T+4+x}:{T+5+x}], v[{ac+x}:{ac+x+1}], v[{SM+4*j+x}:{SM+4*j+x+1}] neg_lo:[0,1] neg_hi:[0,1]')
            for x in (0, 2):
                r = M2 + 4 * j + x
                if i == 0: a(f'v_pk_mul_f32 v[{r}:{r+1}], v[{T+4+x}:{T+5+x}], v[{T+4+x}:{T+5+x}]')
                else: a(f'v_pk_fma_f32 v[{r}:{r+1}], v[{T+4+x}:{T+5+x}], v[{T+4+x}:{T+5+x}], v[{r}:{r+1}]')
    a('s_nop 1')
    dpp_rowsum(a, [M2 + k for k in range(8)])
    for j in range(wn):
        for x in range(4):
            a(f'v_mov_b32 v{PB+8*j+2*x}, v{SM+4*j+x}')
            a(f'v_mov_b32 v{PB+8*j+2*x+1}, v{M2+4*j+x}')
    a('s_lshl_b32 s10, s4, 1')
    a('s_add_u32 s10, s10, s73          ; part')
    a('s_lshl_b32 s10, s10, 9           ; *512')
    a('s_lshl_b32 s11, s5, 14           ; g*16384')
    a('s_add_u32 s10, s10, s11')
    a('s_lshl_b32 s11, s14, 8')
    a('s_add_u32 s10, s10, s11')
    a('v_lshlrev_b32 v6, 5, v3          ; q*32B')
    a('v_cmp_eq_u32 vcc, 0, v5')
    a('s_and_saveexec_b64 s[88:89], vcc')
    for j in range(wn):
        a(f'buffer_store_dwordx4 v[{PB+8*j}:{PB+8*j+3}], v6, s[56:59], s10 offen offset:{128*j} {SC()}')
        a(f'buffer_store_dwordx4 v[{PB+8*j+4}:{PB+8*j+7}], v6, s[56:59], s10 offen offset:{128*j+16} {SC()}')
    a('s_mov_b64 exec, s[88:89]')
    a.label(Lj1)
    cnt_reg(a, 92, 96 + 32 * layer)
    stamp(a)
    sync_signal(a, 92)
    stamp(a)
    Lj2 = a.newlabel('Lj2')
    a('s_cmp_lg_u32 s75, 0')
    a(f's_cbranch_scc1 {Lj2}')
    for (i, j) in g.tiles:
        ac = ACC + 4 * (i * wn + j)
        a(f'ds_write_b64 v20, v[{ac}:{ac+1}] offset:{16*j*RS+32*i}')
    a('s_waitcnt lgkmcnt(0)')
    a.label(Lj2)
    sync_wait(a, 92, 8)
    stamp(a)
    a('v_lshrrev_b32 v6, 4, v23')
    a('v_lshlrev_b32 v6, 3, v6')
    a('v_lshl_add_u32 v6, v5, 9, v6')
    a('s_lshl_b32 s11, s5, 14')
    G0 = PB
    a(f'buffer_load_dwordx2 v[{G0}:{G0+1}], v6, s[56:59], s11 offen sc1')
    a(f'buffer_load_dwordx2 v[{G0+2}:{G0+3}], v6, s[56:59], s11 offen offset:256 sc1')
    for r in range(NR1):
        a(f'ds_read_b128 v[{CH+4*r}:{CH+4*r+3}], v{OL1+r}')
    for r in range(NR1):
        a(f's_waitcnt lgkmcnt({NR1-1-r})')
        a(f'buffer_store_dwordx4 v[{CH+4*r}:{CH+4*r+3}], v{OG1+r}, s[52:55], s15 offen')
    a(f's_waitcnt vmcnt({NR1})')
    stamp(a)
    a(f'v_mov_b32 v{G0+4}, v{G0}')
    a(f'v_mov_b32 v{G0+5}, v{G0+2}')
    a('s_nop 1')
    dpp_rowsum(a, [G0 + 4, G0 + 5])
    a(f'v_mul_f32 v{G0+4}, {fhex(1.0/16)}, v{G0+4}')
    a(f'v_mul_f32 v{G0+5}, {fhex(1.0/16)}, v{G0+5}')
    a(f'v_sub_f32 v{G0}, v{G0}, v{G0+4}')
    a(f'v_sub_f32 v{G0+2}, v{G0+2}, v{G0+5}')
    a(f'v_mul_f32 v{G0}, v{G0}, v{G0}')
    a(f'v_mul_f32 v{G0+2}, v{G0+2}, v{G0+2}')
    a(f's_mov_b32 s10, {fhex(48.0)}')
    a(f'v_fma_f32 v{G0+1}, v{G0}, s10, v{G0+1}')
    a(f'v_fma_f32 v{G0+3}, v{G0+2}, s10, v{G0+3}')
    a('s_nop 1')
    dpp_rowsum(a, [G0 + 1, G0 + 3])
    a(f'v_mul_f32 v{G0+1}, {fhex(1.0/768)}, v{G0+1}')
    a(f'v_mul_f32 v{G0+3}, {fhex(1.0/768)}, v{G0+3}')
    rb2(a, G0 + 4, G0 + 5, T)
    rb2(a, G0 + 1, G0 + 3, T)
    a(f'v_add_f32 v{G0+1}, 0x3727c5ac, v{G0+1}')
    a(f'v_add_f32 v{G0+3}, 0x3727c5ac, v{G0+3}')
    rb2(a, G0 + 1, G0 + 3, T)
    a(f'v_sqrt_f32 v{G0+1}, v{G0+1}')
    a(f'v_sqrt_f32 v{G0+3}, v{G0+3}')
    a('s_nop 0')
    rb2(a, G0 + 1, G0 + 3, T)
    a(f'v_rcp_f32 v{G0+1}, v{G0+1}')
    a(f'v_rcp_f32 v{G0+3}, v{G0+3}')
    a(f'v_mov_b32 v{G0}, v{G0+4}')
    a(f'v_mov_b32 v{G0+2}, v{G0+5}')
    a('v_lshrrev_b32 v6, 4, v23')
    a('v_lshlrev_b32 v6, 3, v6')
    a(f'ds_write_b64 v6, v[{G0}:{G0+1}]')
    a(f'ds_write_b64 v6, v[{G0+2}:{G0+3}] offset:256')
    a('s_lshl_b32 s10, s14, 8')
    a('v_lshlrev_b32 v7, 5, v3')
    a('v_add_u32 v7, s10, v7            ; (wni*32 + 4q)*8')
    a('s_waitcnt lgkmcnt(0)')
    a('s_barrier')
    Lj3 = a.newlabel('Lj3')
    a('s_cmp_eq_u32 s75, 0')
    a(f's_cbranch_scc1 {Lj3}')
    for j in range(wn):
        a(f'ds_read_b128 v[{PB+8*j}:{PB+8*j+3}], v7 offset:{128*j}')
        a(f'ds_read_b128 v[{PB+8*j+4}:{PB+8*j+7}], v7 offset:{128*j+16}')
    a('s_waitcnt lgkmcnt(0)')
    for (i, j) in g.tiles:
        ac = ACC + 4 * (i * wn + j)
        for x in range(4):
            a(f'v_sub_f32 v{ac+x}, v{ac+x}, v{PB+8*j+2*x}')
        rb2(a, ac, ac + 1, T)
        rb2(a, ac + 2, ac + 3, T + 1)
        for x in range(4):
            a(f'v_mul_f32 v{ac+x}, v{ac+x}, v{PB+8*j+2*x+1}')
        a(f'v_cvt_pk_bf16_f32 v{ac}, v{ac}, v{ac+1}')
        a(f'v_cvt_pk_bf16_f32 v{ac+1}, v{ac+2}, v{ac+3}')
        a(f'ds_write_b64 v20, v[{ac}:{ac+1}] offset:{16*i*RS2+32*j}')
    a('s_waitcnt lgkmcnt(0)')
    a.label(Lj3)
    a('s_barrier')
    for r in range(NR2):
        a(f'ds_read_b128 v[{CH+4*r}:{CH+4*r+3}], v{OL2+r}')
    for r in range(NR2):
        a(f's_waitcnt lgkmcnt({NR2-1-r})')
        a(f'buffer_store_dwordx4 v[{CH+4*r}:{CH+4*r+3}], v{OG2+r}, s[60:63], s72 offen')
    a('s_setprio 0')
    return CH + 8, max(g.NS * g.STG, TOFF2 + 96 * RS2)

def ksplit_exchange(a, g, epi1):
    T = g.FR; ACC = g.ACC; wn = g.wn; T_ = g.T_
    a('v_lshlrev_b32 v6, 4, v0')
    a(f's_mul_i32 s10, s3, {T_*1024}')
    a('s_xor_b32 s11, s3, 4')
    a(f's_mul_i32 s11, s11, {T_*1024}')
    a('v_add_u32 v7, s11, v6')
    a('v_add_u32 v6, s10, v6')
    Lk1 = a.newlabel('Lk1'); Lkd = a.newlabel('Lkd')
    a('s_cmp_lg_u32 s75, 0')
    a(f's_cbranch_scc1 {Lk1}')
    for ksi in range(2):
        if ksi == 1: a.label(Lk1)
        send = g.keep[1 - ksi]; kp = g.keep[ksi]
        for (i, j) in send:
            ac = ACC + 4 * (i * wn + j)
            a(f'ds_write_b128 v6, v[{ac}:{ac+3}] offset:{1024*(i*wn+j)}')
        a('s_waitcnt lgkmcnt(0)')
        a('s_barrier')
        for n_, (i, j) in enumerate(kp):
            a(f'ds_read_b128 v[{T+8+4*n_}:{T+11+4*n_}], v7 offset:{1024*(i*wn+j)}')
        a('s_waitcnt lgkmcnt(0)')
        for n_, (i, j) in enumerate(kp):
            ac = ACC + 4 * (i * wn + j)
            for x in (0, 2):
                a(f'v_pk_add_f32 v[{ac+x}:{ac+x+1}], v[{ac+x}:{ac+x+1}], v[{T+8+4*n_+x}:{T+9+4*n_+x}]')
        epi1(kp)
        if ksi == 0: a(f's_branch {Lkd}')
    a.label(Lkd)

def trans_addr(a, g, RS, TOFF):
    a(f's_mul_i32 s10, s14, {g.wn*16*RS}')
    a(f's_mul_i32 s11, s13, {g.wm*16*2}')
    a('s_add_u32 s10, s10, s11')
    a(f's_add_u32 s10, s10, {TOFF}')
    a(f'v_mul_u32_u24 v20, {RS}, v5')
    a('v_lshl_add_u32 v20, v3, 3, v20')
    a('v_add_u32 v20, s10, v20')

def phase_g2(a, layer, sig_cnt):
    srd_ws(a, 44, Z2[layer], SZ_Z2); srd_ptr(a, 48, P_WSP, S * S * 2); srd_ws(a, 52, PP, S * FH * 2)
    srd_ws(a, 56, ZZ, S * F * 2); srd_ptr(a, 60, P_BSP, S * 2)
    g = Gemm(a, 96, 64, 2048, 2, 2, 2, 7, LDT, 4096, 44, 48)
    a('s_mul_i32 s6, s4, 96')
    a('s_lshl_b32 s7, s5, 6')
    g.setup()
    g.prologue()
    T = g.FR; ACC = g.ACC; wn = g.wn
    TOFF = 65536; RS = 208
    OLDS = g.free; OGL = OLDS + 2; OZ = OGL + 2
    ZR = (OZ + 2 + 3) // 4 * 4; BR = ZR + 8
    NR = chunk_map(a, 64, 12, RS, TOFF, 1536, OLDS, OGL, extra=[(OZ, 3072)])
    a('s_mul_i32 s15, s7, 1536')
    a('s_lshl_b32 s11, s6, 1')
    a('s_add_u32 s15, s15, s11')
    a('s_mul_i32 s72, s7, 3072')
    a('s_add_u32 s72, s72, s11')
    for r in range(NR):
        a(f'buffer_load_dwordx4 v[{ZR+4*r}:{ZR+4*r+3}], v{OZ+r}, s[56:59], s72 offen')
    a(f's_mul_i32 s10, s14, {wn*16}')
    a('s_add_u32 s10, s10, s7')
    a('s_lshl_b32 s73, s10, 1')
    a('v_lshlrev_b32 v22, 1, v5')
    for j in range(wn):
        a(f'buffer_load_ushort v{BR+j}, v22, s[60:63], s73 offen offset:{32*j}')
    trans_addr(a, g, RS, TOFF)
    g.zero_acc()
    g.mainloop(first_extra=NR + wn)
    stamp(a)
    for j in range(wn):
        a(f'v_lshlrev_b32 v{BR+j}, 16, v{BR+j}')
    a('s_barrier')
    a('s_nop 4')
    def epi1(tl):
        for (i, j) in tl:
            ac = ACC + 4 * (i * wn + j)
            rb2(a, ac, ac + 1, T)
            rb2(a, ac + 2, ac + 3, T + 1)
            for x in range(4):
                a(f'v_add_f32 v{ac+x}, v{ac+x}, v{BR+j}')
            a(f'v_cvt_pk_bf16_f32 v{ac}, v{ac}, v{ac+1}')
            a(f'v_cvt_pk_bf16_f32 v{ac+1}, v{ac+2}, v{ac+3}')
            a(f'ds_write_b64 v20, v[{ac}:{ac+1}] offset:{16*j*RS+32*i}')
    ksplit_exchange(a, g, epi1)
    a('s_waitcnt lgkmcnt(0)')
    a('s_barrier')
    for r in range(NR):
        a(f'ds_read_b128 v[{ACC+4*r}:{ACC+4*r+3}], v{OLDS+r}')
    for r in range(NR):
        a(f's_waitcnt lgkmcnt({NR-1-r})')
        for x in range(4):
            t = T + 4 * (x & 1)
            unpack(a, t, t + 1, ACC + 4 * r + x)
            unpack(a, t + 2, t + 3, ZR + 4 * r + x)
            a(f'v_pk_mul_f32 v[{t}:{t+1}], v[{t}:{t+1}], v[{t+2}:{t+3}]')
            a(f'v_cvt_pk_bf16_f32 v{ACC+4*r+x}, v{t}, v{t+1}')
        a(f'buffer_store_dwordx4 v[{ACC+4*r}:{ACC+4*r+3}], v{OGL+r}, s[52:55], s15 offen {SC()}')
    stamp(a)
    sync_signal(a, sig_cnt)
    stamp(a)
    return BR + wn, max(g.NS * g.STG, TOFF + 64 * RS)

def dpp8(a, regs):
    for ctl in ('quad_perm:[1,0,3,2]', 'quad_perm:[2,3,0,1]', 'row_half_mirror'):
        if len(regs) < 3: a('s_nop 1')
        for r in regs:
            a(f'v_add_f32_dpp v{r}, v{r}, v{r} {ctl} row_mask:0xf bank_mask:0xf')

def x_stats_exchange(a, X, e, W, M, R):
    s1, s2, t = W + 8, W + 9, W + 10
    a(f'v_add_f32 v{s1}, v{X}, v{X+1}')
    for i in range(2, 10):
        a(f'v_add_f32 v{s1}, v{s1}, v{X+i}')
    a('s_nop 1')
    dpp8(a, [s1])
    a(f'v_mul_f32 v{s1}, {fhex(1.0/80)}, v{s1}')
    for i in range(10):
        a(f'v_sub_f32 v{t}, v{X+i}, v{s1}')
        if i == 0: a(f'v_mul_f32 v{s2}, v{t}, v{t}')
        else: a(f'v_fmac_f32 v{s2}, v{t}, v{t}')
    a('s_nop 1')
    dpp8(a, [s2])
    a(f'v_mov_b32 v{W}, v{s1}')
    a(f'v_mov_b32 v{W+1}, 1')
    a(f'v_mov_b32 v{W+2}, v{s2}')
    a(f'v_mov_b32 v{W+3}, 1')
    a(f's_lshl_b32 s11, s5, 13')
    a(f's_add_u32 s11, s11, {e*32*8192}')
    a('v_cmp_eq_u32 vcc, 0, v4')
    a('s_and_saveexec_b64 s[88:89], vcc')
    a(f'buffer_store_dwordx4 v[{W}:{W+3}], v22, s[56:59], s11 offen sc1')
    a('s_mov_b64 exec, s[88:89]')
    Lp = a.newlabel('Lpoll')
    a.label(Lp)
    a('s_sleep 1')
    a(f'buffer_load_dwordx4 v[{W+4}:{W+7}], v21, s[56:59], s11 offen sc1')
    a('s_waitcnt vmcnt(0)')
    a(f'v_and_b32 v{t}, v{W+5}, v{W+7}')
    a(f'v_cmp_ne_u32 vcc, 1, v{t}')
    a(f's_cbranch_vccnz {Lp}')
    a(f'v_mov_b32 v{s1}, v{W+4}')
    a('s_nop 1')
    dpp8(a, [s1])
    a(f'v_mul_f32 v{M}, 0.125, v{s1}')
    a(f'v_sub_f32 v{t}, v{W+4}, v{M}')
    a(f'v_mul_f32 v{t}, v{t}, v{t}')
    a(f's_mov_b32 s10, {fhex(80.0)}')
    a(f'v_fma_f32 v{s2}, v{t}, s10, v{W+6}')
    a('s_nop 1')
    dpp8(a, [s2])
    a(f'v_mul_f32 v{s2}, {fhex(1.0/640)}, v{s2}')
    rb2(a, M, s2, t)
    a(f'v_add_f32 v{s2}, 0x3727c5ac, v{s2}')
    a(f'v_cvt_pk_bf16_f32 v{t}, v{s2}, v{s2}')
    a(f'v_lshlrev_b32 v{s2}, 16, v{t}')
    a(f'v_sqrt_f32 v{s2}, v{s2}')
    a('s_nop 0')
    a(f'v_cvt_pk_bf16_f32 v{t}, v{s2}, v{s2}')
    a(f'v_lshlrev_b32 v{s2}, 16, v{t}')
    a(f'v_rcp_f32 v{R}, v{s2}')
    a('s_nop 0')

def norm10(a, X, N, M, R, t):
    for i in range(10):
        a(f'v_sub_f32 v{N+i}, v{X+i}, v{M}')
    for i in range(0, 10, 2):
        rb2(a, N + i, N + i + 1, t + (i // 2) % 2)
    for i in range(10):
        a(f'v_mul_f32 v{N+i}, v{N+i}, v{R}')
    for i in range(0, 10, 2):
        rb2(a, N + i, N + i + 1, t + (i // 2) % 2)

def phase_g3(a, final, wait_cnt, sig_cnt, mid_cnt=None):
    srd_ws(a, 44, WOUTT, FH * D * 2); srd_ws(a, 48, PP, S * FH * 2)
    g = Gemm(a, 80, 64, 768, 1, 4, 2, 8, 1536, 1536, 44, 48)
    g.bcache = 'sc1'
    a('s_mul_i32 s6, s4, 80')
    a('s_lshl_b32 s7, s5, 6')
    g.setup()
    T = g.FR; ACC = g.ACC; wn = g.wn
    TOFF = 65536; RS = 176
    XO = g.free
    LO = XO + 1
    XR = (LO + 1 + 3) // 4 * 4
    YR = XR + 8
    X = YR + 8; N = X + 10; W = (N + 10 + 3) // 4 * 4; M = W + 12; R = M + 1
    top = R + 1
    srd_ws(a, 60, X1, SZ_SD)
    if final: srd_ptr(a, 52, P_OUT, SZ_SD)
    a('v_lshrrev_b32 v6, 3, v23       ; row')
    a(f'v_mul_u32_u24 v{XO}, 1280, v6')
    a(f'v_mul_u32_u24 v7, 20, v4')
    a(f'v_add_u32 v{XO}, v{XO}, v7')
    a(f'v_mul_u32_u24 v{LO}, {RS}, v6')
    a(f'v_add_u32 v{LO}, v{LO}, v7')
    a(f'v_add_u32 v{LO}, {TOFF}, v{LO}')
    a('s_mul_i32 s15, s7, 1280')
    a('s_lshl_b32 s11, s6, 1')
    a('s_add_u32 s15, s15, s11')
    a(f'buffer_load_dwordx4 v[{XR}:{XR+3}], v{XO}, s[60:63], s15 offen')
    a(f'buffer_load_dword v{XR+4}, v{XO}, s[60:63], s15 offen offset:16')
    trans_addr(a, g, RS, TOFF)
    g.zero_acc()
    sync_wait(a, wait_cnt, 8, pre=lambda: g.prologue('A'))
    stamp(a)
    g.prologue('B')
    g.mainloop(split_prologue=True)
    stamp(a)
    a('s_barrier')
    a('s_nop 4')
    def epi1(tl):
        for (i, j) in tl:
            ac = ACC + 4 * (i * wn + j)
            a(f'v_cvt_pk_bf16_f32 v{ac}, v{ac}, v{ac+1}')
            a(f'v_cvt_pk_bf16_f32 v{ac+1}, v{ac+2}, v{ac+3}')
            a(f'ds_write_b64 v20, v[{ac}:{ac+1}] offset:{16*j*RS+32*i}')
    ksplit_exchange(a, g, epi1)
    a('s_waitcnt lgkmcnt(0)')
    a('s_barrier')
    O = ACC
    a(f'ds_read2_b32 v[{O}:{O+1}], v{LO} offset0:0 offset1:1')
    a(f'ds_read2_b32 v[{O+2}:{O+3}], v{LO} offset0:2 offset1:3')
    a(f'ds_read_b32 v{O+4}, v{LO} offset:16')
    a('s_waitcnt lgkmcnt(0)')
    for jx in range(5):
        unpack(a, X + 2 * jx, X + 2 * jx + 1, XR + jx)
        unpack(a, N + 2 * jx, N + 2 * jx + 1, O + jx)
    for i in range(0, 10, 2):
        a(f'v_pk_add_f32 v[{X+i}:{X+i+1}], v[{X+i}:{X+i+1}], v[{N+i}:{N+i+1}]')
    for jx in range(5):
        a(f'v_cvt_pk_bf16_f32 v{XR+jx}, v{X+2*jx}, v{X+2*jx+1}')
    if final:
        a(f'buffer_store_dwordx4 v[{XR}:{XR+3}], v{XO}, s[52:55], s15 offen')
        a(f'buffer_store_dword v{XR+4}, v{XO}, s[52:55], s15 offen offset:16')
        return top, max(g.NS * g.STG, TOFF + 64 * RS)
    srd_ws(a, 52, X2, SZ_SD)
    a(f'buffer_store_dwordx4 v[{XR}:{XR+3}], v{XO}, s[52:55], s15 offen {SC()}')
    a(f'buffer_store_dword v{XR+4}, v{XO}, s[52:55], s15 offen offset:16 {SC()}')
    srd_ws(a, 56, YY, SZ_SD)
    a('s_lshl_b32 s10, s4, 3')
    a('s_add_u32 s10, s10, s7')
    a('s_add_u32 s10, s10, s3')
    a('s_mul_i32 s15, s10, 1280')
    a('v_lshlrev_b32 v21, 2, v0')
    ER = 24; EY = 30
    for jx in range(5):
        a(f'buffer_load_dword v{EY+jx}, v21, s[56:59], s15 offen offset:{256*jx}')
    stamp(a)
    sync_signal(a, mid_cnt)
    sync_wait(a, mid_cnt, 8)
    stamp(a)
    for jx in range(5):
        a(f'buffer_load_dword v{ER+jx}, v21, s[52:55], s15 offen offset:{256*jx} sc1')
    a('s_waitcnt vmcnt(0)')
    stamp(a)
    XA = 48; NA = 60; TT = 72
    for jx in range(5):
        unpack(a, XA + 2 * jx, XA + 2 * jx + 1, ER + jx)
    ln_row1(a, XA, 10, 640, TT, NA, 64)
    for jx in range(5):
        unpack(a, TT + 2 * jx, TT + 2 * jx + 1, EY + jx)
    for i in range(0, 10, 2):
        a(f'v_pk_mul_f32 v[{NA+i}:{NA+i+1}], v[{NA+i}:{NA+i+1}], v[{TT+i}:{TT+i+1}]')
    for jx in range(5):
        rb2(a, NA + 2 * jx, NA + 2 * jx + 1, TT + 10 + (jx & 1))
    for i in range(0, 10, 2):
        a(f'v_pk_add_f32 v[{XA+i}:{XA+i+1}], v[{XA+i}:{XA+i+1}], v[{NA+i}:{NA+i+1}]')
    for jx in range(5):
        a(f'v_cvt_pk_bf16_f32 v{ER+jx}, v{XA+2*jx}, v{XA+2*jx+1}')
        unpack(a, XA + 2 * jx, XA + 2 * jx + 1, ER + jx)
        a(f'buffer_store_dword v{ER+jx}, v21, s[60:63], s15 offen offset:{256*jx}')
    ln_row1(a, XA, 10, 640, TT, NA, 64)
    srd_ws(a, 52, HH, SZ_SD)
    for jx in range(5):
        a(f'v_cvt_pk_bf16_f32 v{EY+jx}, v{NA+2*jx}, v{NA+2*jx+1}')
        a(f'buffer_store_dword v{EY+jx}, v21, s[52:55], s15 offen offset:{256*jx} {SC()}')
    stamp(a)
    sync_signal(a, sig_cnt)
    stamp(a)
    return max(top, 96), max(g.NS * g.STG, TOFF + 64 * RS)

def cnt_reg(a, sreg, base):
    a(f's_add_u32 s{sreg}, s5, {base}')
    a(f's_lshl_b32 s{sreg}, s{sreg}, 7')

def kernel_wrap(a, name, body):
    a.begin_kernel(name)
    Lend = a.newlabel('Lend')
    a('s_cmp_ge_u32 s2, 256')
    a(f's_cbranch_scc1 {Lend}')
    stamp_reset(); stamp(a)
    load_ptrs(a)
    common_prologue(a)
    a('s_waitcnt lgkmcnt(0)')
    srd_ws(a, 84, CNT, NCNT * 128)
    stamp(a)
    top, lds = body()
    if gen.STAMP:
        stamp(a)
        a('s_waitcnt vmcnt(0)')
        stamp(a)
        stamp_flush(a, 37)
    a.label(Lend)
    a.end_kernel(name, 256 if gen.STAMP else top, 102)
    return (name, 256, 512, lds)

def gen_g1f(a, layer):
    return kernel_wrap(a, f'g1f{layer}_kernel', lambda: phase_g1(a, layer))

def gen_mid(a):
    def body():
        cnt_reg(a, 90, 0); cnt_reg(a, 91, 32); cnt_reg(a, 93, 160)
        t1, l1 = phase_g2(a, 0, 90)
        t2, l2 = phase_g3(a, False, 90, 91, 93)
        t3, l3 = phase_g1(a, 1, 91)
        return max(t1, t2, t3), max(l1, l2, l3)
    return kernel_wrap(a, 'mid_kernel', body)

def gen_last(a):
    def body():
        cnt_reg(a, 90, 64)
        t1, l1 = phase_g2(a, 1, 90)
        t2, l2 = phase_g3(a, True, 90, None)
        return max(t1, t2), max(l1, l2)
    return kernel_wrap(a, 'last_kernel', body)

def main():
    global FAST
    if 'stamp' in sys.argv[2:]: gen.STAMP = True
    if 'fast' in sys.argv[2:]: FAST = True
    a = Asm()
    prep = gen_prep(a, zero=(CNT, ZERO_BYTES))
    conv = gen_conv(a)
    e1 = gen_e(a, True)
    g1a = gen_g1f(a, 0)
    mid = gen_mid(a)
    last = gen_last(a)
    launches = [prep, conv, e1, g1a, mid, last]
    hdr = open('interleave_layers__ssm_conv_h3__mixer_gmlp__prompt.s.ref').read().split('; Override launch')[0]
    txt = a.text(launches, hdr)
    out = sys.argv[1] if len(sys.argv) > 1 else 'interleave_layers__ssm_conv_h3__mixer_gmlp__prompt.s'
    open(out, 'w').write(txt)
    print('wrote', out, len(txt), 'bytes')

if __name__ == '__main__':
    main()
```

```python
import sys
sys.path.insert(0, 'dev')
from asmlib import *
import gen
from gen import *
import gen2
from gen2 import CNT, NCNT, ST2, ZERO_BYTES, Z2, chunk_map, gelu4, gelu_consts, dpp_rowsum, sync_signal, sync_wait, \
    common_prologue, cnt_reg, kernel_wrap, SC

class Gemm:
    def __init__(self, a, BM, BN, K, WM, WN, NS, ldA, ldB, srdA, srdB):
        self.a = a; self.BM = BM; self.BN = BN; self.K = K; self.WM = WM; self.WN = WN; self.NS = NS
        self.ldA = ldA; self.ldB = ldB; self.srdA = srdA; self.srdB = srdB
        assert WM * WN == 4
        self.wm = BM // WM // 16; self.wn = BN // WN // 16
        self.nst = K // 64
        self.STG = (BM + BN) * 128
        ngA = BM // 8; ngB = BN // 8
        self.slots = []
        for g0 in range(0, ngA, 4): self.slots.append(('A', g0, min(4, ngA - g0)))
        for g0 in range(0, ngB, 4): self.slots.append(('B', g0, min(4, ngB - g0)))
        self.npw = sum(1 for s_ in self.slots if s_[2] == 4)
        self.nB = sum(1 for s_ in self.slots if s_[2] == 4 and s_[0] == 'B')
        self.VS = 24; self.SS = 64
        assert len(self.slots) <= 8
        self.nwin = (NS * self.STG + 65535) // 65536
        self.RA = 8; self.RB = self.RA + 2 * self.nwin
        self.FR = 40
        self.nfr = self.wm + self.wn
        self.ACC = self.FR + 4 * self.nfr * 4
        self.T_ = self.wm * self.wn
        self.tiles = [(i, j) for i in range(self.wm) for j in range(self.wn)]
        self.free = self.ACC + self.T_ * 4
        self.bcache = ''
        self.arow_split = None
        self.a_tile_off = None
        self.a_wave_stride = self.wm * 16 * 128
    def setup(self):
        a = self.a
        a(f's_mul_i32 s8, s6, {self.ldA}         ; A soffset')
        a(f's_mul_i32 s9, s7, {self.ldB}         ; B soffset')
        a('s_and_b32 s74, s3, 3')
        for i, (op, g0, nw) in enumerate(self.slots):
            ld = self.ldA if op == 'A' else self.ldB
            a(f's_add_u32 s10, s74, {g0}')
            a('s_lshl_b32 s11, s10, 2')
            a('v_add_u32 v6, s11, v3')
            a('v_and_b32 v6, 7, v6')
            a('v_xor_b32 v6, v6, v4')
            a('s_lshl_b32 s11, s10, 3')
            if op == 'A' and self.arow_split:
                gs, add = self.arow_split
                a(f's_cmp_ge_u32 s10, {gs}')
                a(f's_cselect_b32 s12, {add}, 0')
                a('s_add_u32 s11, s11, s12')
            a('v_add_u32 v7, s11, v2          ; row')
            a(f's_mov_b32 s12, {ld}')
            a('v_mul_lo_u32 v7, v7, s12')
            a(f'v_lshl_add_u32 v{self.VS+i}, v6, 4, v7')
            a(f's_lshl_b32 s{self.SS+i}, s10, 10')
            if op == 'B': a(f's_add_u32 s{self.SS+i}, s{self.SS+i}, {self.BM*128}')
        if self.WN == 4:   a('s_mov_b32 s13, 0'); a('s_mov_b32 s14, s74')
        elif self.WN == 2: a('s_lshr_b32 s13, s74, 1'); a('s_and_b32 s14, s74, 1')
        else:              a('s_mov_b32 s13, s74'); a('s_mov_b32 s14, 0')
        a('v_lshrrev_b32 v6, 1, v5')
        a('v_xor_b32 v6, v6, v3')
        a('v_lshlrev_b32 v6, 4, v6')
        a('v_lshl_add_u32 v6, v5, 7, v6')
        a('v_xor_b32 v7, 64, v6           ; ks=1')
        a(f's_mul_i32 s10, s13, {self.a_wave_stride}')
        a(f's_mul_i32 s11, s14, {self.wn*16*128}')
        a(f's_add_u32 s11, s11, {self.BM*128}')
        for w in range(self.nwin):
            for ks in range(2):
                a(f'v_add_u32 v{self.RA+2*w+ks}, s10, v{6+ks}')
                a(f'v_add_u32 v{self.RB+2*w+ks}, s11, v{6+ks}')
                if w:
                    a(f'v_add_u32 v{self.RA+2*w+ks}, {65536*w}, v{self.RA+2*w+ks}')
                    a(f'v_add_u32 v{self.RB+2*w+ks}, {65536*w}, v{self.RB+2*w+ks}')
    def issue(self, st, parts='AB'):
        a = self.a
        buf = (st % self.NS) * self.STG
        for i, (op, g0, nw) in enumerate(self.slots):
            if op not in parts: continue
            Ls = None
            if nw < 4:
                Ls = a.newlabel('Lsk')
                a(f's_cmp_ge_u32 s74, {nw}')
                a(f's_cbranch_scc1 {Ls}')
            a(f's_add_u32 m0, s{self.SS+i}, {buf}')
            a('s_nop 0')
            if op == 'A': a(f'buffer_load_dwordx4 v{self.VS+i}, s[{self.srdA}:{self.srdA+3}], s8 offen lds')
            else:         a(f'buffer_load_dwordx4 v{self.VS+i}, s[{self.srdB}:{self.srdB+3}], s9 offen {self.bcache} lds')
            if Ls: a.label(Ls)
        if 'A' in parts: a('s_add_u32 s8, s8, 128')
        if 'B' in parts: a('s_add_u32 s9, s9, 128')
    def prologue(self, parts='AB'):
        a = self.a
        L = a.newlabel('Lpr')
        a('s_cmp_eq_u32 s75, 0')
        a(f's_cbranch_scc1 {L}')
        for st in range(min(self.NS - 1, self.nst)): self.issue(st, parts)
        a.label(L)
    def run(self, swap=(), split_prologue=False, extra_young=0):
        a = self.a; NS = self.NS; nst = self.nst; npw = self.npw
        wm, wn, nfr, FR, ACC = self.wm, self.wn, self.nfr, self.FR, self.ACC
        Lld = a.newlabel('Lld'); Ljn = a.newlabel('Ljn')
        a('s_cmp_lg_u32 s75, 0')
        a(f's_cbranch_scc1 {Lld}')
        for i in range(self.T_ * 4): a(f'v_mov_b32 v{ACC+i}, 0')
        FS = 2 * nfr * 4
        def reads(st):
            buf = (st % NS) * self.STG
            f0 = FR + (st & 1) * FS
            for ks in range(2):
                for i in range(wm):
                    off = buf + (self.a_tile_off[i] if self.a_tile_off else i * 2048); w = off >> 16
                    a(f'ds_read_b128 v[{f0+(ks*nfr+i)*4}:{f0+(ks*nfr+i)*4+3}], v{self.RA+2*w+ks} offset:{off&65535}')
                for j in range(wn):
                    off = buf + j * 2048; w = off >> 16
                    a(f'ds_read_b128 v[{f0+(ks*nfr+wm+j)*4}:{f0+(ks*nfr+wm+j)*4+3}], v{self.RB+2*w+ks} offset:{off&65535}')
        def mfmas(st):
            f0 = FR + (st & 1) * FS
            for ks in range(2):
                for i in range(wm):
                    for j in range(wn):
                        ac = ACC + 4 * (i * wn + j)
                        fa = f0 + (ks * nfr + i) * 4; fb = f0 + (ks * nfr + wm + j) * 4
                        if i in swap: fa, fb = fb, fa
                        a(f'v_mfma_f32_16x16x32_bf16 v[{ac}:{ac+3}], v[{fa}:{fa+3}], v[{fb}:{fb+3}], v[{ac}:{ac+3}]')
        for st in range(nst):
            a('s_barrier')
            reads(st)
            if st: mfmas(st - 1)
            a('s_waitcnt lgkmcnt(0)')
        mfmas(nst - 1)
        a(f's_branch {Ljn}')
        a.label(Lld)
        for st in range(nst):
            later = min(NS - 2, nst - 1 - st)
            npro = min(NS - 1, nst)
            if split_prologue and st < npro:
                cnt = (npro - 1 - st) * self.nB + max(0, min(st, nst - npro)) * npw
            else:
                cnt = later * npw + (extra_young if st == 0 else 0)
            a(f's_waitcnt vmcnt({cnt})')
            a('s_barrier')
            if st + NS - 1 < nst: self.issue(st + NS - 1)
        a.label(Ljn)

def l2_prefetch(a, build_srd, soff_code, ninstr):
    L = a.newlabel('Lpf')
    a('s_cmp_eq_u32 s75, 0')
    a(f's_cbranch_scc1 {L}')
    build_srd()
    soff_code()
    a('s_and_b32 s11, s3, 3')
    a(f's_mul_i32 s11, s11, {ninstr*8192}')
    a('s_add_u32 s10, s10, s11')
    a('v_lshlrev_b32 v6, 7, v0')
    for i in range(ninstr):
        a(f'buffer_load_dword v19, v6, s[80:83], s10 offen')
        if i + 1 < ninstr: a('s_add_u32 s10, s10, 8192')
    a.label(L)

PF = False
G2LD = None
def pf_wsp(a):
    if not PF: return
    l2_prefetch(a, lambda: srd_ptr(a, 80, P_WSP, S * S * 2),
                lambda: (a('s_lshl_b32 s10, s5, 18'), a('s_lshl_b32 s11, s4, 15'), a('s_add_u32 s10, s10, s11')), 1)
def pf_wout(a):
    if not PF: return
    l2_prefetch(a, lambda: srd_ws(a, 80, WOUTT, FH * D * 2),
                lambda: (a('s_and_b32 s10, s5, 3'), a('s_lshl_b32 s10, s10, 3'), a('s_add_u32 s10, s10, s4'), a('s_lshl_b32 s10, s10, 15')), 1)
def pf_win(a):
    if not PF: return
    l2_prefetch(a, lambda: srd_ws(a, 80, WINT, D * F * 2),
                lambda: (a('s_and_b32 s10, s5, 3'), a('s_lshl_b32 s10, s10, 3'), a('s_add_u32 s10, s10, s4'), a('s_lshl_b32 s10, s10, 16')), 2)

def rb_batch(a, regs, tmp):
    for n, r in enumerate(regs): a(f'v_cvt_pk_bf16_f32 v{tmp+n}, v{r}, v{r+1}')
    for n, r in enumerate(regs):
        a(f'v_lshlrev_b32 v{r}, 16, v{tmp+n}')
        a(f'v_and_b32 v{r+1}, 0xffff0000, v{tmp+n}')

def gelu_batch(a, accs, W, C):
    pairs = [ac + x for ac in accs for x in (0, 2)]
    rb_batch(a, pairs, W)
    wp = [W + 2 * n for n in range(len(pairs))]
    for p, w in zip(pairs, wp): a(f'v_pk_mul_f32 v[{w}:{w+1}], v[{p}:{p+1}], v[{p}:{p+1}]')
    for p, w in zip(pairs, wp): a(f'v_pk_fma_f32 v[{w}:{w+1}], v[{w}:{w+1}], s[78:79], v[{C}:{C+1}]')
    for p, w in zip(pairs, wp): a(f'v_pk_mul_f32 v[{w}:{w+1}], v[{w}:{w+1}], v[{p}:{p+1}]')
    for w in wp:
        a(f'v_exp_f32 v{w}, v{w}'); a(f'v_exp_f32 v{w+1}, v{w+1}')
    a('s_nop 0')
    for w in wp: a(f'v_pk_add_f32 v[{w}:{w+1}], v[{w}:{w+1}], 1.0 op_sel_hi:[1,0]')
    for w in wp:
        a(f'v_rcp_f32 v{w}, v{w}'); a(f'v_rcp_f32 v{w+1}, v{w+1}')
    a('s_nop 0')
    for p, w in zip(pairs, wp): a(f'v_pk_mul_f32 v[{p}:{p+1}], v[{p}:{p+1}], v[{w}:{w+1}]')

def only_compute(a):
    L = a.newlabel('Loc')
    a('s_cmp_lg_u32 s75, 0')
    a(f's_cbranch_scc1 {L}')
    return L

def phase_g1(a, layer, wait_cnt=None):
    srd_ws(a, 44, WINT, D * F * 2); srd_ws(a, 48, HH, SZ_SD)
    g = Gemm(a, 192, 64, 640, 2, 2, 4, 1280, 1280, 44, 48)
    g.arow_split = (12, 768 - 96)
    g.a_tile_off = [0, 2048, 4096, 96 * 128, 96 * 128 + 2048, 96 * 128 + 4096]
    g.a_wave_stride = 48 * 128
    a('s_mul_i32 s6, s4, 96')
    a('s_lshl_b32 s7, s5, 6')
    g.setup()
    split = wait_cnt is not None
    if split:
        g.bcache = 'sc1'
        sync_wait(a, wait_cnt, 8, pre=lambda: g.prologue('A'))
        stamp(a)
        g.prologue('B')
    else:
        g.prologue()
    T = g.FR; ACC = g.ACC; wn = g.wn
    TOFF = 65536; TOFF2 = 98304
    RS = 96 * 2 + 16; RS2 = 128 + 16
    OL1 = g.free; OG1 = OL1 + 2; OL2 = OG1 + 2; OG2 = OL2 + 2
    PB = (OG2 + 2 + 3) // 4 * 4
    CH = PB + 16
    srd_ws(a, 52, ZZ, S * F * 2)
    srd_ws(a, 60, Z2[layer], SZ_Z2)
    srd_ws(a, 56, ST2 + layer * 32 * 16384, 32 * 16384)
    NR1 = chunk_map(a, 64, 12, RS, TOFF, 3072, OL1, OG1)
    NR2 = chunk_map(a, 96, 8, RS2, TOFF2, LDT, OL2, OG2)
    a('s_mul_i32 s15, s7, 3072')
    a('s_lshl_b32 s11, s6, 1')
    a('s_add_u32 s15, s15, s11')
    a(f's_mul_i32 s72, s6, {LDT}')
    a('s_lshl_b32 s11, s7, 1')
    a('s_add_u32 s72, s72, s11')
    a(f's_mul_i32 s10, s14, {32*RS}')
    a('s_mul_i32 s11, s13, 96')
    a('s_add_u32 s10, s10, s11')
    a(f's_add_u32 s10, s10, {TOFF}')
    a(f'v_mul_u32_u24 v20, {RS}, v5')
    a('v_lshl_add_u32 v20, v3, 3, v20')
    a('v_add_u32 v20, s10, v20')
    a(f's_mul_i32 s10, s13, {48*RS2}')
    a('s_mul_i32 s11, s14, 64')
    a('s_add_u32 s10, s10, s11')
    a(f's_add_u32 s10, s10, {TOFF2}')
    a(f'v_mul_u32_u24 v21, {RS2}, v5')
    a('v_lshl_add_u32 v21, v3, 3, v21')
    a('v_add_u32 v21, s10, v21')
    g.run(swap=(3, 4, 5), split_prologue=split)
    stamp(a)
    Z2A = ACC + 4 * 3 * wn
    def zacc(i, j): return Z2A + 4 * (i * wn + j)
    L1 = only_compute(a)
    gelu_consts(a, T)
    a('s_nop 4')
    WK = T + 32
    zt = [zacc(i, j) for i in range(3) for j in range(wn)]
    gelu_batch(a, zt, WK, T + 2)
    rb_batch(a, [ac + x for ac in zt for x in (0, 2)], WK)
    SM = T + 8; M2 = T + 16
    for j in range(wn):
        for x in (0, 2):
            r = SM + 4 * j + x
            a(f'v_pk_add_f32 v[{r}:{r+1}], v[{zacc(0,j)+x}:{zacc(0,j)+x+1}], v[{zacc(1,j)+x}:{zacc(1,j)+x+1}]')
            a(f'v_pk_add_f32 v[{r}:{r+1}], v[{r}:{r+1}], v[{zacc(2,j)+x}:{zacc(2,j)+x+1}]')
    a('s_nop 1')
    dpp_rowsum(a, [SM + k for k in range(8)])
    for k in range(8):
        a(f'v_mul_f32 v{SM+k}, {fhex(1.0/48)}, v{SM+k}')
    for i in range(3):
        for j in range(wn):
            for x in (0, 2):
                w = WK + 8 * i + 4 * j + x
                a(f'v_pk_add_f32 v[{w}:{w+1}], v[{zacc(i,j)+x}:{zacc(i,j)+x+1}], v[{SM+4*j+x}:{SM+4*j+x+1}] neg_lo:[0,1] neg_hi:[0,1]')
    for i in range(3):
        for j in range(wn):
            for x in (0, 2):
                w = WK + 8 * i + 4 * j + x
                r = M2 + 4 * j + x
                if i == 0: a(f'v_pk_mul_f32 v[{r}:{r+1}], v[{w}:{w+1}], v[{w}:{w+1}]')
                else: a(f'v_pk_fma_f32 v[{r}:{r+1}], v[{w}:{w+1}], v[{w}:{w+1}], v[{r}:{r+1}]')
    a('s_nop 1')
    dpp_rowsum(a, [M2 + k for k in range(8)])
    for j in range(wn):
        for x in range(4):
            a(f'v_mov_b32 v{PB+8*j+2*x}, v{SM+4*j+x}')
            a(f'v_mov_b32 v{PB+8*j+2*x+1}, v{M2+4*j+x}')
    a('s_lshl_b32 s10, s4, 1')
    a('s_add_u32 s10, s10, s13          ; part')
    a('s_lshl_b32 s10, s10, 9           ; *512')
    a('s_lshl_b32 s11, s5, 14           ; g*16384')
    a('s_add_u32 s10, s10, s11')
    a('s_lshl_b32 s11, s14, 8')
    a('s_add_u32 s10, s10, s11')
    a('v_lshlrev_b32 v6, 5, v3          ; q*32B')
    a('v_cmp_eq_u32 vcc, 0, v5')
    a('s_and_saveexec_b64 s[88:89], vcc')
    for j in range(wn):
        a(f'buffer_store_dwordx4 v[{PB+8*j}:{PB+8*j+3}], v6, s[56:59], s10 offen offset:{128*j} {SC()}')
        a(f'buffer_store_dwordx4 v[{PB+8*j+4}:{PB+8*j+7}], v6, s[56:59], s10 offen offset:{128*j+16} {SC()}')
    a('s_mov_b64 exec, s[88:89]')
    a.label(L1)
    cnt_reg(a, 92, 96 + 32 * layer)
    stamp(a)
    if gen.STAMP:
        a('s_waitcnt vmcnt(0)')
        stamp(a)
    sync_signal(a, 92)
    stamp(a)
    L2 = only_compute(a)
    z1t = [ACC + 4 * (i * wn + j) for i in range(3) for j in range(wn)]
    gelu_batch(a, z1t, WK, T + 2)
    for i in range(3):
        for j in range(wn):
            ac = ACC + 4 * (i * wn + j)
            a(f'v_cvt_pk_bf16_f32 v{ac}, v{ac}, v{ac+1}')
            a(f'v_cvt_pk_bf16_f32 v{ac+1}, v{ac+2}, v{ac+3}')
    for i in range(3):
        for j in range(wn):
            ac = ACC + 4 * (i * wn + j)
            a(f'ds_write_b64 v20, v[{ac}:{ac+1}] offset:{16*j*RS+32*i}')
    a('s_waitcnt lgkmcnt(0)')
    a.label(L2)
    sync_wait(a, 92, 8, wave=4)
    stamp(a)
    a('v_lshrrev_b32 v6, 4, v23')
    a('v_lshlrev_b32 v6, 3, v6')
    a('v_lshl_add_u32 v6, v5, 9, v6')
    a('s_lshl_b32 s11, s5, 14')
    G0 = PB
    a(f'buffer_load_dwordx2 v[{G0}:{G0+1}], v6, s[56:59], s11 offen sc1')
    a(f'buffer_load_dwordx2 v[{G0+2}:{G0+3}], v6, s[56:59], s11 offen offset:256 sc1')
    for r in range(NR1):
        a(f'ds_read_b128 v[{CH+4*r}:{CH+4*r+3}], v{OL1+r}')
    for r in range(NR1):
        a(f's_waitcnt lgkmcnt({NR1-1-r})')
        a(f'buffer_store_dwordx4 v[{CH+4*r}:{CH+4*r+3}], v{OG1+r}, s[52:55], s15 offen')
    a(f's_waitcnt vmcnt({NR1})')
    stamp(a)
    a(f'v_mov_b32 v{G0+4}, v{G0}')
    a(f'v_mov_b32 v{G0+5}, v{G0+2}')
    a('s_nop 1')
    dpp_rowsum(a, [G0 + 4, G0 + 5])
    a(f'v_mul_f32 v{G0+4}, {fhex(1.0/16)}, v{G0+4}')
    a(f'v_mul_f32 v{G0+5}, {fhex(1.0/16)}, v{G0+5}')
    a(f'v_sub_f32 v{G0}, v{G0}, v{G0+4}')
    a(f'v_sub_f32 v{G0+2}, v{G0+2}, v{G0+5}')
    a(f'v_mul_f32 v{G0}, v{G0}, v{G0}')
    a(f'v_mul_f32 v{G0+2}, v{G0+2}, v{G0+2}')
    a(f's_mov_b32 s10, {fhex(48.0)}')
    a(f'v_fma_f32 v{G0+1}, v{G0}, s10, v{G0+1}')
    a(f'v_fma_f32 v{G0+3}, v{G0+2}, s10, v{G0+3}')
    a('s_nop 1')
    dpp_rowsum(a, [G0 + 1, G0 + 3])
    a(f'v_mul_f32 v{G0+1}, {fhex(1.0/768)}, v{G0+1}')
    a(f'v_mul_f32 v{G0+3}, {fhex(1.0/768)}, v{G0+3}')
    TT = CH + 8
    rb2(a, G0 + 4, G0 + 5, TT)
    rb2(a, G0 + 1, G0 + 3, TT)
    a(f'v_add_f32 v{G0+1}, 0x3727c5ac, v{G0+1}')
    a(f'v_add_f32 v{G0+3}, 0x3727c5ac, v{G0+3}')
    rb2(a, G0 + 1, G0 + 3, TT)
    a(f'v_sqrt_f32 v{G0+1}, v{G0+1}')
    a(f'v_sqrt_f32 v{G0+3}, v{G0+3}')
    a('s_nop 0')
    rb2(a, G0 + 1, G0 + 3, TT)
    a(f'v_rcp_f32 v{G0+1}, v{G0+1}')
    a(f'v_rcp_f32 v{G0+3}, v{G0+3}')
    a(f'v_mov_b32 v{G0}, v{G0+4}')
    a(f'v_mov_b32 v{G0+2}, v{G0+5}')
    a('v_lshrrev_b32 v6, 4, v23')
    a('v_lshlrev_b32 v6, 3, v6')
    a(f'ds_write_b64 v6, v[{G0}:{G0+1}]')
    a(f'ds_write_b64 v6, v[{G0+2}:{G0+3}] offset:256')
    a('s_lshl_b32 s10, s14, 8')
    a('v_lshlrev_b32 v7, 5, v3')
    a('v_add_u32 v7, s10, v7            ; (wni*32 + 4q)*8')
    a('s_waitcnt lgkmcnt(0)')
    a('s_barrier')
    L3 = only_compute(a)
    for j in range(wn):
        a(f'ds_read_b128 v[{PB+8*j}:{PB+8*j+3}], v7 offset:{128*j}')
        a(f'ds_read_b128 v[{PB+8*j+4}:{PB+8*j+7}], v7 offset:{128*j+16}')
    a('s_waitcnt lgkmcnt(0)')
    for i in range(3):
        for j in range(wn):
            for x in range(4):
                a(f'v_sub_f32 v{zacc(i,j)+x}, v{zacc(i,j)+x}, v{PB+8*j+2*x}')
    rb_batch(a, [ac + x for ac in zt for x in (0, 2)], WK)
    for i in range(3):
        for j in range(wn):
            for x in range(4):
                a(f'v_mul_f32 v{zacc(i,j)+x}, v{zacc(i,j)+x}, v{PB+8*j+2*x+1}')
    for i in range(3):
        for j in range(wn):
            ac = zacc(i, j)
            a(f'v_cvt_pk_bf16_f32 v{ac}, v{ac}, v{ac+1}')
            a(f'v_cvt_pk_bf16_f32 v{ac+1}, v{ac+2}, v{ac+3}')
    for i in range(3):
        for j in range(wn):
            ac = zacc(i, j)
            a(f'ds_write_b64 v21, v[{ac}:{ac+1}] offset:{16*i*RS2+32*j}')
    a('s_waitcnt lgkmcnt(0)')
    a.label(L3)
    a('s_barrier')
    for r in range(NR2):
        a(f'ds_read_b128 v[{CH+4*r}:{CH+4*r+3}], v{OL2+r}')
    for r in range(NR2):
        a(f's_waitcnt lgkmcnt({NR2-1-r})')
        a(f'buffer_store_dwordx4 v[{CH+4*r}:{CH+4*r+3}], v{OG2+r}, s[60:63], s72 offen')
    pf_wsp(a)
    return CH + 10, max(g.NS * g.STG, TOFF2 + 96 * RS2)

def trans_addr(a, g, RS, TOFF):
    a(f's_mul_i32 s10, s14, {g.wn*16*RS}')
    a(f's_mul_i32 s11, s13, {g.wm*16*2}')
    a('s_add_u32 s10, s10, s11')
    a(f's_add_u32 s10, s10, {TOFF}')
    a(f'v_mul_u32_u24 v20, {RS}, v5')
    a('v_lshl_add_u32 v20, v3, 3, v20')
    a('v_add_u32 v20, s10, v20')

def phase_g2(a, layer, sig_cnt):
    srd_ws(a, 44, Z2[layer], SZ_Z2); srd_ptr(a, 48, P_WSP, S * S * 2); srd_ws(a, 52, PP, S * FH * 2)
    srd_ws(a, 56, ZZ, S * F * 2); srd_ptr(a, 60, P_BSP, S * 2)
    g = Gemm(a, 96, 64, 2048, 2, 2, 7, LDT if G2LD is None else G2LD[0], 4096 if G2LD is None else G2LD[1], 44, 48)
    a('s_mul_i32 s6, s4, 96')
    a('s_lshl_b32 s7, s5, 6')
    g.setup()
    g.prologue()
    T = g.FR; ACC = g.ACC; wn = g.wn
    TOFF = 65536; RS = 208
    OLDS = g.free; OGL = OLDS + 2; OZ = OGL + 2
    ZR = (OZ + 2 + 3) // 4 * 4; BR = ZR + 8; CH = BR + 4
    NR = chunk_map(a, 64, 12, RS, TOFF, 1536, OLDS, OGL, extra=[(OZ, 3072)])
    a('s_mul_i32 s15, s7, 1536')
    a('s_lshl_b32 s11, s6, 1')
    a('s_add_u32 s15, s15, s11')
    a('s_mul_i32 s72, s7, 3072')
    a('s_add_u32 s72, s72, s11')
    for r in range(NR):
        a(f'buffer_load_dwordx4 v[{ZR+4*r}:{ZR+4*r+3}], v{OZ+r}, s[56:59], s72 offen')
    a(f's_mul_i32 s10, s14, {wn*16}')
    a('s_add_u32 s10, s10, s7')
    a('s_lshl_b32 s73, s10, 1')
    a('v_lshlrev_b32 v22, 1, v5')
    for j in range(wn):
        a(f'buffer_load_ushort v{BR+j}, v22, s[60:63], s73 offen offset:{32*j}')
    trans_addr(a, g, RS, TOFF)
    g.run(extra_young=NR + wn)
    stamp(a)
    a('s_waitcnt vmcnt(0)')
    a('s_barrier')
    pf_wout(a)
    L1 = only_compute(a)
    for j in range(wn):
        a(f'v_lshlrev_b32 v{BR+j}, 16, v{BR+j}')
    a('s_nop 3')
    rb_batch(a, [ACC + 4 * (i * wn + j) + x for (i, j) in g.tiles for x in (0, 2)], T)
    for (i, j) in g.tiles:
        ac = ACC + 4 * (i * wn + j)
        for x in range(4):
            a(f'v_add_f32 v{ac+x}, v{ac+x}, v{BR+j}')
    for (i, j) in g.tiles:
        ac = ACC + 4 * (i * wn + j)
        a(f'v_cvt_pk_bf16_f32 v{ac}, v{ac}, v{ac+1}')
        a(f'v_cvt_pk_bf16_f32 v{ac+1}, v{ac+2}, v{ac+3}')
    for (i, j) in g.tiles:
        ac = ACC + 4 * (i * wn + j)
        a(f'ds_write_b64 v20, v[{ac}:{ac+1}] offset:{16*j*RS+32*i}')
    a('s_waitcnt lgkmcnt(0)')
    a.label(L1)
    a('s_barrier')
    for r in range(NR):
        a(f'ds_read_b128 v[{CH+4*r}:{CH+4*r+3}], v{OLDS+r}')
    for r in range(NR):
        a(f's_waitcnt lgkmcnt({NR-1-r})')
        for x in range(4):
            t = T + 4 * (x & 1)
            unpack(a, t, t + 1, CH + 4 * r + x)
            unpack(a, t + 2, t + 3, ZR + 4 * r + x)
            a(f'v_pk_mul_f32 v[{t}:{t+1}], v[{t}:{t+1}], v[{t+2}:{t+3}]')
            a(f'v_cvt_pk_bf16_f32 v{CH+4*r+x}, v{t}, v{t+1}')
        a(f'buffer_store_dwordx4 v[{CH+4*r}:{CH+4*r+3}], v{OGL+r}, s[52:55], s15 offen {SC()}')
    stamp(a)
    sync_signal(a, sig_cnt)
    stamp(a)
    return CH + 8, max(g.NS * g.STG, TOFF + 64 * RS)

def e_rows(a, xsrd, xcache, ER, EY):
    XA = 48; NA = 60; TT = 72
    for jx in range(5):
        unpack(a, XA + 2 * jx, XA + 2 * jx + 1, ER + jx)
    ln_row1(a, XA, 10, 640, TT, NA, 64)
    for jx in range(5):
        unpack(a, TT + 2 * jx, TT + 2 * jx + 1, EY + jx)
    for i in range(0, 10, 2):
        a(f'v_pk_mul_f32 v[{NA+i}:{NA+i+1}], v[{NA+i}:{NA+i+1}], v[{TT+i}:{TT+i+1}]')
    for jx in range(5):
        rb2(a, NA + 2 * jx, NA + 2 * jx + 1, TT + 10 + (jx & 1))
    for i in range(0, 10, 2):
        a(f'v_pk_add_f32 v[{XA+i}:{XA+i+1}], v[{XA+i}:{XA+i+1}], v[{NA+i}:{NA+i+1}]')
    for jx in range(5):
        a(f'v_cvt_pk_bf16_f32 v{ER+jx}, v{XA+2*jx}, v{XA+2*jx+1}')
        unpack(a, XA + 2 * jx, XA + 2 * jx + 1, ER + jx)
        a(f'buffer_store_dword v{ER+jx}, v21, s[60:63], s15 offen offset:{256*jx}')
    ln_row1(a, XA, 10, 640, TT, NA, 64)
    for jx in range(5):
        a(f'v_cvt_pk_bf16_f32 v{EY+jx}, v{NA+2*jx}, v{NA+2*jx+1}')
        a(f'buffer_store_dword v{EY+jx}, v21, s[52:55], s15 offen offset:{256*jx} {SC()}')

def phase_g3(a, final, wait_cnt, sig_cnt, mid_cnt=None):
    srd_ws(a, 44, WOUTT, FH * D * 2); srd_ws(a, 48, PP, S * FH * 2)
    g = Gemm(a, 80, 64, 768, 1, 4, 8, 1536, 1536, 44, 48)
    g.bcache = 'sc1'
    a('s_mul_i32 s6, s4, 80')
    a('s_lshl_b32 s7, s5, 6')
    g.setup()
    T = g.FR; ACC = g.ACC; wn = g.wn
    TOFF = 65536; RS = 176
    OLDS = g.free; OGL = OLDS + 2
    ZR = (OGL + 2 + 3) // 4 * 4; CH = ZR + 8
    srd_ws(a, 60, X1, SZ_SD)
    if final: srd_ptr(a, 52, P_OUT, SZ_SD)
    else: srd_ws(a, 52, X2, SZ_SD)
    NR = chunk_map(a, 64, 10, RS, TOFF, 1280, OLDS, OGL)
    a('s_mul_i32 s15, s7, 1280')
    a('s_lshl_b32 s11, s6, 1')
    a('s_add_u32 s15, s15, s11')
    for r in range(NR):
        a(f'buffer_load_dwordx4 v[{ZR+4*r}:{ZR+4*r+3}], v{OGL+r}, s[60:63], s15 offen')
    trans_addr(a, g, RS, TOFF)
    sync_wait(a, wait_cnt, 8, pre=lambda: g.prologue('A'))
    stamp(a)
    g.prologue('B')
    g.run(split_prologue=True)
    stamp(a)
    a('s_waitcnt vmcnt(0)')
    a('s_barrier')
    if not final: pf_win(a)
    L1 = only_compute(a)
    a('s_nop 4')
    for (i, j) in g.tiles:
        ac = ACC + 4 * (i * wn + j)
        a(f'v_cvt_pk_bf16_f32 v{ac}, v{ac}, v{ac+1}')
        a(f'v_cvt_pk_bf16_f32 v{ac+1}, v{ac+2}, v{ac+3}')
        a(f'ds_write_b64 v20, v[{ac}:{ac+1}] offset:{16*j*RS+32*i}')
    a('s_waitcnt lgkmcnt(0)')
    a.label(L1)
    a('s_barrier')
    for r in range(NR):
        a(f'ds_read_b128 v[{CH+4*r}:{CH+4*r+3}], v{OLDS+r}')
    for r in range(NR):
        a(f's_waitcnt lgkmcnt({NR-1-r})')
        for x in range(4):
            t = T + 4 * (x & 1)
            unpack(a, t, t + 1, CH + 4 * r + x)
            unpack(a, t + 2, t + 3, ZR + 4 * r + x)
            a(f'v_pk_add_f32 v[{t}:{t+1}], v[{t}:{t+1}], v[{t+2}:{t+3}]')
            a(f'v_cvt_pk_bf16_f32 v{CH+4*r+x}, v{t}, v{t+1}')
        a(f'buffer_store_dwordx4 v[{CH+4*r}:{CH+4*r+3}], v{OGL+r}, s[52:55], s15 offen {"" if final else SC()}')
    if final:
        return CH + 8, max(g.NS * g.STG, TOFF + 64 * RS)
    srd_ws(a, 56, YY, SZ_SD)
    a('s_lshl_b32 s10, s4, 3')
    a('s_add_u32 s10, s10, s7')
    a('s_add_u32 s10, s10, s3')
    a('s_mul_i32 s15, s10, 1280')
    a('v_lshlrev_b32 v21, 2, v0')
    ER = 24; EY = 30
    for jx in range(5):
        a(f'buffer_load_dword v{EY+jx}, v21, s[56:59], s15 offen offset:{256*jx}')
    stamp(a)
    sync_signal(a, mid_cnt)
    sync_wait(a, mid_cnt, 8)
    stamp(a)
    for jx in range(5):
        a(f'buffer_load_dword v{ER+jx}, v21, s[52:55], s15 offen offset:{256*jx} sc1')
    srd_ws(a, 52, HH, SZ_SD)
    a('s_waitcnt vmcnt(0)')
    stamp(a)
    e_rows(a, 0, '', ER, EY)
    stamp(a)
    sync_signal(a, sig_cnt)
    stamp(a)
    return max(CH + 8, 96), max(g.NS * g.STG, TOFF + 64 * RS)

def phase_e1(a, sig_cnt):
    pf_win(a)
    srd_ptr(a, 44, P_Q, SZ_SD)
    srd_ws(a, 48, YT, SZ_T)
    srd_ws(a, 56, YY, SZ_SD)
    srd_ws(a, 60, X1, SZ_SD)
    srd_ws(a, 52, HH, SZ_SD)
    a('s_lshl_b32 s10, s5, 3')
    a('s_add_u32 s10, s10, s4')
    a('s_lshl_b32 s11, s10, 3')
    a('s_add_u32 s11, s11, s3')
    a('s_mul_i32 s15, s11, 1280')
    a('v_lshlrev_b32 v21, 2, v0')
    ER = 24; EY = 30
    a('s_lshl_b32 s12, s10, 4')
    a(f'v_mul_u32_u24 v6, {LDT}, v23')
    a('v_add_u32 v6, s12, v6')
    a(f'v_add_u32 v7, {512*LDT}, v6')
    a('buffer_load_dwordx4 v[36:39], v6, s[48:51], 0 offen')
    a('buffer_load_dwordx4 v[40:43], v7, s[48:51], 0 offen')
    for jx in range(5):
        a(f'buffer_load_dword v{ER+jx}, v21, s[44:47], s15 offen offset:{256*jx}')
    a('v_lshlrev_b32 v6, 4, v23')
    a('s_waitcnt vmcnt(5)')
    a('ds_write_b128 v6, v[36:39]')
    a('ds_write_b128 v6, v[40:43] offset:8192')
    a('v_lshlrev_b32 v7, 5, v0')
    a('s_lshl_b32 s12, s3, 1')
    a('v_add_u32 v7, s12, v7')
    a('s_waitcnt lgkmcnt(0)')
    a('s_barrier')
    for jx in range(5):
        a(f'ds_read_u16 v{EY+jx}, v7 offset:{2048*jx}')
        a(f'ds_read_u16 v{36+jx}, v7 offset:{2048*jx+16}')
    a('s_waitcnt vmcnt(0) lgkmcnt(0)')
    for jx in range(5):
        a(f'v_lshl_or_b32 v{EY+jx}, v{36+jx}, 16, v{EY+jx}')
        a(f'buffer_store_dword v{EY+jx}, v21, s[56:59], s15 offen offset:{256*jx}')
    stamp(a)
    a('s_nop 1')
    e_rows(a, 0, '', ER, EY)
    stamp(a)
    sync_signal(a, sig_cnt)
    stamp(a)
    return 96, 16384

def gen_first(a):
    def body():
        cnt_reg(a, 91, 192)
        t1, l1 = phase_e1(a, 91)
        t2, l2 = phase_g1(a, 0, 91)
        return max(t1, t2), max(l1, l2)
    return kernel_wrap(a, 'g1f0_kernel', body)

def gen_mid(a):
    def body():
        cnt_reg(a, 90, 0); cnt_reg(a, 91, 32); cnt_reg(a, 93, 160)
        t1, l1 = phase_g2(a, 0, 90)
        t2, l2 = phase_g3(a, False, 90, 91, 93)
        t3, l3 = phase_g1(a, 1, 91)
        return max(t1, t2, t3), max(l1, l2, l3)
    return kernel_wrap(a, 'mid_kernel', body)

def gen_last(a):
    def body():
        cnt_reg(a, 90, 64)
        t1, l1 = phase_g2(a, 1, 90)
        t2, l2 = phase_g3(a, True, 90, None)
        return max(t1, t2), max(l1, l2)
    return kernel_wrap(a, 'last_kernel', body)

def main():
    if 'stamp' in sys.argv[2:]: gen.STAMP = True
    if 'fast' in sys.argv[2:]: gen2.FAST = True
    global G2LD
    if 'ld0' in sys.argv[2:]: G2LD = (0, 0)
    if 'ldA0' in sys.argv[2:]: G2LD = (0, 4096)
    if 'ldB0' in sys.argv[2:]: G2LD = (LDT, 0)
    a = Asm()
    prep = gen_prep(a, zero=(CNT, 65536))
    conv = gen_conv(a)
    first = gen_first(a)
    mid = gen_mid(a)
    last = gen_last(a)
    launches = [prep, conv, first, mid, last]
    hdr = open('interleave_layers__ssm_conv_h3__mixer_gmlp__prompt.s.ref').read().split('; Override launch')[0]
    txt = a.text(launches, hdr)
    out = sys.argv[1] if len(sys.argv) > 1 else 'interleave_layers__ssm_conv_h3__mixer_gmlp__prompt.s'
    open(out, 'w').write(txt)
    print('wrote', out, len(txt), 'bytes')

if __name__ == '__main__':
    main()
```

```python
import sys
sys.path.insert(0, 'dev')
from asmlib import *

S, D, F, FH = 2048, 640, 1536, 768
WINT  = 0x0000000
WOUTT = 0x0200000
LDT = 4224
UT    = 0x0300000
YT    = 0x0600000
YY    = 0x0900000
X1    = 0x0C00000
HH    = 0x0F00000
ZZ    = 0x1200000
Z2NT  = 0x1800000
PP    = 0x1C00000
X2    = 0x1F00000
SZ_SD = S * D * 2
SZ_T = D * LDT
SZ_Z2 = FH * LDT

P_Q, P_K, P_V, P_SK, P_SSMK, P_SSMD, P_BX, P_WIN, P_WSP, P_BSP, P_WOUT, P_OUT, P_DBG, P_WS = \
    [16 + 2 * i for i in range(14)]

import struct
def fhex(f): return '0x%08x' % struct.unpack('<I', struct.pack('<f', f))[0]

STAMP = False
_stampn = [0]
def stamp_reset():
    _stampn[0] = 0
def stamp(a):
    if not STAMP: return
    i = _stampn[0]; _stampn[0] += 1
    assert i < 60
    a('s_memtime s[98:99]')
    a('s_waitcnt lgkmcnt(0)')
    a(f'v_writelane_b32 v251, s98, {i}')
def stamp_flush(a, wg=0):
    if not STAMP: return
    L = a.newlabel('Lst')
    a(f's_cmp_lg_u32 s2, {wg}')
    a(f's_cbranch_scc1 {L}')
    a('s_cmp_lg_u32 s3, 0')
    a(f's_cbranch_scc1 {L}')
    a('v_mbcnt_lo_u32_b32 v250, -1, 0')
    a('v_mbcnt_hi_u32_b32 v250, -1, v250')
    a('v_lshlrev_b32 v250, 2, v250')
    a('global_store_dword v250, v251, s[40:41]')
    a.label(L)

def load_ptrs(a):
    a('''s_load_dwordx16 s[16:31], s[0:1], 0
         s_load_dwordx8 s[32:39], s[0:1], 64
         s_load_dwordx4 s[40:43], s[0:1], 96''')

def srd_ptr(a, d, p, nbytes, off=0):
    if off:
        a(f's_add_u32 s{d}, s{p}, {off}')
        a(f's_addc_u32 s{d+1}, s{p+1}, 0')
    else:
        a(f's_mov_b32 s{d}, s{p}')
        a(f's_mov_b32 s{d+1}, s{p+1}')
    a(f's_mov_b32 s{d+2}, {nbytes}')
    a(f's_mov_b32 s{d+3}, 0x20000')

def srd_ws(a, d, off, nbytes):
    srd_ptr(a, d, P_WS, nbytes, off)

def unpack(a, lo, hi, src):
    a(f'v_lshlrev_b32 v{lo}, 16, v{src}')
    a(f'v_and_b32 v{hi}, 0xffff0000, v{src}')

def rb2(a, x0, x1, tmp):
    a(f'v_cvt_pk_bf16_f32 v{tmp}, v{x0}, v{x1}')
    unpack(a, x0, x1, tmp)

def gen_prep(a, zero=None):
    name = 'prep_kernel'
    a.begin_kernel(name)
    Lend = a.newlabel('Lend'); Lw1 = a.newlabel('Lw1'); Lw2 = a.newlabel('Lw2'); Ltr = a.newlabel('Ltr'); Ltr2 = a.newlabel('Ltr2')
    nz = (zero[1] + 4095) // 4096 if zero else 0
    a(f's_cmp_ge_u32 s2, {680+nz}')
    a(f's_cbranch_scc1 {Lend}')
    load_ptrs(a)
    a('v_and_b32 v1, 7, v0          ; cg')
    a('v_lshrrev_b32 v2, 3, v0')
    a('s_waitcnt lgkmcnt(0)')
    if zero:
        Lnz = a.newlabel('Lnz')
        a('s_cmp_lt_u32 s2, 680')
        a(f's_cbranch_scc1 {Lnz}')
        srd_ws(a, 44, zero[0], zero[1])
        a('s_sub_u32 s3, s2, 680')
        a('s_lshl_b32 s3, s3, 12')
        a('v_lshlrev_b32 v3, 4, v0')
        for i in range(4): a(f'v_mov_b32 v{4+i}, 0')
        a('buffer_store_dwordx4 v[4:7], v3, s[44:47], s3 offen')
        a(f's_branch {Lend}')
        a.label(Lnz)
    a('s_cmp_ge_u32 s2, 320')
    a(f's_cbranch_scc1 {Lw1}')
    a('s_mov_b32 s4, 0x1999999a')
    a('s_mul_hi_u32 s5, s2, s4      ; sblk')
    a('s_mul_i32 s6, s5, 10')
    a('s_sub_u32 s6, s2, s6         ; dblk')
    srd_ptr(a, 44, P_K, SZ_SD)
    srd_ptr(a, 48, P_V, SZ_SD)
    srd_ptr(a, 56, P_SK, D * 8)
    srd_ws(a, 52, UT, SZ_T)
    a('s_mul_i32 s7, s5, 64*1280')
    a('s_lshl_b32 s8, s6, 7')
    a('s_add_u32 s7, s7, s8')
    a('v_mul_u32_u24 v3, 2560, v2')
    a('v_lshl_add_u32 v3, v1, 4, v3')
    a('v_add_u32 v3, s7, v3')
    for i in range(5):
        if i < 3:
            a(f'v_subrev_u32 v{10+i}, {1280*(3-i)}, v3')
            a(f'buffer_load_dwordx4 v[{16+4*i}:{19+4*i}], v{10+i}, s[44:47], 0 offen')
        else:
            a(f'buffer_load_dwordx4 v[{16+4*i}:{19+4*i}], v3, s[44:47], 0 offen offset:{1280*(i-3)}')
    for i in range(2):
        a(f'buffer_load_dwordx4 v[{36+4*i}:{39+4*i}], v3, s[48:51], 0 offen offset:{1280*i}')
    a('s_lshl_b32 s8, s6, 9')
    a('v_lshlrev_b32 v5, 6, v1')
    a('v_add_u32 v5, s8, v5')
    for i in range(4):
        a(f'buffer_load_dwordx4 v[{44+4*i}:{47+4*i}], v5, s[56:59], 0 offen offset:{16*i}')
    a('s_waitcnt vmcnt(0)')
    KF = 64
    SK = 70
    VF = 74
    A0, A1, T0, T1, TMP = 76, 77, 78, 79, 80
    RES = 84
    for e in range(8):
        dw = e // 2; hi = e & 1
        def ext(dst, src):
            if hi: a(f'v_and_b32 v{dst}, 0xffff0000, v{src}')
            else:  a(f'v_lshlrev_b32 v{dst}, 16, v{src}')
        for i in range(5): ext(KF + i, 16 + 4 * i + dw)
        for i in range(2): ext(VF + i, 36 + 4 * i + dw)
        unpack(a, SK + 0, SK + 1, 44 + 2 * e)
        unpack(a, SK + 2, SK + 3, 44 + 2 * e + 1)
        a(f'v_mul_f32 v{A0}, v{KF+0}, v{SK+3}')
        a(f'v_mul_f32 v{A1}, v{KF+1}, v{SK+3}')
        rb2(a, A0, A1, TMP)
        for i in range(1, 4):
            a(f'v_mul_f32 v{T0}, v{KF+i}, v{SK+3-i}')
            a(f'v_mul_f32 v{T1}, v{KF+i+1}, v{SK+3-i}')
            rb2(a, T0, T1, TMP)
            a(f'v_add_f32 v{A0}, v{A0}, v{T0}')
            a(f'v_add_f32 v{A1}, v{A1}, v{T1}')
            rb2(a, A0, A1, TMP)
        a(f'v_mul_f32 v{A0}, v{A0}, v{VF}')
        a(f'v_mul_f32 v{A1}, v{A1}, v{VF+1}')
        a(f'v_cvt_pk_bf16_f32 v{RES+e}, v{A0}, v{A1}')
    a(f's_mov_b32 s60, {LDT}')
    a(f's_mul_i32 s61, s6, {64*LDT}')
    a('s_lshl_b32 s8, s5, 7')
    a('s_add_u32 s61, s61, s8')
    a(f's_branch {Ltr2}')
    a.label(Lw1)
    a('s_cmp_ge_u32 s2, 560')
    a(f's_cbranch_scc1 {Lw2}')
    a('s_sub_u32 s3, s2, 320')
    a('s_mov_b32 s4, 0x0aaaaaab')
    a('s_mul_hi_u32 s5, s3, s4      ; kblk')
    a('s_mul_i32 s6, s5, 24')
    a('s_sub_u32 s6, s3, s6         ; fblk')
    srd_ptr(a, 44, P_WIN, D * F * 2)
    srd_ws(a, 52, WINT, D * F * 2)
    a('s_mov_b32 s9, 3072')
    a('s_mul_i32 s7, s5, 64*3072')
    a('s_lshl_b32 s8, s6, 7')
    a('s_add_u32 s7, s7, s8')
    a('s_mov_b32 s60, 1280')
    a('s_mul_i32 s61, s6, 64*1280')
    a('s_lshl_b32 s8, s5, 7')
    a('s_add_u32 s61, s61, s8')
    a(f's_branch {Ltr}')
    a.label(Lw2)
    a('s_sub_u32 s3, s2, 560')
    a('s_mov_b32 s4, 0x1999999a')
    a('s_mul_hi_u32 s5, s3, s4      ; fblk')
    a('s_mul_i32 s6, s5, 10')
    a('s_sub_u32 s6, s3, s6         ; dblk')
    srd_ptr(a, 44, P_WOUT, FH * D * 2)
    srd_ws(a, 52, WOUTT, FH * D * 2)
    a('s_mov_b32 s9, 1280')
    a('s_mul_i32 s7, s5, 64*1280')
    a('s_lshl_b32 s8, s6, 7')
    a('s_add_u32 s7, s7, s8')
    a('s_mov_b32 s60, 1536')
    a('s_mul_i32 s61, s6, 64*1536')
    a('s_lshl_b32 s8, s5, 7')
    a('s_add_u32 s61, s61, s8')
    a.label(Ltr)
    a('v_lshlrev_b32 v3, 1, v2')
    a('v_mul_lo_u32 v3, v3, s9')
    a('v_lshl_add_u32 v3, v1, 4, v3')
    a('v_add_u32 v3, s7, v3')
    a('v_add_u32 v4, s9, v3')
    a('buffer_load_dwordx4 v[16:19], v3, s[44:47], 0 offen')
    a('buffer_load_dwordx4 v[20:23], v4, s[44:47], 0 offen')
    a('s_mov_b32 s10, 0x05040100')
    a('s_mov_b32 s11, 0x07060302')
    a('s_waitcnt vmcnt(0)')
    for j in range(4):
        a(f'v_perm_b32 v{84+2*j}, v{20+j}, v{16+j}, s10')
        a(f'v_perm_b32 v{85+2*j}, v{20+j}, v{16+j}, s11')
    a.label(Ltr2)
    a('v_mul_u32_u24 v5, 1088, v1')
    a('v_lshl_add_u32 v5, v2, 2, v5')
    for e in range(8):
        a(f'ds_write_b32 v5, v{84+e} offset:{136*e}')
    a('v_lshrrev_b32 v6, 2, v0       ; c')
    a('v_and_b32 v7, 3, v0           ; seg')
    a('v_mul_u32_u24 v8, 136, v6')
    a('v_lshl_add_u32 v8, v7, 5, v8')
    a('v_mul_lo_u32 v9, v6, s60')
    a('v_lshl_add_u32 v9, v7, 5, v9')
    a('v_add_u32 v9, s61, v9')
    a('s_waitcnt lgkmcnt(0)')
    a('s_barrier')
    for i in range(4):
        a(f'ds_read_b64 v[{16+2*i}:{17+2*i}], v8 offset:{8*i}')
    a('s_waitcnt lgkmcnt(0)')
    a('buffer_store_dwordx4 v[16:19], v9, s[52:55], 0 offen')
    a('buffer_store_dwordx4 v[20:23], v9, s[52:55], 0 offen offset:16')
    a.label(Lend)
    a.end_kernel(name, 96, 72)
    return (name, 680 + nz, 256, 64 * 136)

def gen_conv(a):
    name = 'conv_kernel'
    a.begin_kernel(name)
    Lend = a.newlabel('Lend')
    UB = 37504; WB = UB + 7680
    Lwarm = a.newlabel('Lwarm')
    a('s_cmp_ge_u32 s2, 214')
    a(f's_cbranch_scc1 {Lend}')
    stamp_reset(); stamp(a)
    load_ptrs(a)
    a('v_lshrrev_b32 v1, 6, v0')
    a('v_and_b32 v0, 63, v0')
    a('s_nop 0')
    a('v_readfirstlane_b32 s3, v1     ; wave')
    a('s_nop 3')
    a('s_cmp_eq_u32 s3, 3')
    a(f's_cbranch_scc1 {Lwarm}')
    a('s_mul_i32 s4, s2, 3')
    a('s_add_u32 s4, s4, s3           ; channel d')
    a('s_cmp_ge_u32 s4, 640')
    a(f's_cbranch_scc1 {Lend}')
    a(f's_mul_i32 s5, s3, {WB}')
    a('s_lshl_b32 s6, s4, 12')
    a(f's_mul_i32 s13, s4, {LDT}       ; d*LDT')
    a('s_waitcnt lgkmcnt(0)')
    stamp(a)
    a(f's_add_u32 s44, s{P_SSMK}, s6')
    a(f's_addc_u32 s45, s{P_SSMK+1}, 0')
    a('s_mov_b32 s46, 4096')
    a('s_mov_b32 s47, 0x20000')
    srd_ws(a, 48, UT, SZ_T)
    srd_ws(a, 52, YT, SZ_T)
    srd_ptr(a, 56, P_SSMD, D * 2)
    a('v_lshlrev_b32 v2, 4, v0')
    HR = 140
    for j in range(4):
        a(f'buffer_load_dwordx4 v[{HR+8*j}:{HR+8*j+3}], v2, s[44:47], 0 offen offset:{1024*j}')
        a(f'buffer_load_dwordx4 v[{HR+8*j+4}:{HR+8*j+7}], v2, s[44:47], 0 offen offset:{1024*j+16}')
    for j in range(4):
        a(f'buffer_load_dwordx4 v[{100+4*j}:{103+4*j}], v2, s[48:51], s13 offen offset:{1024*j}')
    a('v_lshrrev_b32 v3, 3, v0')
    a('v_and_b32 v4, 7, v0')
    a('v_add_u32 v3, v3, v4')
    a('v_subrev_u32 v3, 7, v3')
    a('v_max_i32 v4, 0, v3')
    a('v_lshlrev_b32 v4, 1, v4')
    a('buffer_load_ushort v5, v4, s[44:47], 0 offen')
    a('s_lshl_b32 s7, s4, 1')
    a('v_mov_b32 v6, 0')
    a('buffer_load_ushort v7, v6, s[56:59], s7 offen')
    a('v_and_b32 v8, 15, v0           ; ii / m')
    a('v_lshrrev_b32 v9, 4, v0        ; kq / q')
    a('v_lshlrev_b32 v10, 2, v9')
    a('v_and_b32 v11, 2, v9')
    a('v_lshlrev_b32 v11, 1, v11')
    a('v_xor_b32 v10, v10, v11        ; a[q] = r0 (mod 16)')
    a('v_sub_u32 v18, 15, v8')
    a('v_mul_u32_u24 v18, 96, v18')
    a('v_lshlrev_b32 v19, 1, v10')
    a('v_sub_u32 v18, v18, v19')
    a('v_add_u32 v18, s5, v18')
    a(f'v_add_u32 v18, {UB+56-32}, v18')
    a('v_lshlrev_b32 v10, 1, v10')
    a('v_lshl_add_u32 v10, v8, 6, v10')
    a('v_add_u32 v10, s5, v10')
    a('v_mov_b32 v12, 0')
    a('v_mov_b32 v13, 0')
    a('v_mov_b32 v14, 0')
    a('v_mov_b32 v15, 0')
    a('v_min_u32 v16, 26, v0')
    a('v_lshlrev_b32 v16, 4, v16')
    a('v_add_u32 v16, s5, v16')
    a('ds_write_b128 v16, v[12:15]')
    a('v_lshlrev_b32 v16, 4, v0')
    a('v_add_u32 v16, s5, v16')
    a(f'ds_write_b128 v16, v[12:15] offset:{UB+64*96}')
    a('v_min_u32 v16, 25, v0')
    a('v_lshlrev_b32 v16, 4, v16')
    a('v_add_u32 v16, s5, v16')
    a(f'ds_write_b128 v16, v[12:15] offset:{UB+64*96+1024}')
    a('v_mul_u32_u24 v16, 144, v0')
    a('v_add_u32 v16, s5, v16          ; 144*l + base')
    E0 = 20
    E1 = 29
    D1 = 39
    for j in range(4):
        d = HR + 8 * j
        a(f's_waitcnt vmcnt({12 - 2*j})')
        for k in range(7):
            a(f'v_alignbit_b32 v{E0+k}, v{d+k+1}, v{d+k}, 16')
        for k in range(1, 7):
            a(f'v_alignbit_b32 v{E1+k}, v{d+k+1}, v{d+k}, 16')
            a(f'v_mov_b32 v{D1+k}, v{d+k}')
        for p in range(8):
            off = 9216 * j + 16 * (p + (34 if p == 0 else 35))
            if p % 2 == 0:
                k = p // 2
                src = d + k if k % 2 == 0 else D1 + k
            else:
                k = (p - 1) // 2
                src = E0 + k if k % 2 == 0 else E1 + k
            assert src % 2 == 0
            a(f'ds_write_b128 v16, v[{src}:{src+3}] offset:{off}')
        a('s_nop 1')
    a('s_waitcnt vmcnt(0)')
    a('s_barrier')
    a('v_cmp_gt_i32 vcc, 0, v3')
    a('s_nop 1')
    a('v_cndmask_b32 v5, v5, v12, vcc')
    a('v_lshlrev_b32 v16, 1, v0')
    a('v_add_u32 v16, s5, v16')
    a('ds_write_b16 v16, v5 offset:432')
    a('v_sub_u32 v16, 63, v0          ; 63-l ; pc = (63-l) + 64*(3-j)')
    a('v_lshrrev_b32 v17, 2, v16')
    a('v_and_b32 v16, 3, v16')
    a('v_mul_u32_u24 v17, 96, v17')
    a('v_lshl_add_u32 v17, v16, 4, v17')
    a('v_add_u32 v17, s5, v17')
    for j in range(4):
        s0 = 100 + 4 * j
        t0 = 48 + 4 * j
        for x in range(4):
            a(f'v_alignbit_b32 v{t0+x}, v{s0+3-x}, v{s0+3-x}, 16')
        a(f'ds_write_b128 v17, v[{t0}:{t0+3}] offset:{UB + 96*16*(3-j)}')
    a('v_lshrrev_b32 v16, 1, v8')
    a('v_and_b32 v16, 4, v16')
    a('v_xor_b32 v16, v8, v16         ; rr')
    a('v_lshl_add_u32 v16, v9, 3, v16')
    a('v_lshrrev_b32 v17, 3, v16')
    a('v_add_u32 v16, v16, v17        ; x + (x>>3)')
    a('v_lshlrev_b32 v16, 4, v16')
    a('v_add_u32 v16, s5, v16         ; A addr')
    a('v_sub_u32 v17, 15, v8')
    a('v_mul_u32_u24 v17, 96, v17')
    a('v_lshl_add_u32 v17, v9, 4, v17')
    a('v_add_u32 v17, s5, v17')
    a(f'v_add_u32 v17, {UB}, v17        ; B addr')
    ACC = 64
    for i in range(32):
        a(f'v_mov_b32 v{ACC+i}, 0')
    for i in range(16):
        a(f'v_mov_b32 v{164+i}, 0')
    FR = [20, 140, 96]
    def nreads(t): return (2 + 4 - (t >> 4)) if t < 64 else 0
    def reads(t):
        f = FR[t % 3]
        for j in range(2):
            a(f'ds_read_b128 v[{f+4*j}:{f+4*j+3}], v16 offset:{576*t+288*j}')
        for c in range(t >> 4, 4):
            a(f'ds_read_b128 v[{f+8+4*c}:{f+11+4*c}], v17 offset:{96*(48-16*c+t)}')
    a('s_waitcnt lgkmcnt(0)')
    stamp(a)
    reads(0); reads(1)
    for t in range(64):
        if t + 2 < 64: reads(t + 2)
        a(f's_waitcnt lgkmcnt({nreads(t+1) + nreads(t+2)})')
        f = FR[t % 3]
        for c in range(t >> 4, 4):
            for j in range(2):
                ac = ACC + 4 * (2 * c + j)
                if c >= 2 and (t & 1) and t >= 32: ac = 164 + 4 * (2 * (c - 2) + j)
                a(f'v_mfma_f32_16x16x32_bf16 v[{ac}:{ac+3}], v[{f+4*j}:{f+4*j+3}], v[{f+8+4*c}:{f+11+4*c}], v[{ac}:{ac+3}]')
    a('s_nop 7')
    a('s_nop 1')
    for i in range(16):
        a(f'v_add_f32 v{ACC+16+i}, v{ACC+16+i}, v{164+i}')
    stamp(a)
    for c in range(4):
        for j in range(2):
            ur = 120 + 2 * (2 * c + j)
            a(f'ds_read_b64 v[{ur}:{ur+1}], v18 offset:{96*(48-16*c) + 32*(1-j)}')
    a('v_lshlrev_b32 v7, 16, v7       ; D as f32')
    a('s_nop 7')
    a('s_waitcnt lgkmcnt(0)')
    for c in range(4):
        for j in range(2):
            ac = ACC + 4 * (2 * c + j)
            ur = 120 + 2 * (2 * c + j)
            rb2(a, ac, ac + 1, 18)
            rb2(a, ac + 2, ac + 3, 19)
            unpack(a, 23, 22, ur)
            unpack(a, 21, 20, ur + 1)
            for x in range(4):
                a(f'v_mul_f32 v{20+x}, v{20+x}, v7')
            rb2(a, 20, 21, 18)
            rb2(a, 22, 23, 19)
            for x in range(4):
                a(f'v_add_f32 v{ac+x}, v{ac+x}, v{20+x}')
            a(f'v_cvt_pk_bf16_f32 v{ur}, v{ac}, v{ac+1}')
            a(f'v_cvt_pk_bf16_f32 v{ur+1}, v{ac+2}, v{ac+3}')
            a(f'ds_write_b64 v10, v[{ur}:{ur+1}] offset:{1024*c+32*j}')
    a('v_add_u32 v16, s5, v2')
    a('s_waitcnt lgkmcnt(0)')
    for x in range(4):
        a(f'ds_read_b128 v[{20+4*x}:{23+4*x}], v16 offset:{1024*x}')
    for x in range(4):
        a(f's_waitcnt lgkmcnt({3-x})')
        a(f'buffer_store_dwordx4 v[{20+4*x}:{23+4*x}], v2, s[52:55], s13 offen offset:{1024*x}')
    if STAMP:
        stamp(a)
        a('s_waitcnt vmcnt(0)')
        stamp(a)
        stamp_flush(a, 37)
    a(f's_branch {Lend}')
    a.label(Lwarm)
    a('s_waitcnt lgkmcnt(0)')
    a('s_barrier')
    srd_ptr(a, 44, P_WSP, S * S * 2)
    srd_ptr(a, 48, P_Q, SZ_SD)
    a('s_mul_i32 s4, s2, 40960')
    a('s_mul_i32 s5, s2, 13312')
    a('v_lshlrev_b32 v1, 4, v0')
    for i in range(13):
        a(f'buffer_load_dwordx4 v[{8+4*i}:{11+4*i}], v1, s[48:51], s5 offen')
        a('s_add_u32 s5, s5, 1024')
    for i in range(40):
        a(f'buffer_load_dwordx4 v[{8+4*(i%40)}:{11+4*(i%40)}], v1, s[44:47], s4 offen')
        a('s_add_u32 s4, s4, 1024')
    a('s_waitcnt vmcnt(0)')
    a.label(Lend)
    a.end_kernel(name, 256 if STAMP else 184, 102 if STAMP else 72)
    return (name, 214, 256, 3 * WB)

def reduce2(a, va, vb, sbase):
    for n in (8, 4, 2, 1):
        a('s_nop 1')
        a(f'v_add_f32_dpp v{va}, v{va}, v{va} row_ror:{n} row_mask:0xf bank_mask:0xf')
        a(f'v_add_f32_dpp v{vb}, v{vb}, v{vb} row_ror:{n} row_mask:0xf bank_mask:0xf')
    a('s_nop 0')
    for i in range(4):
        a(f'v_readlane_b32 s{sbase+i}, v{va}, {16*i}')
    for i in range(4):
        a(f'v_readlane_b32 s{sbase+4+i}, v{vb}, {16*i}')
    a(f'v_mov_b32 v{va}, s{sbase}')
    a(f'v_add_f32 v{va}, s{sbase+1}, v{va}')
    a(f'v_add_f32 v{va}, s{sbase+2}, v{va}')
    a(f'v_add_f32 v{va}, s{sbase+3}, v{va}')
    a(f'v_mov_b32 v{vb}, s{sbase+4}')
    a(f'v_add_f32 v{vb}, s{sbase+5}, v{vb}')
    a(f'v_add_f32 v{vb}, s{sbase+6}, v{vb}')
    a(f'v_add_f32 v{vb}, s{sbase+7}, v{vb}')

def ln_rows2(a, xa, xb, n, ntot, t, outa, outb, sbase):
    sa, sb_, ma, mb, ra, rb_ = t, t + 1, t + 2, t + 3, t + 4, t + 5
    tm = t + 6
    da = t + 8; db = t + 8 + n
    inv = 1.0 / ntot
    import struct
    invh = '0x%08x' % struct.unpack('<I', struct.pack('<f', inv))[0]
    for (x, s_) in ((xa, sa), (xb, sb_)):
        a(f'v_add_f32 v{s_}, v{x}, v{x+1}')
        for i in range(2, n):
            a(f'v_add_f32 v{s_}, v{s_}, v{x+i}')
    reduce2(a, sa, sb_, sbase)
    a(f'v_mul_f32 v{ma}, {invh}, v{sa}')
    a(f'v_mul_f32 v{mb}, {invh}, v{sb_}')
    for (x, d, m, s_) in ((xa, da, ma, sa), (xb, db, mb, sb_)):
        for i in range(n):
            a(f'v_sub_f32 v{d+i}, v{x+i}, v{m}')
        a(f'v_mul_f32 v{s_}, v{d}, v{d}')
        for i in range(1, n):
            a(f'v_fmac_f32 v{s_}, v{d+i}, v{d+i}')
    reduce2(a, sa, sb_, sbase)
    a(f'v_mul_f32 v{sa}, {invh}, v{sa}')
    a(f'v_mul_f32 v{sb_}, {invh}, v{sb_}')
    rb2(a, ma, mb, tm)
    rb2(a, sa, sb_, tm)
    a(f'v_add_f32 v{sa}, 0x3727c5ac, v{sa}')
    a(f'v_add_f32 v{sb_}, 0x3727c5ac, v{sb_}')
    rb2(a, sa, sb_, tm)
    a(f'v_sqrt_f32 v{sa}, v{sa}')
    a(f'v_sqrt_f32 v{sb_}, v{sb_}')
    a('s_nop 0')
    rb2(a, sa, sb_, tm)
    a(f'v_rcp_f32 v{ra}, v{sa}')
    a(f'v_rcp_f32 v{rb_}, v{sb_}')
    a('s_nop 0')
    for (x, o, m, r) in ((xa, outa, ma, ra), (xb, outb, mb, rb_)):
        for i in range(0, n, 2):
            a(f'v_sub_f32 v{o+i}, v{x+i}, v{m}')
            a(f'v_sub_f32 v{o+i+1}, v{x+i+1}, v{m}')
            rb2(a, o + i, o + i + 1, tm)
            a(f'v_mul_f32 v{o+i}, v{o+i}, v{r}')
            a(f'v_mul_f32 v{o+i+1}, v{o+i+1}, v{r}')
            rb2(a, o + i, o + i + 1, tm)

def ln_row1(a, x, n, ntot, t, out, sbase):
    s1, s2, m, r, tm = t, t + 1, t + 2, t + 3, t + 4
    d = t + 8
    invh = fhex(1.0 / ntot)
    sp = sbase + 8
    a('s_nop 0')
    a(f'v_readfirstlane_b32 s{sp}, v{x}')
    a('s_nop 1')
    for i in range(n):
        a(f'v_subrev_f32 v{d+i}, s{sp}, v{x+i}')
    a(f'v_add_f32 v{s1}, v{d}, v{d+1}')
    a(f'v_mul_f32 v{s2}, v{d}, v{d}')
    for i in range(1, n):
        if i >= 2: a(f'v_add_f32 v{s1}, v{s1}, v{d+i}')
        a(f'v_fmac_f32 v{s2}, v{d+i}, v{d+i}')
    reduce2(a, s1, s2, sbase)
    a(f'v_mul_f32 v{s1}, {invh}, v{s1}')
    a(f'v_mul_f32 v{s2}, {invh}, v{s2}')
    a(f'v_fma_f32 v{s2}, -v{s1}, v{s1}, v{s2}  ; var')
    a(f'v_max_f32 v{s2}, 0, v{s2}')
    a(f'v_add_f32 v{m}, s{sp}, v{s1}           ; mean')
    rb2(a, m, s2, tm)
    a(f'v_add_f32 v{s2}, 0x3727c5ac, v{s2}')
    a(f'v_cvt_pk_bf16_f32 v{tm}, v{s2}, v{s2}')
    a(f'v_lshlrev_b32 v{s2}, 16, v{tm}')
    a(f'v_sqrt_f32 v{s2}, v{s2}')
    a('s_nop 0')
    a(f'v_cvt_pk_bf16_f32 v{tm}, v{s2}, v{s2}')
    a(f'v_lshlrev_b32 v{s2}, 16, v{tm}')
    a(f'v_rcp_f32 v{r}, v{s2}')
    for i in range(n):
        a(f'v_sub_f32 v{out+i}, v{x+i}, v{m}')
    for i in range(0, n, 2):
        rb2(a, out + i, out + i + 1, tm + (i // 2) % 2)
    for i in range(n):
        a(f'v_mul_f32 v{out+i}, v{out+i}, v{r}')
    for i in range(0, n, 2):
        rb2(a, out + i, out + i + 1, tm + (i // 2) % 2)

def gen_e(a, first):
    name = 'e1_kernel' if first else 'e2_kernel'
    a.begin_kernel(name)
    Lend = a.newlabel('Lend')
    a('s_cmp_ge_u32 s2, 256')
    a(f's_cbranch_scc1 {Lend}')
    stamp_reset(); stamp(a)
    load_ptrs(a)
    a('v_lshrrev_b32 v1, 6, v0')
    a('v_and_b32 v2, 63, v0          ; lane')
    a('s_and_b32 s5, s2, 7')
    a('s_lshl_b32 s5, s5, 5')
    a('s_lshr_b32 s6, s2, 3')
    a('s_add_u32 s5, s5, s6')
    a('s_waitcnt lgkmcnt(0)')
    stamp(a)
    if first:
        srd_ptr(a, 44, P_Q, SZ_SD)
        srd_ws(a, 48, YT, SZ_T)
    else:
        srd_ws(a, 44, X2, SZ_SD)
    srd_ws(a, 52, YY, SZ_SD)
    srd_ws(a, 56, X1, SZ_SD)
    srd_ws(a, 60, HH, SZ_SD)
    a('s_mul_i32 s3, s5, 8*1280')
    a('v_mul_u32_u24 v3, 1280, v1')
    a('v_lshl_add_u32 v3, v2, 2, v3')
    a('v_add_u32 v3, s3, v3')
    XR = 16; YR = 22
    if first:
        a('s_lshl_b32 s4, s5, 4')
        a(f'v_mul_u32_u24 v4, {LDT}, v0')
        a('v_add_u32 v4, s4, v4')
        a(f'v_add_u32 v5, {512*LDT}, v4')
        a('buffer_load_dwordx4 v[36:39], v4, s[48:51], 0 offen')
        a('buffer_load_dwordx4 v[40:43], v5, s[48:51], 0 offen')
    for j in range(5):
        a(f'buffer_load_dword v{XR+j}, v3, s[44:47], 0 offen offset:{256*j}')
    if first:
        a('v_lshlrev_b32 v4, 4, v0')
        a('s_waitcnt vmcnt(5)')
        a('ds_write_b128 v4, v[36:39]')
        a('ds_write_b128 v4, v[40:43] offset:8192')
        a('v_lshlrev_b32 v5, 5, v2')
        a('v_lshl_add_u32 v5, v1, 1, v5')
        a('s_waitcnt lgkmcnt(0)')
        a('s_barrier')
        for j in range(5):
            a(f'ds_read_u16 v{YR+j}, v5 offset:{2048*j}')
            a(f'ds_read_u16 v{36+j}, v5 offset:{2048*j+16}')
        a('s_waitcnt vmcnt(0) lgkmcnt(0)')
        for j in range(5):
            a(f'v_lshl_or_b32 v{YR+j}, v{36+j}, 16, v{YR+j}')
        for j in range(5):
            a(f'buffer_store_dword v{YR+j}, v3, s[52:55], 0 offen offset:{256*j}')
    else:
        for j in range(5):
            a(f'buffer_load_dword v{YR+j}, v3, s[52:55], 0 offen offset:{256*j}')
        a('s_waitcnt vmcnt(0)')
    XA = 48; NA = 60; T = 72
    stamp(a)
    for j in range(5):
        unpack(a, XA + 2 * j, XA + 2 * j + 1, XR + j)
    ln_row1(a, XA, 10, 640, T, NA, 64)
    for j in range(5):
        unpack(a, T + 2 * j, T + 2 * j + 1, YR + j)
    for i in range(10):
        a(f'v_mul_f32 v{NA+i}, v{NA+i}, v{T+i}')
    for j in range(5):
        rb2(a, NA + 2 * j, NA + 2 * j + 1, T + 10 + (j & 1))
    for i in range(10):
        a(f'v_add_f32 v{XA+i}, v{XA+i}, v{NA+i}')
    for j in range(5):
        a(f'v_cvt_pk_bf16_f32 v{XR+j}, v{XA+2*j}, v{XA+2*j+1}')
        unpack(a, XA + 2 * j, XA + 2 * j + 1, XR + j)
        a(f'buffer_store_dword v{XR+j}, v3, s[56:59], 0 offen offset:{256*j}')
    ln_row1(a, XA, 10, 640, T, NA, 64)
    for j in range(5):
        a(f'v_cvt_pk_bf16_f32 v{YR+j}, v{NA+2*j}, v{NA+2*j+1}')
        a(f'buffer_store_dword v{YR+j}, v3, s[60:63], 0 offen offset:{256*j}')
    if STAMP:
        stamp(a)
        a('s_waitcnt vmcnt(0)')
        stamp(a)
        stamp_flush(a, 37)
    a.label(Lend)
    a.end_kernel(name, 256 if STAMP else 96, 102 if STAMP else 80)
    return (name, 256, 512, 16384 if first else 0)

def gen_ln2(a):
    name = 'ln2_kernel'
    a.begin_kernel(name)
    Lend = a.newlabel('Lend')
    a('s_cmp_ge_u32 s2, 128')
    a(f's_cbranch_scc1 {Lend}')
    stamp_reset(); stamp(a)
    load_ptrs(a)
    a('v_lshrrev_b32 v1, 6, v0       ; wave')
    a('v_and_b32 v2, 63, v0          ; lane')
    a('s_and_b32 s5, s2, 7')
    a('s_lshl_b32 s5, s5, 4')
    a('s_lshr_b32 s6, s2, 3')
    a('s_add_u32 s5, s5, s6')
    a('s_waitcnt lgkmcnt(0)')
    stamp(a)
    srd_ws(a, 44, ZZ, S * F * 2)
    srd_ws(a, 48, Z2NT, SZ_Z2)
    a('s_mul_i32 s3, s5, 16*3072')
    a('s_add_u32 s3, s3, 1536')
    a('v_mul_u32_u24 v3, 4*3072, v1')
    a('v_lshl_add_u32 v3, v2, 2, v3')
    a('v_add_u32 v3, s3, v3')
    R = 16
    for r in range(4):
        if r: a(f'v_add_u32 v{3+r}, {3072*r}, v3')
    for r in range(4):
        for j in range(6):
            a(f'buffer_load_dword v{R+6*r+j}, v{3+r}, s[44:47], 0 offen offset:{256*j}')
    a('v_lshlrev_b32 v8, 6, v2')
    a('v_lshl_add_u32 v8, v1, 3, v8')
    a('s_waitcnt vmcnt(0)')
    XA, XB, T = 48, 60, 80
    stamp(a)
    for p in range(2):
        for j in range(6):
            unpack(a, XA + 2 * j, XA + 2 * j + 1, R + 12 * p + j)
            unpack(a, XB + 2 * j, XB + 2 * j + 1, R + 12 * p + 6 + j)
        ln_rows2(a, XA, XB, 12, 768, T, XA, XB, 64)
        for i in range(12):
            a(f'v_cvt_pk_bf16_f32 v{T+i}, v{XA+i}, v{XB+i}')
            a(f'ds_write_b32 v8, v{T+i} offset:{4096*(i//2) + 32*(i&1) + 4*p}')
    a('v_lshlrev_b32 v9, 5, v0')
    a('s_lshl_b32 s4, s5, 5')
    a(f'v_mul_u32_u24 v10, {LDT}, v0')
    a('v_add_u32 v10, s4, v10')
    a('s_waitcnt lgkmcnt(0)')
    a('s_barrier')
    for i in range(3):
        a(f'ds_read_b128 v[{16+8*i}:{19+8*i}], v9 offset:{8192*i}')
        a(f'ds_read_b128 v[{20+8*i}:{23+8*i}], v9 offset:{8192*i+16}')
    a('s_waitcnt lgkmcnt(0)')
    for i in range(3):
        if i: a(f'v_add_u32 v10, {256*LDT}, v10')
        a(f'buffer_store_dwordx4 v[{16+8*i}:{19+8*i}], v10, s[48:51], 0 offen')
        a(f'buffer_store_dwordx4 v[{20+8*i}:{23+8*i}], v10, s[48:51], 0 offen offset:16')
    if STAMP:
        stamp(a)
        a('s_waitcnt vmcnt(0)')
        stamp(a)
        stamp_flush(a, 37)
    a.label(Lend)
    a.end_kernel(name, 256 if STAMP else 128, 102 if STAMP else 80)
    return (name, 128, 256, 24576)

def gen_gemm(a, name, kind, BM, BN, K, WM, WN, NS, ntm, ntn, ldA, ldB, final=False):
    wm = BM // WM // 16; wn = BN // WN // 16
    nst = K // 64
    STG = (BM + BN) * 128
    ngA = BM // 8; ngB = BN // 8
    nAw = (ngA + 3) // 4; nBw = (ngB + 3) // 4
    npw = nAw + nBw
    a.begin_kernel(name)
    Lend = a.newlabel('Lend')
    a(f's_cmp_ge_u32 s2, {ntm*ntn}')
    a(f's_cbranch_scc1 {Lend}')
    stamp_reset(); stamp(a)
    load_ptrs(a)
    a('v_lshrrev_b32 v1, 6, v0')
    a('v_and_b32 v0, 63, v0')
    a('s_nop 0')
    a('v_readfirstlane_b32 s3, v1     ; wave')
    assert ntm in (8, 16)
    a('s_and_b32 s10, s2, 7')
    a('s_lshr_b32 s11, s2, 3')
    if ntm == 8:
        a('s_and_b32 s4, s11, 7')
        a('s_lshr_b32 s5, s11, 3')
        a('s_lshl_b32 s10, s10, 2')
        a('s_add_u32 s5, s5, s10')
    else:
        a('s_and_b32 s4, s11, 7')
        a('s_and_b32 s12, s10, 1')
        a('s_lshl_b32 s12, s12, 3')
        a('s_add_u32 s4, s4, s12')
        a('s_lshr_b32 s5, s11, 3')
        a('s_lshr_b32 s10, s10, 1')
        a('s_lshl_b32 s10, s10, 2')
        a('s_add_u32 s5, s5, s10')
    a(f's_mul_i32 s6, s4, {BM}          ; m0')
    a(f's_mul_i32 s7, s5, {BN}          ; n0')
    a('s_waitcnt lgkmcnt(0)')
    stamp(a)
    if kind == 'g1':
        srd_ws(a, 44, WINT, D * F * 2); srd_ws(a, 48, HH, SZ_SD); srd_ws(a, 52, ZZ, S * F * 2); ldo = 3072
    elif kind == 'g2':
        srd_ws(a, 44, Z2NT, FH * S * 2); srd_ptr(a, 48, P_WSP, S * S * 2); srd_ws(a, 52, PP, S * FH * 2); ldo = 1536
        srd_ws(a, 56, ZZ, S * F * 2); srd_ptr(a, 60, P_BSP, S * 2)
    else:
        srd_ws(a, 44, WOUTT, FH * D * 2); srd_ws(a, 48, PP, S * FH * 2); ldo = 1280
        if final: srd_ptr(a, 52, P_OUT, SZ_SD)
        else: srd_ws(a, 52, X2, SZ_SD)
        srd_ws(a, 56, X1, SZ_SD)
    a(f's_mul_i32 s8, s6, {ldA}         ; A soffset')
    a(f's_mul_i32 s9, s7, {ldB}         ; B soffset')
    a('v_lshrrev_b32 v2, 3, v0        ; l>>3')
    a('v_lshrrev_b32 v3, 4, v0        ; l>>4')
    a('v_and_b32 v4, 7, v0            ; l&7')
    VA = 8; VB = VA + nAw
    SMA = 64; SMB = SMA + nAw
    def grp_setup(i, ng, ld, vdst, sdst, ldsbase):
        if 4 * i + 3 < ng:
            a(f's_add_u32 s10, s3, {4*i}')
        else:
            assert ng - 4 * i == 2
            a('s_and_b32 s10, s3, 1')
            a(f's_add_u32 s10, s10, {4*i}')
        a('s_lshl_b32 s11, s10, 2')
        a('v_add_u32 v5, s11, v3')
        a('v_and_b32 v5, 7, v5')
        a('v_xor_b32 v5, v5, v4')
        a('s_lshl_b32 s11, s10, 3')
        a('v_add_u32 v6, s11, v2          ; row')
        a(f's_mov_b32 s12, {ld}')
        a('v_mul_lo_u32 v6, v6, s12')
        a(f'v_lshl_add_u32 v{vdst}, v5, 4, v6')
        a(f's_lshl_b32 s{sdst}, s10, 10')
        if ldsbase: a(f's_add_u32 s{sdst}, s{sdst}, {ldsbase}')
    for i in range(nAw): grp_setup(i, ngA, ldA, VA + i, SMA + i, 0)
    for i in range(nBw): grp_setup(i, ngB, ldB, VB + i, SMB + i, BM * 128)
    def issue(st):
        buf = (st % NS) * STG
        for i in range(nAw):
            a(f's_add_u32 m0, s{SMA+i}, {buf}')
            a('s_nop 0')
            a(f'buffer_load_dwordx4 v{VA+i}, s[44:47], s8 offen lds')
        for i in range(nBw):
            a(f's_add_u32 m0, s{SMB+i}, {buf}')
            a('s_nop 0')
            a(f'buffer_load_dwordx4 v{VB+i}, s[48:51], s9 offen lds')
        a('s_add_u32 s8, s8, 128')
        a('s_add_u32 s9, s9, 128')
    for st in range(min(NS - 1, nst)):
        issue(st)
    if WN == 4:   a('s_mov_b32 s13, 0'); a('s_mov_b32 s14, s3')
    elif WN == 2: a('s_lshr_b32 s13, s3, 1'); a('s_and_b32 s14, s3, 1')
    else:         a('s_mov_b32 s13, s3'); a('s_mov_b32 s14, 0')
    a('v_and_b32 v5, 15, v0')
    a('v_lshrrev_b32 v6, 1, v5')
    a('v_xor_b32 v6, v6, v3')
    a('v_lshlrev_b32 v6, 4, v6')
    a('v_lshl_add_u32 v6, v5, 7, v6')
    a('v_xor_b32 v7, 64, v6           ; ks=1')
    nwin = (NS * STG + 65535) // 65536
    RA = 24; RBb = RA + 2 * nwin
    a(f's_mul_i32 s10, s13, {wm*16*128}')
    a(f's_mul_i32 s11, s14, {wn*16*128}')
    a(f's_add_u32 s11, s11, {BM*128}')
    for w in range(nwin):
        for ks in range(2):
            a(f'v_add_u32 v{RA+2*w+ks}, s10, v{6+ks}')
            a(f'v_add_u32 v{RBb+2*w+ks}, s11, v{6+ks}')
            if w:
                a(f'v_add_u32 v{RA+2*w+ks}, {65536*w}, v{RA+2*w+ks}')
                a(f'v_add_u32 v{RBb+2*w+ks}, {65536*w}, v{RBb+2*w+ks}')
    FR = 40
    nfr = wm + wn
    ACC = FR + 2 * nfr * 4
    for i in range(wm * wn * 4):
        a(f'v_mov_b32 v{ACC+i}, 0')
    for st in range(nst):
        later = min(NS - 2, nst - 1 - st)
        a(f's_waitcnt vmcnt({later*npw})')
        a('s_barrier')
        if st in (0, 1, nst // 2, nst - 1): stamp(a)
        if st + NS - 1 < nst: issue(st + NS - 1)
        buf = (st % NS) * STG
        for ks in range(2):
            for i in range(wm):
                off = buf + i * 2048
                w = off >> 16
                a(f'ds_read_b128 v[{FR+(ks*nfr+i)*4}:{FR+(ks*nfr+i)*4+3}], v{RA+2*w+ks} offset:{off&65535}')
            for j in range(wn):
                off = buf + j * 2048
                w = off >> 16
                a(f'ds_read_b128 v[{FR+(ks*nfr+wm+j)*4}:{FR+(ks*nfr+wm+j)*4+3}], v{RBb+2*w+ks} offset:{off&65535}')
        for ks in range(2):
            a(f's_waitcnt lgkmcnt({nfr if ks == 0 else 0})')
            for i in range(wm):
                for j in range(wn):
                    ac = ACC + 4 * (i * wn + j)
                    fa = FR + (ks * nfr + i) * 4; fb = FR + (ks * nfr + wm + j) * 4
                    a(f'v_mfma_f32_16x16x32_bf16 v[{ac}:{ac+3}], v[{fa}:{fa+3}], v[{fb}:{fb+3}], v[{ac}:{ac+3}]')
    stamp(a)
    a(f's_mov_b32 s12, {ldo}')
    a('v_mul_lo_u32 v2, v5, s12')
    a('v_lshl_add_u32 v2, v3, 3, v2')
    a(f's_mul_i32 s10, s14, {wn*16}')
    a('s_add_u32 s10, s10, s7          ; n base')
    a(f's_mul_i32 s11, s13, {wm*16}')
    a('s_add_u32 s11, s11, s6          ; m base')
    a(f's_mul_i32 s15, s10, {ldo}')
    a('s_lshl_b32 s11, s11, 1')
    a('s_add_u32 s15, s15, s11')
    T = FR
    if kind == 'g2':
        a('s_mov_b32 s12, 3072')
        a('v_mul_lo_u32 v4, v5, s12')
        a('v_lshl_add_u32 v4, v3, 3, v4')
        a('s_mul_i32 s72, s10, 3072')
        a('s_add_u32 s72, s72, s11')
        a('v_lshlrev_b32 v6, 1, v5')
        a('s_lshl_b32 s73, s10, 1')
        ZR = ACC + wm * wn * 4
        BR = ZR + wm * wn * 2
        for j in range(wn):
            for i in range(wm):
                r = ZR + 2 * (i * wn + j)
                a(f'buffer_load_dwordx2 v[{r}:{r+1}], v4, s[56:59], s72 offen offset:{32*i}')
            a(f'buffer_load_ushort v{BR+j}, v6, s[60:63], s73 offen offset:{32*j}')
            if j + 1 < wn: a(f's_add_u32 s72, s72, {16*3072}')
        top = BR + wn
    elif kind == 'g3':
        ZR = ACC + wm * wn * 4
        a('s_mov_b32 s72, s15')
        for j in range(wn):
            for i in range(wm):
                r = ZR + 2 * (i * wn + j)
                a(f'buffer_load_dwordx2 v[{r}:{r+1}], v2, s[56:59], s72 offen offset:{32*i}')
            if j + 1 < wn: a(f's_add_u32 s72, s72, {16*ldo}')
        top = ZR + wm * wn * 2
    else:
        top = ACC + wm * wn * 4
    a('s_nop 7')
    a('s_waitcnt vmcnt(0)')
    for j in range(wn):
        if kind == 'g2':
            a(f'v_lshlrev_b32 v{BR+j}, 16, v{BR+j}')
        for i in range(wm):
            ac = ACC + 4 * (i * wn + j)
            rb2(a, ac, ac + 1, T)
            rb2(a, ac + 2, ac + 3, T + 1)
            if kind == 'g1':
                c1 = -2.0 * 1.4426950408889634 * 0.7978845608028654
                c2 = c1 * 0.044715
                import struct
                h = lambda f: '0x%08x' % struct.unpack('<I', struct.pack('<f', f))[0]
                a(f's_mov_b32 s74, {h(c1)}')
                for x in range(4):
                    a(f'v_mul_f32 v{T+4+x}, v{ac+x}, v{ac+x}')
                for x in range(4):
                    a(f'v_mul_f32 v{T+4+x}, {h(c2)}, v{T+4+x}')
                for x in range(4):
                    a(f'v_add_f32 v{T+4+x}, s74, v{T+4+x}')
                for x in range(4):
                    a(f'v_mul_f32 v{T+4+x}, v{T+4+x}, v{ac+x}')
                for x in range(4):
                    a(f'v_exp_f32 v{T+4+x}, v{T+4+x}')
                a('s_nop 0')
                for x in range(4):
                    a(f'v_add_f32 v{T+4+x}, 1.0, v{T+4+x}')
                for x in range(4):
                    a(f'v_rcp_f32 v{T+4+x}, v{T+4+x}')
                a('s_nop 0')
                for x in range(4):
                    a(f'v_mul_f32 v{ac+x}, v{ac+x}, v{T+4+x}')
            elif kind == 'g2':
                r = ZR + 2 * (i * wn + j)
                for x in range(4):
                    a(f'v_add_f32 v{ac+x}, v{ac+x}, v{BR+j}')
                rb2(a, ac, ac + 1, T)
                rb2(a, ac + 2, ac + 3, T + 1)
                unpack(a, T + 4, T + 5, r)
                unpack(a, T + 6, T + 7, r + 1)
                for x in range(4):
                    a(f'v_mul_f32 v{ac+x}, v{ac+x}, v{T+4+x}')
            else:
                r = ZR + 2 * (i * wn + j)
                unpack(a, T + 4, T + 5, r)
                unpack(a, T + 6, T + 7, r + 1)
                for x in range(4):
                    a(f'v_add_f32 v{ac+x}, v{ac+x}, v{T+4+x}')
            a(f'v_cvt_pk_bf16_f32 v{ac}, v{ac}, v{ac+1}')
            a(f'v_cvt_pk_bf16_f32 v{ac+1}, v{ac+2}, v{ac+3}')
            a(f'buffer_store_dwordx2 v[{ac}:{ac+1}], v2, s[52:55], s15 offen offset:{32*i}')
        if j + 1 < wn: a(f's_add_u32 s15, s15, {16*ldo}')
    if STAMP:
        stamp(a)
        a('s_waitcnt vmcnt(0)')
        stamp(a)
        stamp_flush(a, 37)
    a.label(Lend)
    a.end_kernel(name, 256 if STAMP else max(top, 64), 102 if STAMP else 80)
    return (name, ntm * ntn, 256, NS * STG)


def gen_gemm2(a, name, kind, BM, BN, K, WM, WN, KS, NS, ntm, ntn, ldA, ldB, final=False):
    assert WM * WN * KS == 8
    wm = BM // WM // 16; wn = BN // WN // 16
    nst = K // 64
    STG = (BM + BN) * 128
    ngA = BM // 8; ngB = BN // 8
    slots = []
    for g0 in range(0, ngA, 8): slots.append(('A', g0, min(8, ngA - g0)))
    for g0 in range(0, ngB, 8): slots.append(('B', g0, min(8, ngB - g0)))
    npw = sum(1 for s_ in slots if s_[2] == 8)
    a.begin_kernel(name)
    Lend = a.newlabel('Lend')
    a(f's_cmp_ge_u32 s2, {ntm*ntn}')
    a(f's_cbranch_scc1 {Lend}')
    stamp_reset(); stamp(a)
    load_ptrs(a)
    a('v_mov_b32 v23, v0              ; tid')
    a('v_lshrrev_b32 v1, 6, v0')
    a('v_and_b32 v0, 63, v0')
    a('s_nop 0')
    a('v_readfirstlane_b32 s3, v1     ; wave')
    a('s_and_b32 s10, s2, 7')
    a('s_lshr_b32 s11, s2, 3')
    lg = ntm.bit_length() - 1
    a(f's_and_b32 s4, s11, {ntm-1}      ; mt')
    a(f's_lshr_b32 s5, s11, {lg}')
    a(f's_lshl_b32 s10, s10, {5-lg}')
    a('s_add_u32 s5, s5, s10')
    a(f's_mul_i32 s6, s4, {BM}          ; m0')
    a(f's_mul_i32 s7, s5, {BN}          ; n0')
    a(f's_mul_i32 s8, s6, {ldA}         ; A soffset')
    a(f's_mul_i32 s9, s7, {ldB}         ; B soffset')
    a('v_lshrrev_b32 v2, 3, v0        ; l>>3')
    a('v_lshrrev_b32 v3, 4, v0        ; l>>4')
    a('v_and_b32 v4, 7, v0            ; l&7')
    VS = 8; SS = 64
    for i, (op, g0, nw) in enumerate(slots):
        ld = ldA if op == 'A' else ldB
        a(f's_add_u32 s10, s3, {g0}')
        a('s_lshl_b32 s11, s10, 2')
        a('v_add_u32 v5, s11, v3')
        a('v_and_b32 v5, 7, v5')
        a('v_xor_b32 v5, v5, v4')
        a('s_lshl_b32 s11, s10, 3')
        a('v_add_u32 v6, s11, v2          ; row')
        a(f's_mov_b32 s12, {ld}')
        a('v_mul_lo_u32 v6, v6, s12')
        a(f'v_lshl_add_u32 v{VS+i}, v5, 4, v6')
        a(f's_lshl_b32 s{SS+i}, s10, 10')
        if op == 'B': a(f's_add_u32 s{SS+i}, s{SS+i}, {BM*128}')
    a('s_and_b32 s10, s3, 3')
    a('s_lshr_b32 s75, s3, 2')
    if KS == 2:
        if WN == 4:   a('s_mov_b32 s13, 0'); a('s_mov_b32 s14, s10')
        elif WN == 2: a('s_lshr_b32 s13, s10, 1'); a('s_and_b32 s14, s10, 1')
        else:         a('s_mov_b32 s13, s10'); a('s_mov_b32 s14, 0')
    else:
        assert WM == 2 and WN == 4
        a('s_mov_b32 s13, s75'); a('s_mov_b32 s14, s10')
    a('s_waitcnt lgkmcnt(0)')
    stamp(a)
    if kind == 'g1':
        srd_ws(a, 44, WINT, D * F * 2); srd_ws(a, 48, HH, SZ_SD); srd_ws(a, 52, ZZ, S * F * 2); ldo = 3072
    elif kind == 'g2':
        srd_ws(a, 44, Z2NT, SZ_Z2); srd_ptr(a, 48, P_WSP, S * S * 2); srd_ws(a, 52, PP, S * FH * 2); ldo = 1536
        srd_ws(a, 56, ZZ, S * F * 2); srd_ptr(a, 60, P_BSP, S * 2)
    else:
        srd_ws(a, 44, WOUTT, FH * D * 2); srd_ws(a, 48, PP, S * FH * 2); ldo = 1280
        if final: srd_ptr(a, 52, P_OUT, SZ_SD)
        else: srd_ws(a, 52, X2, SZ_SD)
        srd_ws(a, 56, X1, SZ_SD)
    def issue(st):
        buf = (st % NS) * STG
        for i, (op, g0, nw) in enumerate(slots):
            Ls = None
            if nw < 8:
                Ls = a.newlabel('Lsk')
                a(f's_cmp_ge_u32 s3, {nw}')
                a(f's_cbranch_scc1 {Ls}')
            a(f's_add_u32 m0, s{SS+i}, {buf}')
            a('s_nop 0')
            if op == 'A': a(f'buffer_load_dwordx4 v{VS+i}, s[44:47], s8 offen lds')
            else:         a(f'buffer_load_dwordx4 v{VS+i}, s[48:51], s9 offen lds')
            if Ls: a.label(Ls)
        a('s_add_u32 s8, s8, 128')
        a('s_add_u32 s9, s9, 128')
    for st in range(0, min(NS - 1, nst)):
        issue(st)
    T_ = wm * wn
    tiles = [(i, j) for i in range(wm) for j in range(wn)]
    if KS == 2:
        h = (T_ + 1) // 2
        keep = [tiles[:h], tiles[h:]]
    else:
        keep = [tiles]
    nwin = (NS * STG + 65535) // 65536
    RA = 24; RBb = RA + 2 * nwin
    FR = 40
    nfr = wm + wn
    nks = 2 if KS == 1 else 1
    ACC = FR + max(nks * nfr * 4, 24)
    CPR = BM // 8
    NCH = BN * CPR
    NR = (NCH + 511) // 512
    RS = BM * 2 + 16
    TOFF = 65536
    OLDS = ACC + T_ * 4
    OGL = OLDS + NR
    ZR = (OGL + NR + 3) // 4 * 4
    BR = ZR + 4 * NR
    top = BR + wn
    magic = {12: 43691, 10: 52429}[CPR]
    a('v_and_b32 v5, 15, v0')
    a(f's_mul_i32 s15, s7, {ldo}')
    a('s_lshl_b32 s11, s6, 1')
    a('s_add_u32 s15, s15, s11')
    if kind == 'g2':
        a('s_mul_i32 s72, s7, 3072')
        a('s_add_u32 s72, s72, s11')
    for r in range(NR):
        a(f'v_add_u32 v6, {512*r}, v23')
        a(f'v_mul_u32_u24 v7, {magic}, v6')
        a('v_lshrrev_b32 v7, 19, v7       ; row')
        a(f'v_mul_u32_u24 v20, {CPR}, v7')
        a('v_sub_u32 v20, v6, v20         ; c')
        a(f'v_mul_u32_u24 v{OLDS+r}, {RS}, v7')
        a(f'v_lshl_add_u32 v{OLDS+r}, v20, 4, v{OLDS+r}')
        a(f'v_add_u32 v{OLDS+r}, {TOFF}, v{OLDS+r}')
        a(f'v_mul_u32_u24 v{OGL+r}, {ldo}, v7')
        a(f'v_lshl_add_u32 v{OGL+r}, v20, 4, v{OGL+r}')
        if kind == 'g2':
            a(f'v_mul_u32_u24 v21, 3072, v7')
            a('v_lshl_add_u32 v21, v20, 4, v21')
        if 512 * (r + 1) > NCH:
            a(f'v_cmp_gt_u32 vcc, {NCH}, v6')
            a('v_mov_b32 v22, 0x7ffffff0')
            a('s_nop 0')
            a(f'v_cndmask_b32 v{OGL+r}, v22, v{OGL+r}, vcc')
            if kind == 'g2': a('v_cndmask_b32 v21, v22, v21, vcc')
            a(f'v_mov_b32 v22, {TOFF}')
            a(f'v_cndmask_b32 v{OLDS+r}, v22, v{OLDS+r}, vcc')
        if kind == 'g2':
            a(f'buffer_load_dwordx4 v[{ZR+4*r}:{ZR+4*r+3}], v21, s[56:59], s72 offen')
        elif kind == 'g3':
            a(f'buffer_load_dwordx4 v[{ZR+4*r}:{ZR+4*r+3}], v{OGL+r}, s[56:59], s15 offen')
    npre = NR if kind != 'g1' else 0
    if kind == 'g2':
        a(f's_mul_i32 s10, s14, {wn*16}')
        a('s_add_u32 s10, s10, s7          ; n base')
        a('s_lshl_b32 s73, s10, 1')
        a('v_lshlrev_b32 v22, 1, v5')
        for j in range(wn):
            a(f'buffer_load_ushort v{BR+j}, v22, s[60:63], s73 offen offset:{32*j}')
        npre += wn
    a(f's_mul_i32 s10, s14, {wn*16*RS}')
    a(f's_mul_i32 s11, s13, {wm*16*2}')
    a('s_add_u32 s10, s10, s11')
    a(f's_add_u32 s10, s10, {TOFF}')
    a(f'v_mul_u32_u24 v20, {RS}, v5')
    a('v_lshl_add_u32 v20, v3, 3, v20')
    a('v_add_u32 v20, s10, v20')
    a('v_lshrrev_b32 v6, 1, v5')
    a('v_xor_b32 v6, v6, v3')
    a('v_lshlrev_b32 v6, 4, v6')
    a('v_lshl_add_u32 v6, v5, 7, v6')
    if KS == 2:
        a('s_lshl_b32 s10, s75, 6')
        a('v_xor_b32 v6, s10, v6')
    else:
        a('v_xor_b32 v7, 64, v6           ; ks=1')
    a(f's_mul_i32 s10, s13, {wm*16*128}')
    a(f's_mul_i32 s11, s14, {wn*16*128}')
    a(f's_add_u32 s11, s11, {BM*128}')
    for w in range(nwin):
        for ks in range(nks):
            a(f'v_add_u32 v{RA+2*w+ks}, s10, v{6+ks}')
            a(f'v_add_u32 v{RBb+2*w+ks}, s11, v{6+ks}')
            if w:
                a(f'v_add_u32 v{RA+2*w+ks}, {65536*w}, v{RA+2*w+ks}')
                a(f'v_add_u32 v{RBb+2*w+ks}, {65536*w}, v{RBb+2*w+ks}')
    for i in range(T_ * 4):
        a(f'v_mov_b32 v{ACC+i}, 0')
    for st in range(nst):
        later = min(NS - 2, nst - 1 - st)
        extra = npre if st < NS - 1 and st == 0 else 0
        cnt = later * npw + (npre if st == 0 else 0)
        a(f's_waitcnt vmcnt({cnt})')
        a('s_barrier')
        if st in (0, 1, nst // 2, nst - 1): stamp(a)
        doiss = st + NS - 1 < nst
        if doiss:
            L1 = a.newlabel('Le')
            a('s_cmp_lg_u32 s75, 0')
            a(f's_cbranch_scc1 {L1}')
            issue(st + NS - 1)
            a.label(L1)
        buf = (st % NS) * STG
        for ks in range(nks):
            for i in range(wm):
                off = buf + i * 2048
                w = off >> 16
                a(f'ds_read_b128 v[{FR+(ks*nfr+i)*4}:{FR+(ks*nfr+i)*4+3}], v{RA+2*w+ks} offset:{off&65535}')
            for j in range(wn):
                off = buf + j * 2048
                w = off >> 16
                a(f'ds_read_b128 v[{FR+(ks*nfr+wm+j)*4}:{FR+(ks*nfr+wm+j)*4+3}], v{RBb+2*w+ks} offset:{off&65535}')
        for ks in range(nks):
            a(f's_waitcnt lgkmcnt({nfr if ks < nks-1 else 0})')
            for i in range(wm):
                for j in range(wn):
                    ac = ACC + 4 * (i * wn + j)
                    fa = FR + (ks * nfr + i) * 4; fb = FR + (ks * nfr + wm + j) * 4
                    a(f'v_mfma_f32_16x16x32_bf16 v[{ac}:{ac+3}], v[{fa}:{fa+3}], v[{fb}:{fb+3}], v[{ac}:{ac+3}]')
        if doiss:
            L2 = a.newlabel('Ll')
            a('s_cmp_eq_u32 s75, 0')
            a(f's_cbranch_scc1 {L2}')
            issue(st + NS - 1)
            a.label(L2)
    stamp(a)
    T = FR
    def epi1(tl):
        for (i, j) in tl:
            ac = ACC + 4 * (i * wn + j)
            if kind == 'g3':
                a(f'v_cvt_pk_bf16_f32 v{ac}, v{ac}, v{ac+1}')
                a(f'v_cvt_pk_bf16_f32 v{ac+1}, v{ac+2}, v{ac+3}')
            else:
                rb2(a, ac, ac + 1, T)
                rb2(a, ac + 2, ac + 3, T + 1)
                if kind == 'g1':
                    for x in range(4):
                        a(f'v_mul_f32 v{T+4+x}, v{ac+x}, v{ac+x}')
                    for x in range(4):
                        a(f'v_fma_f32 v{T+4+x}, v{T+4+x}, s77, v{T+3}')
                    for x in range(4):
                        a(f'v_mul_f32 v{T+4+x}, v{T+4+x}, v{ac+x}')
                    for x in range(4):
                        a(f'v_exp_f32 v{T+4+x}, v{T+4+x}')
                    a('s_nop 0')
                    for x in range(4):
                        a(f'v_add_f32 v{T+4+x}, 1.0, v{T+4+x}')
                    for x in range(4):
                        a(f'v_rcp_f32 v{T+4+x}, v{T+4+x}')
                    a('s_nop 0')
                    for x in range(4):
                        a(f'v_mul_f32 v{ac+x}, v{ac+x}, v{T+4+x}')
                else:
                    for x in range(4):
                        a(f'v_add_f32 v{ac+x}, v{ac+x}, v{BR+j}')
                a(f'v_cvt_pk_bf16_f32 v{ac}, v{ac}, v{ac+1}')
                a(f'v_cvt_pk_bf16_f32 v{ac+1}, v{ac+2}, v{ac+3}')
            a(f'ds_write_b64 v20, v[{ac}:{ac+1}] offset:{16*j*RS+32*i}')
    if kind == 'g1':
        c1 = -2.0 * 1.4426950408889634 * 0.7978845608028654
        a(f's_mov_b32 s77, {fhex(c1*0.044715)}')
        a(f'v_mov_b32 v{T+3}, {fhex(c1)}')
    if kind == 'g2':
        for j in range(wn):
            a(f'v_lshlrev_b32 v{BR+j}, 16, v{BR+j}')
    a('s_barrier')
    a('s_nop 4')
    if KS == 1:
        epi1(tiles)
    else:
        a('v_lshlrev_b32 v6, 4, v0')
        a(f's_mul_i32 s10, s3, {T_*1024}')
        a('s_xor_b32 s11, s3, 4')
        a(f's_mul_i32 s11, s11, {T_*1024}')
        a('v_add_u32 v7, s11, v6')
        a('v_add_u32 v6, s10, v6')
        Lk1 = a.newlabel('Lk1'); Lkd = a.newlabel('Lkd')
        a('s_cmp_lg_u32 s75, 0')
        a(f's_cbranch_scc1 {Lk1}')
        for ksi in range(2):
            if ksi == 1: a.label(Lk1)
            send = keep[1 - ksi]; kp = keep[ksi]
            for (i, j) in send:
                ac = ACC + 4 * (i * wn + j)
                a(f'ds_write_b128 v6, v[{ac}:{ac+3}] offset:{1024*(i*wn+j)}')
            a('s_waitcnt lgkmcnt(0)')
            a('s_barrier')
            for n_, (i, j) in enumerate(kp):
                a(f'ds_read_b128 v[{T+8+4*n_}:{T+11+4*n_}], v7 offset:{1024*(i*wn+j)}')
            a('s_waitcnt lgkmcnt(0)')
            for n_, (i, j) in enumerate(kp):
                ac = ACC + 4 * (i * wn + j)
                for x in range(4):
                    a(f'v_add_f32 v{ac+x}, v{ac+x}, v{T+8+4*n_+x}')
            epi1(kp)
            if ksi == 0: a(f's_branch {Lkd}')
        a.label(Lkd)
    a('s_waitcnt lgkmcnt(0)')
    a('s_barrier')
    for r in range(NR):
        a(f'ds_read_b128 v[{ACC+4*r}:{ACC+4*r+3}], v{OLDS+r}')
    for r in range(NR):
        a(f's_waitcnt lgkmcnt({NR-1-r})')
        if kind != 'g1':
            for x in range(4):
                unpack(a, T, T + 1, ACC + 4 * r + x)
                unpack(a, T + 2, T + 3, ZR + 4 * r + x)
                op = 'v_mul_f32' if kind == 'g2' else 'v_add_f32'
                a(f'{op} v{T}, v{T}, v{T+2}')
                a(f'{op} v{T+1}, v{T+1}, v{T+3}')
                a(f'v_cvt_pk_bf16_f32 v{ACC+4*r+x}, v{T}, v{T+1}')
        a(f'buffer_store_dwordx4 v[{ACC+4*r}:{ACC+4*r+3}], v{OGL+r}, s[52:55], s15 offen')
    if STAMP:
        stamp(a)
        a('s_waitcnt vmcnt(0)')
        stamp(a)
        stamp_flush(a, 37)
    a.label(Lend)
    a.end_kernel(name, 256 if STAMP else max(top, 64), 102 if STAMP else 80)
    return (name, ntm * ntn, 512, max(NS * STG, TOFF + BN * RS))

def main():
    global STAMP
    if len(sys.argv) > 2 and sys.argv[2] == 'stamp': STAMP = True
    a = Asm()
    prep = gen_prep(a)
    conv = gen_conv(a)
    e1 = gen_e(a, True)
    e2 = gen_e(a, False)
    ln2 = gen_ln2(a)
    g1 = gen_gemm2(a, 'g1_kernel', 'g1', 96, 128, 640, 2, 4, 1, 5, 16, 16, 1280, 1280)
    g2 = gen_gemm2(a, 'g2_kernel', 'g2', 96, 64, 2048, 2, 2, 2, 7, 8, 32, LDT, 4096)
    g3 = gen_gemm2(a, 'g3_kernel', 'g3', 80, 64, 768, 1, 4, 2, 8, 8, 32, 1536, 1536)
    g3f = gen_gemm2(a, 'g3f_kernel', 'g3', 80, 64, 768, 1, 4, 2, 8, 8, 32, 1536, 1536, final=True)
    launches = [prep, conv, e1, g1, ln2, g2, g3, e2, g1, ln2, g2, g3f]
    hdr = open('interleave_layers__ssm_conv_h3__mixer_gmlp__prompt.s.ref').read().split('; Override launch')[0]
    txt = a.text(launches, hdr)
    out = sys.argv[1] if len(sys.argv) > 1 else 'interleave_layers__ssm_conv_h3__mixer_gmlp__prompt.s'
    open(out, 'w').write(txt)
    print('wrote', out, len(txt), 'bytes')

if __name__ == '__main__':
    main()
```

```python
import sys
sys.path.insert(0, 'dev')
from asmlib import *
import gen
from gen import *

CNT   = 0x2200000
NCNT  = 512
ST2   = 0x2210000
STX   = 0x2310000
ZERO_BYTES = 0x210000
Z2NTB = 0x2500000
Z2 = [Z2NT, Z2NTB]

PRIO = False
FAST = False
def SC(): return '' if FAST else 'sc1'

class Gemm:
    def __init__(self, a, BM, BN, K, WM, WN, KS, NS, ldA, ldB, srdA, srdB):
        self.a = a; self.BM = BM; self.BN = BN; self.K = K; self.WM = WM; self.WN = WN; self.KS = KS; self.NS = NS
        self.ldA = ldA; self.ldB = ldB; self.srdA = srdA; self.srdB = srdB
        assert WM * WN * KS == 8
        self.wm = BM // WM // 16; self.wn = BN // WN // 16
        self.nst = K // 64
        self.STG = (BM + BN) * 128
        ngA = BM // 8; ngB = BN // 8
        self.slots = []
        for g0 in range(0, ngA, 8): self.slots.append(('A', g0, min(8, ngA - g0)))
        for g0 in range(0, ngB, 8): self.slots.append(('B', g0, min(8, ngB - g0)))
        self.npw = sum(1 for s_ in self.slots if s_[2] == 8)
        self.nA = sum(1 for s_ in self.slots if s_[2] == 8 and s_[0] == 'A')
        self.nB = sum(1 for s_ in self.slots if s_[2] == 8 and s_[0] == 'B')
        self.VS = 8; self.SS = 64
        self.nwin = (NS * self.STG + 65535) // 65536
        self.RA = 24; self.RB = self.RA + 2 * self.nwin
        self.FR = 40
        self.nfr = self.wm + self.wn
        self.nks = 2 if KS == 1 else 1
        self.ACC = self.FR + max(self.nks * self.nfr * 4, 24)
        self.T_ = self.wm * self.wn
        self.tiles = [(i, j) for i in range(self.wm) for j in range(self.wn)]
        h = (self.T_ + 1) // 2
        self.keep = [self.tiles[:h], self.tiles[h:]] if KS == 2 else [self.tiles]
        self.free = self.ACC + self.T_ * 4
        self.bcache = ''
        self.arow_split = None
        self.a_tile_off = None
    def setup(self):
        a = self.a
        a(f's_mul_i32 s8, s6, {self.ldA}         ; A soffset')
        a(f's_mul_i32 s9, s7, {self.ldB}         ; B soffset')
        for i, (op, g0, nw) in enumerate(self.slots):
            ld = self.ldA if op == 'A' else self.ldB
            a(f's_add_u32 s10, s3, {g0}')
            a('s_lshl_b32 s11, s10, 2')
            a('v_add_u32 v6, s11, v3')
            a('v_and_b32 v6, 7, v6')
            a('v_xor_b32 v6, v6, v4')
            a('s_lshl_b32 s11, s10, 3')
            if op == 'A' and self.arow_split:
                gs, add = self.arow_split
                a(f's_cmp_ge_u32 s10, {gs}')
                a(f's_cselect_b32 s12, {add}, 0')
                a('s_add_u32 s11, s11, s12')
            a('v_add_u32 v7, s11, v2          ; row')
            a(f's_mov_b32 s12, {ld}')
            a('v_mul_lo_u32 v7, v7, s12')
            a(f'v_lshl_add_u32 v{self.VS+i}, v6, 4, v7')
            a(f's_lshl_b32 s{self.SS+i}, s10, 10')
            if op == 'B': a(f's_add_u32 s{self.SS+i}, s{self.SS+i}, {self.BM*128}')
        a('s_and_b32 s10, s3, 3')
        WN, WM, KS = self.WN, self.WM, self.KS
        if KS == 2:
            if WN == 4:   a('s_mov_b32 s13, 0'); a('s_mov_b32 s14, s10')
            elif WN == 2: a('s_lshr_b32 s13, s10, 1'); a('s_and_b32 s14, s10, 1')
            else:         a('s_mov_b32 s13, s10'); a('s_mov_b32 s14, 0')
        elif WM == 2 and WN == 4:
            a('s_mov_b32 s13, s75'); a('s_mov_b32 s14, s10')
        elif WM == 4 and WN == 2:
            a('s_and_b32 s13, s3, 1')
            a('s_lshl_b32 s11, s75, 1')
            a('s_add_u32 s13, s13, s11         ; wmi = (w&1) + 2*(w>>2)')
            a('s_lshr_b32 s14, s10, 1          ; wni = (w>>1)&1')
        else: assert 0
        a('v_lshrrev_b32 v6, 1, v5')
        a('v_xor_b32 v6, v6, v3')
        a('v_lshlrev_b32 v6, 4, v6')
        a('v_lshl_add_u32 v6, v5, 7, v6')
        if KS == 2:
            a('s_lshl_b32 s10, s75, 6')
            a('v_xor_b32 v6, s10, v6')
        else:
            a('v_xor_b32 v7, 64, v6           ; ks=1')
        a(f's_mul_i32 s10, s13, {self.a_wave_stride if self.a_tile_off else self.wm*16*128}')
        a(f's_mul_i32 s11, s14, {self.wn*16*128}')
        a(f's_add_u32 s11, s11, {self.BM*128}')
        for w in range(self.nwin):
            for ks in range(self.nks):
                a(f'v_add_u32 v{self.RA+2*w+ks}, s10, v{6+ks}')
                a(f'v_add_u32 v{self.RB+2*w+ks}, s11, v{6+ks}')
                if w:
                    a(f'v_add_u32 v{self.RA+2*w+ks}, {65536*w}, v{self.RA+2*w+ks}')
                    a(f'v_add_u32 v{self.RB+2*w+ks}, {65536*w}, v{self.RB+2*w+ks}')
    def issue(self, st, parts='AB'):
        a = self.a
        buf = (st % self.NS) * self.STG
        for i, (op, g0, nw) in enumerate(self.slots):
            if op not in parts: continue
            Ls = None
            if nw < 8:
                Ls = a.newlabel('Lsk')
                a(f's_cmp_ge_u32 s3, {nw}')
                a(f's_cbranch_scc1 {Ls}')
            a(f's_add_u32 m0, s{self.SS+i}, {buf}')
            a('s_nop 0')
            if op == 'A': a(f'buffer_load_dwordx4 v{self.VS+i}, s[{self.srdA}:{self.srdA+3}], s8 offen lds')
            else:         a(f'buffer_load_dwordx4 v{self.VS+i}, s[{self.srdB}:{self.srdB+3}], s9 offen {self.bcache} lds')
            if Ls: a.label(Ls)
        if 'A' in parts: a('s_add_u32 s8, s8, 128')
        if 'B' in parts: a('s_add_u32 s9, s9, 128')
    def prologue(self, parts='AB'):
        for st in range(min(self.NS - 1, self.nst)): self.issue(st, parts)
    def zero_acc(self):
        for i in range(self.T_ * 4): self.a(f'v_mov_b32 v{self.ACC+i}, 0')
    def mainloop(self, first_extra=0, swap=False, split_prologue=False):
        a = self.a; NS = self.NS; nst = self.nst; npw = self.npw
        wm, wn, nfr, nks, FR, ACC = self.wm, self.wn, self.nfr, self.nks, self.FR, self.ACC
        for st in range(nst):
            later = min(NS - 2, nst - 1 - st)
            if split_prologue and st < NS - 1:
                npro = min(NS - 1, nst)
                cnt = (npro - 1 - st) * self.nB + max(0, min(st, nst - npro)) * npw
            else:
                cnt = later * npw + (first_extra if st == 0 else 0)
            a(f's_waitcnt vmcnt({cnt})')
            a('s_barrier')
            doiss = st + NS - 1 < nst
            if doiss:
                L1 = a.newlabel('Le')
                a('s_cmp_lg_u32 s75, 0')
                a(f's_cbranch_scc1 {L1}')
                self.issue(st + NS - 1)
                a.label(L1)
            buf = (st % NS) * self.STG
            for ks in range(nks):
                for i in range(wm):
                    off = buf + (self.a_tile_off[i] if self.a_tile_off else i * 2048); w = off >> 16
                    a(f'ds_read_b128 v[{FR+(ks*nfr+i)*4}:{FR+(ks*nfr+i)*4+3}], v{self.RA+2*w+ks} offset:{off&65535}')
                for j in range(wn):
                    off = buf + j * 2048; w = off >> 16
                    a(f'ds_read_b128 v[{FR+(ks*nfr+wm+j)*4}:{FR+(ks*nfr+wm+j)*4+3}], v{self.RB+2*w+ks} offset:{off&65535}')
            for ks in range(nks):
                a(f's_waitcnt lgkmcnt({nfr if ks < nks-1 else 0})')
                for i in range(wm):
                    for j in range(wn):
                        ac = ACC + 4 * (i * wn + j)
                        fa = FR + (ks * nfr + i) * 4; fb = FR + (ks * nfr + wm + j) * 4
                        if swap is True or (swap and i in swap): fa, fb = fb, fa
                        a(f'v_mfma_f32_16x16x32_bf16 v[{ac}:{ac+3}], v[{fa}:{fa+3}], v[{fb}:{fb+3}], v[{ac}:{ac+3}]')
            if doiss:
                L2 = a.newlabel('Ll')
                a('s_cmp_eq_u32 s75, 0')
                a(f's_cbranch_scc1 {L2}')
                self.issue(st + NS - 1)
                a.label(L2)

def common_prologue(a):
    a('v_mov_b32 v23, v0              ; tid')
    a('v_lshrrev_b32 v1, 6, v0')
    a('v_and_b32 v0, 63, v0')
    a('s_nop 0')
    a('v_readfirstlane_b32 s3, v1     ; wave')
    a('v_lshrrev_b32 v2, 3, v0        ; l>>3')
    a('v_lshrrev_b32 v3, 4, v0        ; l>>4')
    a('v_and_b32 v4, 7, v0            ; l&7')
    a('v_and_b32 v5, 15, v0           ; l&15')
    a('s_lshr_b32 s75, s3, 2')
    a('s_and_b32 s10, s2, 7')
    a('s_lshr_b32 s11, s2, 3')
    a('s_and_b32 s4, s11, 7            ; member j')
    a('s_lshr_b32 s5, s11, 3')
    a('s_lshl_b32 s10, s10, 2')
    a('s_add_u32 s5, s5, s10')

def chunk_map(a, NRW, CPR, RS, TOFF, ldo, OLDS, OGL, extra=None):
    NCH = NRW * CPR
    NR = (NCH + 511) // 512
    for r in range(NR):
        a(f'v_add_u32 v6, {512*r}, v23')
        if CPR & (CPR - 1) == 0:
            sh = CPR.bit_length() - 1
            a(f'v_lshrrev_b32 v7, {sh}, v6')
            a(f'v_and_b32 v20, {CPR-1}, v6')
        else:
            magic = (1 << 19) // CPR + 1
            a(f'v_mul_u32_u24 v7, {magic}, v6')
            a('v_lshrrev_b32 v7, 19, v7       ; row')
            a(f'v_mul_u32_u24 v20, {CPR}, v7')
            a('v_sub_u32 v20, v6, v20         ; c')
        a(f'v_mul_u32_u24 v{OLDS+r}, {RS}, v7')
        a(f'v_lshl_add_u32 v{OLDS+r}, v20, 4, v{OLDS+r}')
        a(f'v_add_u32 v{OLDS+r}, {TOFF}, v{OLDS+r}')
        outs = [(OGL, ldo)] + (extra or [])
        for (rb_, ld) in outs:
            a(f'v_mul_u32_u24 v{rb_+r}, {ld}, v7')
            a(f'v_lshl_add_u32 v{rb_+r}, v20, 4, v{rb_+r}')
        if 512 * (r + 1) > NCH:
            a(f'v_cmp_gt_u32 vcc, {NCH}, v6')
            a('v_mov_b32 v22, 0x7ffffff0')
            a('s_nop 0')
            for (rb_, ld) in outs:
                a(f'v_cndmask_b32 v{rb_+r}, v22, v{rb_+r}, vcc')
            a(f'v_mov_b32 v22, {TOFF}')
            a(f'v_cndmask_b32 v{OLDS+r}, v22, v{OLDS+r}, vcc')
    return NR

def gelu4(a, ac, T):
    rb2(a, ac, ac + 1, T)
    rb2(a, ac + 2, ac + 3, T + 1)
    for x in (0, 2):
        a(f'v_pk_mul_f32 v[{T+4+x}:{T+5+x}], v[{ac+x}:{ac+x+1}], v[{ac+x}:{ac+x+1}]')
    for x in (0, 2):
        a(f'v_pk_fma_f32 v[{T+4+x}:{T+5+x}], v[{T+4+x}:{T+5+x}], s[78:79], v[{T+2}:{T+3}]')
    for x in (0, 2):
        a(f'v_pk_mul_f32 v[{T+4+x}:{T+5+x}], v[{T+4+x}:{T+5+x}], v[{ac+x}:{ac+x+1}]')
    for x in range(4):
        a(f'v_exp_f32 v{T+4+x}, v{T+4+x}')
    a('s_nop 0')
    for x in (0, 2):
        a(f'v_pk_add_f32 v[{T+4+x}:{T+5+x}], v[{T+4+x}:{T+5+x}], 1.0 op_sel_hi:[1,0]')
    for x in range(4):
        a(f'v_rcp_f32 v{T+4+x}, v{T+4+x}')
    a('s_nop 0')
    for x in (0, 2):
        a(f'v_pk_mul_f32 v[{ac+x}:{ac+x+1}], v[{ac+x}:{ac+x+1}], v[{T+4+x}:{T+5+x}]')

def gelu_consts(a, T):
    c1 = -2.0 * 1.4426950408889634 * 0.7978845608028654
    a(f's_mov_b32 s78, {fhex(c1*0.044715)}')
    a(f's_mov_b32 s79, {fhex(c1*0.044715)}')
    a(f'v_mov_b32 v{T+2}, {fhex(c1)}')
    a(f'v_mov_b32 v{T+3}, {fhex(c1)}')

def dpp_rowsum(a, regs):
    for n in (8, 4, 2, 1):
        if len(regs) < 3: a('s_nop 1')
        for r in regs:
            a(f'v_add_f32_dpp v{r}, v{r}, v{r} row_ror:{n} row_mask:0xf bank_mask:0xf')

def sync_signal(a, cnt_sreg, young=0):
    a(f's_waitcnt vmcnt({young})')
    a('s_barrier')
    L = a.newlabel('Lsg')
    a('s_cmp_lg_u32 s3, 0')
    a(f's_cbranch_scc1 {L}')
    a('v_mov_b32 v6, 0')
    a('v_mov_b32 v7, 1')
    a('s_mov_b64 s[88:89], exec')
    a('s_mov_b64 exec, 1')
    a(f'buffer_atomic_add v7, v6, s[84:87], s{cnt_sreg} offen {SC()}')
    a('s_mov_b64 exec, s[88:89]')
    a.label(L)

def sync_wait(a, cnt_sreg, n, pre=None, wave=0):
    L = a.newlabel('Lsw'); Lp = a.newlabel('Lsp')
    a(f's_cmp_lg_u32 s3, {wave}')
    a(f's_cbranch_scc1 {L}')
    a('v_mov_b32 v6, 0')
    if PRIO: a('s_setprio 3')
    a.label(Lp)
    a(f'buffer_load_dword v7, v6, s[84:87], s{cnt_sreg} offen sc1')
    a('s_waitcnt vmcnt(0)')
    a(f'v_cmp_gt_u32 vcc, {n}, v7')
    a(f's_cbranch_vccnz {Lp}')
    if PRIO: a('s_setprio 0')
    a.label(L)
    if pre: pre()
    a('s_barrier')

def phase_g1(a, layer, wait_cnt=None):
    srd_ws(a, 44, WINT, D * F * 2); srd_ws(a, 48, HH, SZ_SD)
    g = Gemm(a, 192, 64, 640, 4, 2, 1, 4, 1280, 1280, 44, 48)
    g.arow_split = (12, 768 - 96)
    a('s_mul_i32 s6, s4, 96')
    a('s_lshl_b32 s7, s5, 6')
    g.setup()
    split = wait_cnt is not None
    if split:
        g.bcache = 'sc1'
        sync_wait(a, wait_cnt, 8, pre=lambda: g.prologue('A'))
        stamp(a)
        g.prologue('B')
    else:
        g.prologue()
    g.zero_acc()
    T = g.FR; ACC = g.ACC; wm, wn = g.wm, g.wn
    TOFF = 65536; TOFF2 = 98304
    RS = 96 * 2 + 16; RS2 = 128 + 16
    OL1 = g.free; OG1 = OL1 + 2; OL2 = OG1 + 2; OG2 = OL2 + 2
    PB = (OG2 + 2 + 3) // 4 * 4
    CH = PB + 16
    srd_ws(a, 52, ZZ, S * F * 2)
    srd_ws(a, 60, Z2[layer], SZ_Z2)
    srd_ws(a, 56, ST2 + layer * 32 * 16384, 32 * 16384)
    NR1 = chunk_map(a, 64, 12, RS, TOFF, 3072, OL1, OG1)
    NR2 = chunk_map(a, 96, 8, RS2, TOFF2, LDT, OL2, OG2)
    a('s_mul_i32 s15, s7, 3072')
    a('s_lshl_b32 s11, s6, 1')
    a('s_add_u32 s15, s15, s11')
    a(f's_mul_i32 s72, s6, {LDT}')
    a('s_lshl_b32 s11, s7, 1')
    a('s_add_u32 s72, s72, s11')
    a('s_and_b32 s73, s13, 1')
    Lz2 = a.newlabel('Lz2'); Lj1 = a.newlabel('Lj1')
    a('s_cmp_lg_u32 s75, 0')
    a(f's_cbranch_scc1 {Lz2}')
    a(f's_mul_i32 s10, s14, {32*RS}')
    a('s_mul_i32 s11, s73, 96')
    a('s_add_u32 s10, s10, s11')
    a(f's_add_u32 s10, s10, {TOFF}')
    a(f'v_mul_u32_u24 v20, {RS}, v5')
    a('v_lshl_add_u32 v20, v3, 3, v20')
    a('v_add_u32 v20, s10, v20')
    g.mainloop(split_prologue=split)
    gelu_consts(a, T)
    a('s_nop 4')
    for (i, j) in g.tiles:
        ac = ACC + 4 * (i * wn + j)
        gelu4(a, ac, T)
        a(f'v_cvt_pk_bf16_f32 v{ac}, v{ac}, v{ac+1}')
        a(f'v_cvt_pk_bf16_f32 v{ac+1}, v{ac+2}, v{ac+3}')
    a(f's_branch {Lj1}')
    a.label(Lz2)
    a('s_setprio 2')
    a(f's_mul_i32 s10, s73, {48*RS2}')
    a('s_mul_i32 s11, s14, 64')
    a('s_add_u32 s10, s10, s11')
    a(f's_add_u32 s10, s10, {TOFF2}')
    a(f'v_mul_u32_u24 v20, {RS2}, v5')
    a('v_lshl_add_u32 v20, v3, 3, v20')
    a('v_add_u32 v20, s10, v20')
    g.mainloop(swap=True, split_prologue=split)
    stamp(a)
    gelu_consts(a, T)
    a('s_nop 4')
    for (i, j) in g.tiles:
        ac = ACC + 4 * (i * wn + j)
        gelu4(a, ac, T)
        rb2(a, ac, ac + 1, T)
        rb2(a, ac + 2, ac + 3, T + 1)
    SM = T + 8; M2 = T + 16
    for j in range(wn):
        for x in (0, 2):
            r = SM + 4 * j + x
            a(f'v_pk_add_f32 v[{r}:{r+1}], v[{ACC+4*j+x}:{ACC+4*j+x+1}], v[{ACC+4*(wn+j)+x}:{ACC+4*(wn+j)+x+1}]')
            a(f'v_pk_add_f32 v[{r}:{r+1}], v[{r}:{r+1}], v[{ACC+4*(2*wn+j)+x}:{ACC+4*(2*wn+j)+x+1}]')
    a('s_nop 1')
    dpp_rowsum(a, [SM + k for k in range(8)])
    for k in range(8):
        a(f'v_mul_f32 v{SM+k}, {fhex(1.0/48)}, v{SM+k}')
    for j in range(wn):
        for i in range(wm):
            ac = ACC + 4 * (i * wn + j)
            for x in (0, 2):
                a(f'v_pk_add_f32 v[{T+4+x}:{T+5+x}], v[{ac+x}:{ac+x+1}], v[{SM+4*j+x}:{SM+4*j+x+1}] neg_lo:[0,1] neg_hi:[0,1]')
            for x in (0, 2):
                r = M2 + 4 * j + x
                if i == 0: a(f'v_pk_mul_f32 v[{r}:{r+1}], v[{T+4+x}:{T+5+x}], v[{T+4+x}:{T+5+x}]')
                else: a(f'v_pk_fma_f32 v[{r}:{r+1}], v[{T+4+x}:{T+5+x}], v[{T+4+x}:{T+5+x}], v[{r}:{r+1}]')
    a('s_nop 1')
    dpp_rowsum(a, [M2 + k for k in range(8)])
    for j in range(wn):
        for x in range(4):
            a(f'v_mov_b32 v{PB+8*j+2*x}, v{SM+4*j+x}')
            a(f'v_mov_b32 v{PB+8*j+2*x+1}, v{M2+4*j+x}')
    a('s_lshl_b32 s10, s4, 1')
    a('s_add_u32 s10, s10, s73          ; part')
    a('s_lshl_b32 s10, s10, 9           ; *512')
    a('s_lshl_b32 s11, s5, 14           ; g*16384')
    a('s_add_u32 s10, s10, s11')
    a('s_lshl_b32 s11, s14, 8')
    a('s_add_u32 s10, s10, s11')
    a('v_lshlrev_b32 v6, 5, v3          ; q*32B')
    a('v_cmp_eq_u32 vcc, 0, v5')
    a('s_and_saveexec_b64 s[88:89], vcc')
    for j in range(wn):
        a(f'buffer_store_dwordx4 v[{PB+8*j}:{PB+8*j+3}], v6, s[56:59], s10 offen offset:{128*j} {SC()}')
        a(f'buffer_store_dwordx4 v[{PB+8*j+4}:{PB+8*j+7}], v6, s[56:59], s10 offen offset:{128*j+16} {SC()}')
    a('s_mov_b64 exec, s[88:89]')
    a.label(Lj1)
    cnt_reg(a, 92, 96 + 32 * layer)
    stamp(a)
    sync_signal(a, 92)
    stamp(a)
    Lj2 = a.newlabel('Lj2')
    a('s_cmp_lg_u32 s75, 0')
    a(f's_cbranch_scc1 {Lj2}')
    for (i, j) in g.tiles:
        ac = ACC + 4 * (i * wn + j)
        a(f'ds_write_b64 v20, v[{ac}:{ac+1}] offset:{16*j*RS+32*i}')
    a('s_waitcnt lgkmcnt(0)')
    a.label(Lj2)
    sync_wait(a, 92, 8)
    stamp(a)
    a('v_lshrrev_b32 v6, 4, v23')
    a('v_lshlrev_b32 v6, 3, v6')
    a('v_lshl_add_u32 v6, v5, 9, v6')
    a('s_lshl_b32 s11, s5, 14')
    G0 = PB
    a(f'buffer_load_dwordx2 v[{G0}:{G0+1}], v6, s[56:59], s11 offen sc1')
    a(f'buffer_load_dwordx2 v[{G0+2}:{G0+3}], v6, s[56:59], s11 offen offset:256 sc1')
    for r in range(NR1):
        a(f'ds_read_b128 v[{CH+4*r}:{CH+4*r+3}], v{OL1+r}')
    for r in range(NR1):
        a(f's_waitcnt lgkmcnt({NR1-1-r})')
        a(f'buffer_store_dwordx4 v[{CH+4*r}:{CH+4*r+3}], v{OG1+r}, s[52:55], s15 offen')
    a(f's_waitcnt vmcnt({NR1})')
    stamp(a)
    a(f'v_mov_b32 v{G0+4}, v{G0}')
    a(f'v_mov_b32 v{G0+5}, v{G0+2}')
    a('s_nop 1')
    dpp_rowsum(a, [G0 + 4, G0 + 5])
    a(f'v_mul_f32 v{G0+4}, {fhex(1.0/16)}, v{G0+4}')
    a(f'v_mul_f32 v{G0+5}, {fhex(1.0/16)}, v{G0+5}')
    a(f'v_sub_f32 v{G0}, v{G0}, v{G0+4}')
    a(f'v_sub_f32 v{G0+2}, v{G0+2}, v{G0+5}')
    a(f'v_mul_f32 v{G0}, v{G0}, v{G0}')
    a(f'v_mul_f32 v{G0+2}, v{G0+2}, v{G0+2}')
    a(f's_mov_b32 s10, {fhex(48.0)}')
    a(f'v_fma_f32 v{G0+1}, v{G0}, s10, v{G0+1}')
    a(f'v_fma_f32 v{G0+3}, v{G0+2}, s10, v{G0+3}')
    a('s_nop 1')
    dpp_rowsum(a, [G0 + 1, G0 + 3])
    a(f'v_mul_f32 v{G0+1}, {fhex(1.0/768)}, v{G0+1}')
    a(f'v_mul_f32 v{G0+3}, {fhex(1.0/768)}, v{G0+3}')
    rb2(a, G0 + 4, G0 + 5, T)
    rb2(a, G0 + 1, G0 + 3, T)
    a(f'v_add_f32 v{G0+1}, 0x3727c5ac, v{G0+1}')
    a(f'v_add_f32 v{G0+3}, 0x3727c5ac, v{G0+3}')
    rb2(a, G0 + 1, G0 + 3, T)
    a(f'v_sqrt_f32 v{G0+1}, v{G0+1}')
    a(f'v_sqrt_f32 v{G0+3}, v{G0+3}')
    a('s_nop 0')
    rb2(a, G0 + 1, G0 + 3, T)
    a(f'v_rcp_f32 v{G0+1}, v{G0+1}')
    a(f'v_rcp_f32 v{G0+3}, v{G0+3}')
    a(f'v_mov_b32 v{G0}, v{G0+4}')
    a(f'v_mov_b32 v{G0+2}, v{G0+5}')
    a('v_lshrrev_b32 v6, 4, v23')
    a('v_lshlrev_b32 v6, 3, v6')
    a(f'ds_write_b64 v6, v[{G0}:{G0+1}]')
    a(f'ds_write_b64 v6, v[{G0+2}:{G0+3}] offset:256')
    a('s_lshl_b32 s10, s14, 8')
    a('v_lshlrev_b32 v7, 5, v3')
    a('v_add_u32 v7, s10, v7            ; (wni*32 + 4q)*8')
    a('s_waitcnt lgkmcnt(0)')
    a('s_barrier')
    Lj3 = a.newlabel('Lj3')
    a('s_cmp_eq_u32 s75, 0')
    a(f's_cbranch_scc1 {Lj3}')
    for j in range(wn):
        a(f'ds_read_b128 v[{PB+8*j}:{PB+8*j+3}], v7 offset:{128*j}')
        a(f'ds_read_b128 v[{PB+8*j+4}:{PB+8*j+7}], v7 offset:{128*j+16}')
    a('s_waitcnt lgkmcnt(0)')
    for (i, j) in g.tiles:
        ac = ACC + 4 * (i * wn + j)
        for x in range(4):
            a(f'v_sub_f32 v{ac+x}, v{ac+x}, v{PB+8*j+2*x}')
        rb2(a, ac, ac + 1, T)
        rb2(a, ac + 2, ac + 3, T + 1)
        for x in range(4):
            a(f'v_mul_f32 v{ac+x}, v{ac+x}, v{PB+8*j+2*x+1}')
        a(f'v_cvt_pk_bf16_f32 v{ac}, v{ac}, v{ac+1}')
        a(f'v_cvt_pk_bf16_f32 v{ac+1}, v{ac+2}, v{ac+3}')
        a(f'ds_write_b64 v20, v[{ac}:{ac+1}] offset:{16*i*RS2+32*j}')
    a('s_waitcnt lgkmcnt(0)')
    a.label(Lj3)
    a('s_barrier')
    for r in range(NR2):
        a(f'ds_read_b128 v[{CH+4*r}:{CH+4*r+3}], v{OL2+r}')
    for r in range(NR2):
        a(f's_waitcnt lgkmcnt({NR2-1-r})')
        a(f'buffer_store_dwordx4 v[{CH+4*r}:{CH+4*r+3}], v{OG2+r}, s[60:63], s72 offen')
    a('s_setprio 0')
    return CH + 8, max(g.NS * g.STG, TOFF2 + 96 * RS2)

def ksplit_exchange(a, g, epi1):
    T = g.FR; ACC = g.ACC; wn = g.wn; T_ = g.T_
    a('v_lshlrev_b32 v6, 4, v0')
    a(f's_mul_i32 s10, s3, {T_*1024}')
    a('s_xor_b32 s11, s3, 4')
    a(f's_mul_i32 s11, s11, {T_*1024}')
    a('v_add_u32 v7, s11, v6')
    a('v_add_u32 v6, s10, v6')
    Lk1 = a.newlabel('Lk1'); Lkd = a.newlabel('Lkd')
    a('s_cmp_lg_u32 s75, 0')
    a(f's_cbranch_scc1 {Lk1}')
    for ksi in range(2):
        if ksi == 1: a.label(Lk1)
        send = g.keep[1 - ksi]; kp = g.keep[ksi]
        for (i, j) in send:
            ac = ACC + 4 * (i * wn + j)
            a(f'ds_write_b128 v6, v[{ac}:{ac+3}] offset:{1024*(i*wn+j)}')
        a('s_waitcnt lgkmcnt(0)')
        a('s_barrier')
        for n_, (i, j) in enumerate(kp):
            a(f'ds_read_b128 v[{T+8+4*n_}:{T+11+4*n_}], v7 offset:{1024*(i*wn+j)}')
        a('s_waitcnt lgkmcnt(0)')
        for n_, (i, j) in enumerate(kp):
            ac = ACC + 4 * (i * wn + j)
            for x in (0, 2):
                a(f'v_pk_add_f32 v[{ac+x}:{ac+x+1}], v[{ac+x}:{ac+x+1}], v[{T+8+4*n_+x}:{T+9+4*n_+x}]')
        epi1(kp)
        if ksi == 0: a(f's_branch {Lkd}')
    a.label(Lkd)

def trans_addr(a, g, RS, TOFF):
    a(f's_mul_i32 s10, s14, {g.wn*16*RS}')
    a(f's_mul_i32 s11, s13, {g.wm*16*2}')
    a('s_add_u32 s10, s10, s11')
    a(f's_add_u32 s10, s10, {TOFF}')
    a(f'v_mul_u32_u24 v20, {RS}, v5')
    a('v_lshl_add_u32 v20, v3, 3, v20')
    a('v_add_u32 v20, s10, v20')

def phase_g2(a, layer, sig_cnt):
    srd_ws(a, 44, Z2[layer], SZ_Z2); srd_ptr(a, 48, P_WSP, S * S * 2); srd_ws(a, 52, PP, S * FH * 2)
    srd_ws(a, 56, ZZ, S * F * 2); srd_ptr(a, 60, P_BSP, S * 2)
    g = Gemm(a, 96, 64, 2048, 2, 2, 2, 7, LDT, 4096, 44, 48)
    a('s_mul_i32 s6, s4, 96')
    a('s_lshl_b32 s7, s5, 6')
    g.setup()
    g.prologue()
    T = g.FR; ACC = g.ACC; wn = g.wn
    TOFF = 65536; RS = 208
    OLDS = g.free; OGL = OLDS + 2; OZ = OGL + 2
    ZR = (OZ + 2 + 3) // 4 * 4; BR = ZR + 8
    NR = chunk_map(a, 64, 12, RS, TOFF, 1536, OLDS, OGL, extra=[(OZ, 3072)])
    a('s_mul_i32 s15, s7, 1536')
    a('s_lshl_b32 s11, s6, 1')
    a('s_add_u32 s15, s15, s11')
    a('s_mul_i32 s72, s7, 3072')
    a('s_add_u32 s72, s72, s11')
    for r in range(NR):
        a(f'buffer_load_dwordx4 v[{ZR+4*r}:{ZR+4*r+3}], v{OZ+r}, s[56:59], s72 offen')
    a(f's_mul_i32 s10, s14, {wn*16}')
    a('s_add_u32 s10, s10, s7')
    a('s_lshl_b32 s73, s10, 1')
    a('v_lshlrev_b32 v22, 1, v5')
    for j in range(wn):
        a(f'buffer_load_ushort v{BR+j}, v22, s[60:63], s73 offen offset:{32*j}')
    trans_addr(a, g, RS, TOFF)
    g.zero_acc()
    g.mainloop(first_extra=NR + wn)
    stamp(a)
    for j in range(wn):
        a(f'v_lshlrev_b32 v{BR+j}, 16, v{BR+j}')
    a('s_barrier')
    a('s_nop 4')
    def epi1(tl):
        for (i, j) in tl:
            ac = ACC + 4 * (i * wn + j)
            rb2(a, ac, ac + 1, T)
            rb2(a, ac + 2, ac + 3, T + 1)
            for x in range(4):
                a(f'v_add_f32 v{ac+x}, v{ac+x}, v{BR+j}')
            a(f'v_cvt_pk_bf16_f32 v{ac}, v{ac}, v{ac+1}')
            a(f'v_cvt_pk_bf16_f32 v{ac+1}, v{ac+2}, v{ac+3}')
            a(f'ds_write_b64 v20, v[{ac}:{ac+1}] offset:{16*j*RS+32*i}')
    ksplit_exchange(a, g, epi1)
    a('s_waitcnt lgkmcnt(0)')
    a('s_barrier')
    for r in range(NR):
        a(f'ds_read_b128 v[{ACC+4*r}:{ACC+4*r+3}], v{OLDS+r}')
    for r in range(NR):
        a(f's_waitcnt lgkmcnt({NR-1-r})')
        for x in range(4):
            t = T + 4 * (x & 1)
            unpack(a, t, t + 1, ACC + 4 * r + x)
            unpack(a, t + 2, t + 3, ZR + 4 * r + x)
            a(f'v_pk_mul_f32 v[{t}:{t+1}], v[{t}:{t+1}], v[{t+2}:{t+3}]')
            a(f'v_cvt_pk_bf16_f32 v{ACC+4*r+x}, v{t}, v{t+1}')
        a(f'buffer_store_dwordx4 v[{ACC+4*r}:{ACC+4*r+3}], v{OGL+r}, s[52:55], s15 offen {SC()}')
    stamp(a)
    sync_signal(a, sig_cnt)
    stamp(a)
    return BR + wn, max(g.NS * g.STG, TOFF + 64 * RS)

def dpp8(a, regs):
    for ctl in ('quad_perm:[1,0,3,2]', 'quad_perm:[2,3,0,1]', 'row_half_mirror'):
        if len(regs) < 3: a('s_nop 1')
        for r in regs:
            a(f'v_add_f32_dpp v{r}, v{r}, v{r} {ctl} row_mask:0xf bank_mask:0xf')

def x_stats_exchange(a, X, e, W, M, R):
    s1, s2, t = W + 8, W + 9, W + 10
    a(f'v_add_f32 v{s1}, v{X}, v{X+1}')
    for i in range(2, 10):
        a(f'v_add_f32 v{s1}, v{s1}, v{X+i}')
    a('s_nop 1')
    dpp8(a, [s1])
    a(f'v_mul_f32 v{s1}, {fhex(1.0/80)}, v{s1}')
    for i in range(10):
        a(f'v_sub_f32 v{t}, v{X+i}, v{s1}')
        if i == 0: a(f'v_mul_f32 v{s2}, v{t}, v{t}')
        else: a(f'v_fmac_f32 v{s2}, v{t}, v{t}')
    a('s_nop 1')
    dpp8(a, [s2])
    a(f'v_mov_b32 v{W}, v{s1}')
    a(f'v_mov_b32 v{W+1}, 1')
    a(f'v_mov_b32 v{W+2}, v{s2}')
    a(f'v_mov_b32 v{W+3}, 1')
    a(f's_lshl_b32 s11, s5, 13')
    a(f's_add_u32 s11, s11, {e*32*8192}')
    a('v_cmp_eq_u32 vcc, 0, v4')
    a('s_and_saveexec_b64 s[88:89], vcc')
    a(f'buffer_store_dwordx4 v[{W}:{W+3}], v22, s[56:59], s11 offen sc1')
    a('s_mov_b64 exec, s[88:89]')
    Lp = a.newlabel('Lpoll')
    a.label(Lp)
    a('s_sleep 1')
    a(f'buffer_load_dwordx4 v[{W+4}:{W+7}], v21, s[56:59], s11 offen sc1')
    a('s_waitcnt vmcnt(0)')
    a(f'v_and_b32 v{t}, v{W+5}, v{W+7}')
    a(f'v_cmp_ne_u32 vcc, 1, v{t}')
    a(f's_cbranch_vccnz {Lp}')
    a(f'v_mov_b32 v{s1}, v{W+4}')
    a('s_nop 1')
    dpp8(a, [s1])
    a(f'v_mul_f32 v{M}, 0.125, v{s1}')
    a(f'v_sub_f32 v{t}, v{W+4}, v{M}')
    a(f'v_mul_f32 v{t}, v{t}, v{t}')
    a(f's_mov_b32 s10, {fhex(80.0)}')
    a(f'v_fma_f32 v{s2}, v{t}, s10, v{W+6}')
    a('s_nop 1')
    dpp8(a, [s2])
    a(f'v_mul_f32 v{s2}, {fhex(1.0/640)}, v{s2}')
    rb2(a, M, s2, t)
    a(f'v_add_f32 v{s2}, 0x3727c5ac, v{s2}')
    a(f'v_cvt_pk_bf16_f32 v{t}, v{s2}, v{s2}')
    a(f'v_lshlrev_b32 v{s2}, 16, v{t}')
    a(f'v_sqrt_f32 v{s2}, v{s2}')
    a('s_nop 0')
    a(f'v_cvt_pk_bf16_f32 v{t}, v{s2}, v{s2}')
    a(f'v_lshlrev_b32 v{s2}, 16, v{t}')
    a(f'v_rcp_f32 v{R}, v{s2}')
    a('s_nop 0')

def norm10(a, X, N, M, R, t):
    for i in range(10):
        a(f'v_sub_f32 v{N+i}, v{X+i}, v{M}')
    for i in range(0, 10, 2):
        rb2(a, N + i, N + i + 1, t + (i // 2) % 2)
    for i in range(10):
        a(f'v_mul_f32 v{N+i}, v{N+i}, v{R}')
    for i in range(0, 10, 2):
        rb2(a, N + i, N + i + 1, t + (i // 2) % 2)

def phase_g3(a, final, wait_cnt, sig_cnt, mid_cnt=None):
    srd_ws(a, 44, WOUTT, FH * D * 2); srd_ws(a, 48, PP, S * FH * 2)
    g = Gemm(a, 80, 64, 768, 1, 4, 2, 8, 1536, 1536, 44, 48)
    g.bcache = 'sc1'
    a('s_mul_i32 s6, s4, 80')
    a('s_lshl_b32 s7, s5, 6')
    g.setup()
    T = g.FR; ACC = g.ACC; wn = g.wn
    TOFF = 65536; RS = 176
    XO = g.free
    LO = XO + 1
    XR = (LO + 1 + 3) // 4 * 4
    YR = XR + 8
    X = YR + 8; N = X + 10; W = (N + 10 + 3) // 4 * 4; M = W + 12; R = M + 1
    top = R + 1
    srd_ws(a, 60, X1, SZ_SD)
    if final: srd_ptr(a, 52, P_OUT, SZ_SD)
    a('v_lshrrev_b32 v6, 3, v23       ; row')
    a(f'v_mul_u32_u24 v{XO}, 1280, v6')
    a(f'v_mul_u32_u24 v7, 20, v4')
    a(f'v_add_u32 v{XO}, v{XO}, v7')
    a(f'v_mul_u32_u24 v{LO}, {RS}, v6')
    a(f'v_add_u32 v{LO}, v{LO}, v7')
    a(f'v_add_u32 v{LO}, {TOFF}, v{LO}')
    a('s_mul_i32 s15, s7, 1280')
    a('s_lshl_b32 s11, s6, 1')
    a('s_add_u32 s15, s15, s11')
    a(f'buffer_load_dwordx4 v[{XR}:{XR+3}], v{XO}, s[60:63], s15 offen')
    a(f'buffer_load_dword v{XR+4}, v{XO}, s[60:63], s15 offen offset:16')
    trans_addr(a, g, RS, TOFF)
    g.zero_acc()
    sync_wait(a, wait_cnt, 8, pre=lambda: g.prologue('A'))
    stamp(a)
    g.prologue('B')
    g.mainloop(split_prologue=True)
    stamp(a)
    a('s_barrier')
    a('s_nop 4')
    def epi1(tl):
        for (i, j) in tl:
            ac = ACC + 4 * (i * wn + j)
            a(f'v_cvt_pk_bf16_f32 v{ac}, v{ac}, v{ac+1}')
            a(f'v_cvt_pk_bf16_f32 v{ac+1}, v{ac+2}, v{ac+3}')
            a(f'ds_write_b64 v20, v[{ac}:{ac+1}] offset:{16*j*RS+32*i}')
    ksplit_exchange(a, g, epi1)
    a('s_waitcnt lgkmcnt(0)')
    a('s_barrier')
    O = ACC
    a(f'ds_read2_b32 v[{O}:{O+1}], v{LO} offset0:0 offset1:1')
    a(f'ds_read2_b32 v[{O+2}:{O+3}], v{LO} offset0:2 offset1:3')
    a(f'ds_read_b32 v{O+4}, v{LO} offset:16')
    a('s_waitcnt lgkmcnt(0)')
    for jx in range(5):
        unpack(a, X + 2 * jx, X + 2 * jx + 1, XR + jx)
        unpack(a, N + 2 * jx, N + 2 * jx + 1, O + jx)
    for i in range(0, 10, 2):
        a(f'v_pk_add_f32 v[{X+i}:{X+i+1}], v[{X+i}:{X+i+1}], v[{N+i}:{N+i+1}]')
    for jx in range(5):
        a(f'v_cvt_pk_bf16_f32 v{XR+jx}, v{X+2*jx}, v{X+2*jx+1}')
    if final:
        a(f'buffer_store_dwordx4 v[{XR}:{XR+3}], v{XO}, s[52:55], s15 offen')
        a(f'buffer_store_dword v{XR+4}, v{XO}, s[52:55], s15 offen offset:16')
        return top, max(g.NS * g.STG, TOFF + 64 * RS)
    srd_ws(a, 52, X2, SZ_SD)
    a(f'buffer_store_dwordx4 v[{XR}:{XR+3}], v{XO}, s[52:55], s15 offen {SC()}')
    a(f'buffer_store_dword v{XR+4}, v{XO}, s[52:55], s15 offen offset:16 {SC()}')
    srd_ws(a, 56, YY, SZ_SD)
    a('s_lshl_b32 s10, s4, 3')
    a('s_add_u32 s10, s10, s7')
    a('s_add_u32 s10, s10, s3')
    a('s_mul_i32 s15, s10, 1280')
    a('v_lshlrev_b32 v21, 2, v0')
    ER = 24; EY = 30
    for jx in range(5):
        a(f'buffer_load_dword v{EY+jx}, v21, s[56:59], s15 offen offset:{256*jx}')
    stamp(a)
    sync_signal(a, mid_cnt)
    sync_wait(a, mid_cnt, 8)
    stamp(a)
    for jx in range(5):
        a(f'buffer_load_dword v{ER+jx}, v21, s[52:55], s15 offen offset:{256*jx} sc1')
    a('s_waitcnt vmcnt(0)')
    stamp(a)
    XA = 48; NA = 60; TT = 72
    for jx in range(5):
        unpack(a, XA + 2 * jx, XA + 2 * jx + 1, ER + jx)
    ln_row1(a, XA, 10, 640, TT, NA, 64)
    for jx in range(5):
        unpack(a, TT + 2 * jx, TT + 2 * jx + 1, EY + jx)
    for i in range(0, 10, 2):
        a(f'v_pk_mul_f32 v[{NA+i}:{NA+i+1}], v[{NA+i}:{NA+i+1}], v[{TT+i}:{TT+i+1}]')
    for jx in range(5):
        rb2(a, NA + 2 * jx, NA + 2 * jx + 1, TT + 10 + (jx & 1))
    for i in range(0, 10, 2):
        a(f'v_pk_add_f32 v[{XA+i}:{XA+i+1}], v[{XA+i}:{XA+i+1}], v[{NA+i}:{NA+i+1}]')
    for jx in range(5):
        a(f'v_cvt_pk_bf16_f32 v{ER+jx}, v{XA+2*jx}, v{XA+2*jx+1}')
        unpack(a, XA + 2 * jx, XA + 2 * jx + 1, ER + jx)
        a(f'buffer_store_dword v{ER+jx}, v21, s[60:63], s15 offen offset:{256*jx}')
    ln_row1(a, XA, 10, 640, TT, NA, 64)
    srd_ws(a, 52, HH, SZ_SD)
    for jx in range(5):
        a(f'v_cvt_pk_bf16_f32 v{EY+jx}, v{NA+2*jx}, v{NA+2*jx+1}')
        a(f'buffer_store_dword v{EY+jx}, v21, s[52:55], s15 offen offset:{256*jx} {SC()}')
    stamp(a)
    sync_signal(a, sig_cnt)
    stamp(a)
    return max(top, 96), max(g.NS * g.STG, TOFF + 64 * RS)

def cnt_reg(a, sreg, base):
    a(f's_add_u32 s{sreg}, s5, {base}')
    a(f's_lshl_b32 s{sreg}, s{sreg}, 7')

def kernel_wrap(a, name, body):
    a.begin_kernel(name)
    Lend = a.newlabel('Lend')
    a('s_cmp_ge_u32 s2, 256')
    a(f's_cbranch_scc1 {Lend}')
    stamp_reset(); stamp(a)
    load_ptrs(a)
    common_prologue(a)
    a('s_waitcnt lgkmcnt(0)')
    srd_ws(a, 84, CNT, NCNT * 128)
    stamp(a)
    top, lds = body()
    if gen.STAMP:
        stamp(a)
        a('s_waitcnt vmcnt(0)')
        stamp(a)
        stamp_flush(a, 37)
    a.label(Lend)
    assert top <= 250
    a.end_kernel(name, 256, 102)
    return (name, 256, 512, lds)

def gen_g1f(a, layer):
    return kernel_wrap(a, f'g1f{layer}_kernel', lambda: phase_g1(a, layer))

def gen_mid(a):
    def body():
        cnt_reg(a, 90, 0); cnt_reg(a, 91, 32); cnt_reg(a, 93, 160)
        t1, l1 = phase_g2(a, 0, 90)
        t2, l2 = phase_g3(a, False, 90, 91, 93)
        t3, l3 = phase_g1(a, 1, 91)
        return max(t1, t2, t3), max(l1, l2, l3)
    return kernel_wrap(a, 'mid_kernel', body)

def gen_last(a):
    def body():
        cnt_reg(a, 90, 64)
        t1, l1 = phase_g2(a, 1, 90)
        t2, l2 = phase_g3(a, True, 90, None)
        return max(t1, t2), max(l1, l2)
    return kernel_wrap(a, 'last_kernel', body)

def main():
    global FAST
    if 'stamp' in sys.argv[2:]: gen.STAMP = True
    if 'fast' in sys.argv[2:]: FAST = True
    a = Asm()
    prep = gen_prep(a, zero=(CNT, ZERO_BYTES))
    conv = gen_conv(a)
    e1 = gen_e(a, True)
    g1a = gen_g1f(a, 0)
    mid = gen_mid(a)
    last = gen_last(a)
    launches = [prep, conv, e1, g1a, mid, last]
    hdr = open('interleave_layers__ssm_conv_h3__mixer_gmlp__prompt.s.ref').read().split('; Override launch')[0]
    txt = a.text(launches, hdr)
    out = sys.argv[1] if len(sys.argv) > 1 else 'interleave_layers__ssm_conv_h3__mixer_gmlp__prompt.s'
    open(out, 'w').write(txt)
    print('wrote', out, len(txt), 'bytes')

if __name__ == '__main__':
    main()
```

```python
import sys
sys.path.insert(0, 'dev')
from asmlib import *
import gen
from gen import *
import gen2
from gen2 import CNT, NCNT, ST2, ZERO_BYTES, Z2, chunk_map, gelu4, gelu_consts, dpp_rowsum, sync_signal, sync_wait, \
    common_prologue, cnt_reg, kernel_wrap, SC

class Gemm:
    def __init__(self, a, BM, BN, K, WM, WN, NS, ldA, ldB, srdA, srdB):
        self.a = a; self.BM = BM; self.BN = BN; self.K = K; self.WM = WM; self.WN = WN; self.NS = NS
        self.ldA = ldA; self.ldB = ldB; self.srdA = srdA; self.srdB = srdB
        assert WM * WN == 4
        self.wm = BM // WM // 16; self.wn = BN // WN // 16
        self.nst = K // 64
        self.STG = (BM + BN) * 128
        ngA = BM // 8; ngB = BN // 8
        self.slots = []
        for g0 in range(0, ngA, 4): self.slots.append(('A', g0, min(4, ngA - g0)))
        for g0 in range(0, ngB, 4): self.slots.append(('B', g0, min(4, ngB - g0)))
        self.npw = sum(1 for s_ in self.slots if s_[2] == 4)
        self.nB = sum(1 for s_ in self.slots if s_[2] == 4 and s_[0] == 'B')
        self.VS = 24; self.SS = 64
        assert len(self.slots) <= 8
        self.nwin = (NS * self.STG + 65535) // 65536
        self.RA = 8; self.RB = self.RA + 2 * self.nwin
        self.FR = 40
        self.nfr = self.wm + self.wn
        self.ACC = self.FR + 4 * self.nfr * 4
        self.T_ = self.wm * self.wn
        self.tiles = [(i, j) for i in range(self.wm) for j in range(self.wn)]
        self.free = self.ACC + self.T_ * 4
        self.bcache = ''
        self.arow_split = None
        self.a_tile_off = None
        self.a_wave_stride = self.wm * 16 * 128
    def setup(self):
        a = self.a
        a(f's_mul_i32 s8, s6, {self.ldA}         ; A soffset')
        a(f's_mul_i32 s9, s7, {self.ldB}         ; B soffset')
        a('s_and_b32 s74, s3, 3')
        for i, (op, g0, nw) in enumerate(self.slots):
            ld = self.ldA if op == 'A' else self.ldB
            a(f's_add_u32 s10, s74, {g0}')
            a('s_lshl_b32 s11, s10, 2')
            a('v_add_u32 v6, s11, v3')
            a('v_and_b32 v6, 7, v6')
            a('v_xor_b32 v6, v6, v4')
            a('s_lshl_b32 s11, s10, 3')
            if op == 'A' and self.arow_split:
                gs, add = self.arow_split
                a(f's_cmp_ge_u32 s10, {gs}')
                a(f's_cselect_b32 s12, {add}, 0')
                a('s_add_u32 s11, s11, s12')
            a('v_add_u32 v7, s11, v2          ; row')
            a(f's_mov_b32 s12, {ld}')
            a('v_mul_lo_u32 v7, v7, s12')
            a(f'v_lshl_add_u32 v{self.VS+i}, v6, 4, v7')
            a(f's_lshl_b32 s{self.SS+i}, s10, 10')
            if op == 'B': a(f's_add_u32 s{self.SS+i}, s{self.SS+i}, {self.BM*128}')
        if self.WN == 4:   a('s_mov_b32 s13, 0'); a('s_mov_b32 s14, s74')
        elif self.WN == 2: a('s_lshr_b32 s13, s74, 1'); a('s_and_b32 s14, s74, 1')
        else:              a('s_mov_b32 s13, s74'); a('s_mov_b32 s14, 0')
        a('v_lshrrev_b32 v6, 1, v5')
        a('v_xor_b32 v6, v6, v3')
        a('v_lshlrev_b32 v6, 4, v6')
        a('v_lshl_add_u32 v6, v5, 7, v6')
        a('v_xor_b32 v7, 64, v6           ; ks=1')
        a(f's_mul_i32 s10, s13, {self.a_wave_stride}')
        a(f's_mul_i32 s11, s14, {self.wn*16*128}')
        a(f's_add_u32 s11, s11, {self.BM*128}')
        for w in range(self.nwin):
            for ks in range(2):
                a(f'v_add_u32 v{self.RA+2*w+ks}, s10, v{6+ks}')
                a(f'v_add_u32 v{self.RB+2*w+ks}, s11, v{6+ks}')
                if w:
                    a(f'v_add_u32 v{self.RA+2*w+ks}, {65536*w}, v{self.RA+2*w+ks}')
                    a(f'v_add_u32 v{self.RB+2*w+ks}, {65536*w}, v{self.RB+2*w+ks}')
    def issue(self, st, parts='AB'):
        a = self.a
        buf = (st % self.NS) * self.STG
        for i, (op, g0, nw) in enumerate(self.slots):
            if op not in parts: continue
            Ls = None
            if nw < 4:
                Ls = a.newlabel('Lsk')
                a(f's_cmp_ge_u32 s74, {nw}')
                a(f's_cbranch_scc1 {Ls}')
            a(f's_add_u32 m0, s{self.SS+i}, {buf}')
            a('s_nop 0')
            if op == 'A': a(f'buffer_load_dwordx4 v{self.VS+i}, s[{self.srdA}:{self.srdA+3}], s8 offen lds')
            else:         a(f'buffer_load_dwordx4 v{self.VS+i}, s[{self.srdB}:{self.srdB+3}], s9 offen {self.bcache} lds')
            if Ls: a.label(Ls)
        if 'A' in parts: a('s_add_u32 s8, s8, 128')
        if 'B' in parts: a('s_add_u32 s9, s9, 128')
    def prologue(self, parts='AB'):
        a = self.a
        L = a.newlabel('Lpr')
        a('s_cmp_eq_u32 s75, 0')
        a(f's_cbranch_scc1 {L}')
        for st in range(min(self.NS - 1, self.nst)): self.issue(st, parts)
        a.label(L)
    def run(self, swap=(), split_prologue=False, extra_young=0):
        a = self.a; NS = self.NS; nst = self.nst; npw = self.npw
        wm, wn, nfr, FR, ACC = self.wm, self.wn, self.nfr, self.FR, self.ACC
        Lld = a.newlabel('Lld'); Ljn = a.newlabel('Ljn')
        a('s_cmp_lg_u32 s75, 0')
        a(f's_cbranch_scc1 {Lld}')
        for i in range(self.T_ * 4): a(f'v_mov_b32 v{ACC+i}, 0')
        FS = 2 * nfr * 4
        def reads(st):
            buf = (st % NS) * self.STG
            f0 = FR + (st & 1) * FS
            for ks in range(2):
                for i in range(wm):
                    off = buf + (self.a_tile_off[i] if self.a_tile_off else i * 2048); w = off >> 16
                    a(f'ds_read_b128 v[{f0+(ks*nfr+i)*4}:{f0+(ks*nfr+i)*4+3}], v{self.RA+2*w+ks} offset:{off&65535}')
                for j in range(wn):
                    off = buf + j * 2048; w = off >> 16
                    a(f'ds_read_b128 v[{f0+(ks*nfr+wm+j)*4}:{f0+(ks*nfr+wm+j)*4+3}], v{self.RB+2*w+ks} offset:{off&65535}')
        def mfmas(st):
            f0 = FR + (st & 1) * FS
            for ks in range(2):
                for i in range(wm):
                    for j in range(wn):
                        ac = ACC + 4 * (i * wn + j)
                        fa = f0 + (ks * nfr + i) * 4; fb = f0 + (ks * nfr + wm + j) * 4
                        if i in swap: fa, fb = fb, fa
                        a(f'v_mfma_f32_16x16x32_bf16 v[{ac}:{ac+3}], v[{fa}:{fa+3}], v[{fb}:{fb+3}], v[{ac}:{ac+3}]')
        for st in range(nst):
            a('s_barrier')
            reads(st)
            if st: mfmas(st - 1)
            a('s_waitcnt lgkmcnt(0)')
        mfmas(nst - 1)
        a(f's_branch {Ljn}')
        a.label(Lld)
        for st in range(nst):
            later = min(NS - 2, nst - 1 - st)
            npro = min(NS - 1, nst)
            if split_prologue and st < npro:
                cnt = (npro - 1 - st) * self.nB + max(0, min(st, nst - npro)) * npw
            else:
                cnt = later * npw + (extra_young if st == 0 else 0)
            a(f's_waitcnt vmcnt({cnt})')
            a('s_barrier')
            if st + NS - 1 < nst: self.issue(st + NS - 1)
        a.label(Ljn)

def l2_prefetch(a, build_srd, soff_code, ninstr):
    build_srd()
    soff_code()
    a(f's_mul_i32 s11, s3, {ninstr*1024}')
    a('s_add_u32 s10, s10, s11')
    a('v_lshlrev_b32 v6, 4, v0')
    for i in range(ninstr):
        if i and i % 4 == 0: a('s_add_u32 s10, s10, 4096')
        a(f'buffer_load_dwordx4 v[252:255], v6, s[80:83], s10 offen offset:{1024*(i%4)}')
    return ninstr

PF = False
G2LD = None
def xidx(a, sh):
    a('s_and_b32 s10, s5, 3'); a('s_lshl_b32 s10, s10, 3'); a('s_add_u32 s10, s10, s4'); a(f's_lshl_b32 s10, s10, {sh}')
def pf_wsp(a):
    if not PF: return 0
    return l2_prefetch(a, lambda: srd_ptr(a, 80, P_WSP, S * S * 2),
                lambda: (a('s_lshl_b32 s10, s5, 18'), a('s_lshl_b32 s11, s4, 15'), a('s_add_u32 s10, s10, s11')), 4)
def pf_wout(a):
    if not PF: return 0
    return l2_prefetch(a, lambda: srd_ws(a, 80, WOUTT, FH * D * 2), lambda: xidx(a, 15), 4)
def pf_win(a):
    if not PF: return 0
    return l2_prefetch(a, lambda: srd_ws(a, 80, WINT, D * F * 2), lambda: xidx(a, 16), 8)

def rb_batch(a, regs, tmp):
    for n, r in enumerate(regs): a(f'v_cvt_pk_bf16_f32 v{tmp+n}, v{r}, v{r+1}')
    for n, r in enumerate(regs):
        a(f'v_lshlrev_b32 v{r}, 16, v{tmp+n}')
        a(f'v_and_b32 v{r+1}, 0xffff0000, v{tmp+n}')

def gelu_batch(a, accs, W, C):
    pairs = [ac + x for ac in accs for x in (0, 2)]
    rb_batch(a, pairs, W)
    wp = [W + 2 * n for n in range(len(pairs))]
    for p, w in zip(pairs, wp): a(f'v_pk_mul_f32 v[{w}:{w+1}], v[{p}:{p+1}], v[{p}:{p+1}]')
    for p, w in zip(pairs, wp): a(f'v_pk_fma_f32 v[{w}:{w+1}], v[{w}:{w+1}], s[78:79], v[{C}:{C+1}]')
    for p, w in zip(pairs, wp): a(f'v_pk_mul_f32 v[{w}:{w+1}], v[{w}:{w+1}], v[{p}:{p+1}]')
    for w in wp:
        a(f'v_exp_f32 v{w}, v{w}'); a(f'v_exp_f32 v{w+1}, v{w+1}')
    a('s_nop 0')
    for w in wp: a(f'v_pk_add_f32 v[{w}:{w+1}], v[{w}:{w+1}], 1.0 op_sel_hi:[1,0]')
    for w in wp:
        a(f'v_rcp_f32 v{w}, v{w}'); a(f'v_rcp_f32 v{w+1}, v{w+1}')
    a('s_nop 0')
    for p, w in zip(pairs, wp): a(f'v_pk_mul_f32 v[{p}:{p+1}], v[{p}:{p+1}], v[{w}:{w+1}]')

def only_compute(a):
    L = a.newlabel('Loc')
    a('s_cmp_lg_u32 s75, 0')
    a(f's_cbranch_scc1 {L}')
    return L

def phase_g1(a, layer, wait_cnt=None):
    assert wait_cnt is not None
    srd_ws(a, 44, WINT, D * F * 2); srd_ws(a, 48, HH, SZ_SD)
    NSA = 5; AOFF = 81920; ASTG = 12288
    wm, wn, nfr = 3, 2, 5
    a('s_mul_i32 s6, s4, 96')
    a('s_lshl_b32 s7, s5, 6')
    a('s_and_b32 s74, s3, 3')
    VS = 24; SS = 64
    a('s_add_u32 s10, s6, 768')
    a('s_mul_i32 s8, s10, 1280')
    a('s_mul_i32 s9, s7, 1280           ; B soffset')
    for i in range(5):
        g0 = 4 * i if i < 3 else 4 * (i - 3)
        a(f's_add_u32 s10, s74, {g0}')
        a('s_lshl_b32 s11, s10, 2')
        a('v_add_u32 v6, s11, v3')
        a('v_and_b32 v6, 7, v6')
        a('v_xor_b32 v6, v6, v4')
        a('s_lshl_b32 s11, s10, 3')
        a('v_add_u32 v7, s11, v2')
        a('v_mul_u32_u24 v7, 1280, v7')
        a(f'v_lshl_add_u32 v{VS+i}, v6, 4, v7')
        a(f's_lshl_b32 s{SS+i}, s10, 10')
    a('s_lshr_b32 s13, s74, 1'); a('s_and_b32 s14, s74, 1')
    a('v_lshrrev_b32 v6, 1, v5')
    a('v_xor_b32 v6, v6, v3')
    a('v_lshlrev_b32 v6, 4, v6')
    a('v_lshl_add_u32 v6, v5, 7, v6')
    a('v_xor_b32 v7, 64, v6')
    a(f's_mul_i32 s10, s13, {48*128}')
    a(f's_add_u32 s10, s10, {AOFF}')
    a(f's_mul_i32 s11, s14, {32*128}')
    RA = 8; RB = 10
    for ks in range(2):
        a(f'v_add_u32 v{RA+ks}, s10, v{6+ks}')
        a(f'v_add_u32 v{RB+ks}, s11, v{6+ks}')
        a(f'v_add_u32 v{RB+2+ks}, 65536, v{RB+ks}')
    def issueA(s_):
        buf = AOFF + (s_ % NSA) * ASTG
        for i in range(3):
            a(f's_add_u32 m0, s{SS+i}, {buf}')
            a('s_nop 0')
            a(f'buffer_load_dwordx4 v{VS+i}, s[44:47], s8 offen lds')
        if s_ == 9:
            a(f's_sub_u32 s8, s8, {768*1280 + 9*128}')
        else:
            a('s_add_u32 s8, s8, 128')
    def issueB(k):
        for i in range(2):
            a(f's_add_u32 m0, s{SS+3+i}, {k*8192}')
            a('s_nop 0')
            a(f'buffer_load_dwordx4 v{VS+3+i}, s[48:51], s9 offen sc1 lds')
        a('s_add_u32 s9, s9, 128')
    def only_loader():
        L = a.newlabel('Lol')
        a('s_cmp_eq_u32 s75, 0')
        a(f's_cbranch_scc1 {L}')
        return L
    def preA():
        L = only_loader()
        for s_ in range(NSA - 1): issueA(s_)
        a.label(L)
    sync_wait(a, wait_cnt, 8, pre=preA)
    stamp(a)
    L = only_loader()
    for k in range(10): issueB(k)
    a.label(L)
    FR = 40; FS = 2 * nfr * 4
    ZA = FR + 2 * FS
    YA = ZA + 24
    free = YA + 24
    T = FR; WK = T + 32
    TOFF = 0; TOFF2 = 16384; TAB = 32768
    RS = 96 * 2 + 16; RS2 = 128 + 16
    OL1 = free; OG1 = OL1 + 2; OL2 = OG1 + 2; OG2 = OL2 + 2
    PB = (OG2 + 2 + 3) // 4 * 4
    CH = PB + 16
    srd_ws(a, 52, ZZ, S * F * 2)
    srd_ws(a, 60, Z2[layer], SZ_Z2)
    srd_ws(a, 56, ST2 + layer * 32 * 16384, 32 * 16384)
    NR1 = chunk_map(a, 64, 12, RS, TOFF, 3072, OL1, OG1)
    NR2 = chunk_map(a, 96, 8, RS2, TOFF2, LDT, OL2, OG2)
    a('s_mul_i32 s15, s7, 3072')
    a('s_lshl_b32 s11, s6, 1')
    a('s_add_u32 s15, s15, s11')
    a(f's_mul_i32 s72, s6, {LDT}')
    a('s_lshl_b32 s11, s7, 1')
    a('s_add_u32 s72, s72, s11')
    a(f's_mul_i32 s10, s14, {32*RS}')
    a('s_mul_i32 s11, s13, 96')
    a('s_add_u32 s10, s10, s11')
    a(f's_add_u32 s10, s10, {TOFF}')
    a(f'v_mul_u32_u24 v20, {RS}, v5')
    a('v_lshl_add_u32 v20, v3, 3, v20')
    a('v_add_u32 v20, s10, v20')
    a(f's_mul_i32 s10, s13, {48*RS2}')
    a('s_mul_i32 s11, s14, 64')
    a('s_add_u32 s10, s10, s11')
    a(f's_add_u32 s10, s10, {TOFF2}')
    a(f'v_mul_u32_u24 v21, {RS2}, v5')
    a('v_lshl_add_u32 v21, v3, 3, v21')
    a('v_add_u32 v21, s10, v21')
    cnt_reg(a, 92, 96 + 32 * layer)
    def zacc(i, j): return ZA + 4 * (i * wn + j)
    def yacc(i, j): return YA + 4 * (i * wn + j)
    zt = [zacc(i, j) for i in range(3) for j in range(wn)]
    yt = [yacc(i, j) for i in range(3) for j in range(wn)]
    Lld = a.newlabel('Lld'); Ljn = a.newlabel('Ljn')
    a('s_cmp_lg_u32 s75, 0')
    a(f's_cbranch_scc1 {Lld}')
    for i in range(48): a(f'v_mov_b32 v{ZA+i}, 0')
    def reads(s_):
        f0 = FR + (s_ & 1) * FS
        abuf = (s_ % NSA) * ASTG
        boff = (s_ % 10) * 8192
        for ks in range(2):
            for i in range(wm):
                a(f'ds_read_b128 v[{f0+(ks*nfr+i)*4}:{f0+(ks*nfr+i)*4+3}], v{RA+ks} offset:{abuf+i*2048}')
            for j in range(wn):
                off = boff + j * 2048; w = off >> 16
                a(f'ds_read_b128 v[{f0+(ks*nfr+wm+j)*4}:{f0+(ks*nfr+wm+j)*4+3}], v{RB+2*w+ks} offset:{off&65535}')
    def mfmas(s_):
        f0 = FR + (s_ & 1) * FS
        for ks in range(2):
            for i in range(wm):
                for j in range(wn):
                    fa = f0 + (ks * nfr + i) * 4; fb = f0 + (ks * nfr + wm + j) * 4
                    if s_ < 10:
                        ac = zacc(i, j); fa, fb = fb, fa
                    else:
                        ac = yacc(i, j)
                    a(f'v_mfma_f32_16x16x32_bf16 v[{ac}:{ac+3}], v[{fa}:{fa+3}], v[{fb}:{fb+3}], v[{ac}:{ac+3}]')
    for s_ in range(10):
        a('s_barrier')
        reads(s_)
        if s_: mfmas(s_ - 1)
        a('s_waitcnt lgkmcnt(0)')
    mfmas(9)
    stamp(a)
    gelu_consts(a, T)
    a('s_nop 6')
    gelu_batch(a, zt, WK, T + 2)
    rb_batch(a, [ac + x for ac in zt for x in (0, 2)], WK)
    SM = T + 8; M2 = T + 16
    for j in range(wn):
        for x in (0, 2):
            r = SM + 4 * j + x
            a(f'v_pk_add_f32 v[{r}:{r+1}], v[{zacc(0,j)+x}:{zacc(0,j)+x+1}], v[{zacc(1,j)+x}:{zacc(1,j)+x+1}]')
            a(f'v_pk_add_f32 v[{r}:{r+1}], v[{r}:{r+1}], v[{zacc(2,j)+x}:{zacc(2,j)+x+1}]')
    a('s_nop 1')
    dpp_rowsum(a, [SM + k for k in range(8)])
    for k in range(8):
        a(f'v_mul_f32 v{SM+k}, {fhex(1.0/48)}, v{SM+k}')
    for i in range(3):
        for j in range(wn):
            for x in (0, 2):
                w = WK + 8 * i + 4 * j + x
                a(f'v_pk_add_f32 v[{w}:{w+1}], v[{zacc(i,j)+x}:{zacc(i,j)+x+1}], v[{SM+4*j+x}:{SM+4*j+x+1}] neg_lo:[0,1] neg_hi:[0,1]')
    for i in range(3):
        for j in range(wn):
            for x in (0, 2):
                w = WK + 8 * i + 4 * j + x
                r = M2 + 4 * j + x
                if i == 0: a(f'v_pk_mul_f32 v[{r}:{r+1}], v[{w}:{w+1}], v[{w}:{w+1}]')
                else: a(f'v_pk_fma_f32 v[{r}:{r+1}], v[{w}:{w+1}], v[{w}:{w+1}], v[{r}:{r+1}]')
    a('s_nop 1')
    dpp_rowsum(a, [M2 + k for k in range(8)])
    for j in range(wn):
        for x in range(4):
            a(f'v_mov_b32 v{PB+8*j+2*x}, v{SM+4*j+x}')
            a(f'v_mov_b32 v{PB+8*j+2*x+1}, v{M2+4*j+x}')
    a('s_lshl_b32 s10, s4, 1')
    a('s_add_u32 s10, s10, s13          ; part')
    a('s_lshl_b32 s10, s10, 9')
    a('s_lshl_b32 s11, s5, 14')
    a('s_add_u32 s10, s10, s11')
    a('s_lshl_b32 s11, s14, 8')
    a('s_add_u32 s10, s10, s11')
    a('v_lshlrev_b32 v6, 5, v3')
    a('v_cmp_eq_u32 vcc, 0, v5')
    a('s_and_saveexec_b64 s[88:89], vcc')
    for j in range(wn):
        a(f'buffer_store_dwordx4 v[{PB+8*j}:{PB+8*j+3}], v6, s[56:59], s10 offen offset:{128*j} sc1')
        a(f'buffer_store_dwordx4 v[{PB+8*j+4}:{PB+8*j+7}], v6, s[56:59], s10 offen offset:{128*j+16} sc1')
    a('s_mov_b64 exec, s[88:89]')
    stamp(a)
    for s_ in range(10, 20):
        if s_ == 12: a('s_waitcnt vmcnt(0)')
        a('s_barrier')
        if s_ == 12:
            Ls = a.newlabel('Lsg')
            a('s_cmp_lg_u32 s3, 0')
            a(f's_cbranch_scc1 {Ls}')
            a('v_mov_b32 v6, 0')
            a('v_mov_b32 v7, 1')
            a('s_mov_b64 s[88:89], exec')
            a('s_mov_b64 exec, 1')
            a('buffer_atomic_add v7, v6, s[84:87], s92 offen sc1')
            a('s_mov_b64 exec, s[88:89]')
            a.label(Ls)
        reads(s_)
        if s_ > 10: mfmas(s_ - 1)
        a('s_waitcnt lgkmcnt(0)')
    mfmas(19)
    stamp(a)
    gelu_consts(a, T)
    a('s_nop 6')
    gelu_batch(a, yt, WK, T + 2)
    for ac in yt:
        a(f'v_cvt_pk_bf16_f32 v{ac}, v{ac}, v{ac+1}')
        a(f'v_cvt_pk_bf16_f32 v{ac+1}, v{ac+2}, v{ac+3}')
    a('s_barrier')
    for i in range(3):
        for j in range(wn):
            a(f'ds_write_b64 v20, v[{yacc(i,j)}:{yacc(i,j)+1}] offset:{16*j*RS+32*i}')
    a('s_waitcnt lgkmcnt(0)')
    a(f's_branch {Ljn}')
    a.label(Lld)
    for s_ in range(20):
        if s_ < 4: cnt = 2 * (9 - s_) + 3 * s_
        else: cnt = 3 * min(3, 19 - s_)
        a(f's_waitcnt vmcnt({cnt})')
        a('s_barrier')
        if s_ + NSA - 1 < 20: issueA(s_ + NSA - 1)
    a('s_barrier')
    a.label(Ljn)
    sync_wait(a, 92, 8, wave=4)
    stamp(a)
    a('v_lshrrev_b32 v6, 4, v23')
    a('v_lshlrev_b32 v6, 3, v6')
    a('v_lshl_add_u32 v6, v5, 9, v6')
    a('s_lshl_b32 s11, s5, 14')
    G0 = PB
    a(f'buffer_load_dwordx2 v[{G0}:{G0+1}], v6, s[56:59], s11 offen sc1')
    a(f'buffer_load_dwordx2 v[{G0+2}:{G0+3}], v6, s[56:59], s11 offen offset:256 sc1')
    for r in range(NR1):
        a(f'ds_read_b128 v[{CH+4*r}:{CH+4*r+3}], v{OL1+r}')
    for r in range(NR1):
        a(f's_waitcnt lgkmcnt({NR1-1-r})')
        a(f'buffer_store_dwordx4 v[{CH+4*r}:{CH+4*r+3}], v{OG1+r}, s[52:55], s15 offen')
    a(f's_waitcnt vmcnt({NR1})')
    stamp(a)
    a(f'v_mov_b32 v{G0+4}, v{G0}')
    a(f'v_mov_b32 v{G0+5}, v{G0+2}')
    a('s_nop 1')
    dpp_rowsum(a, [G0 + 4, G0 + 5])
    a(f'v_mul_f32 v{G0+4}, {fhex(1.0/16)}, v{G0+4}')
    a(f'v_mul_f32 v{G0+5}, {fhex(1.0/16)}, v{G0+5}')
    a(f'v_sub_f32 v{G0}, v{G0}, v{G0+4}')
    a(f'v_sub_f32 v{G0+2}, v{G0+2}, v{G0+5}')
    a(f'v_mul_f32 v{G0}, v{G0}, v{G0}')
    a(f'v_mul_f32 v{G0+2}, v{G0+2}, v{G0+2}')
    a(f's_mov_b32 s10, {fhex(48.0)}')
    a(f'v_fma_f32 v{G0+1}, v{G0}, s10, v{G0+1}')
    a(f'v_fma_f32 v{G0+3}, v{G0+2}, s10, v{G0+3}')
    a('s_nop 1')
    dpp_rowsum(a, [G0 + 1, G0 + 3])
    a(f'v_mul_f32 v{G0+1}, {fhex(1.0/768)}, v{G0+1}')
    a(f'v_mul_f32 v{G0+3}, {fhex(1.0/768)}, v{G0+3}')
    TT = CH + 8
    rb2(a, G0 + 4, G0 + 5, TT)
    rb2(a, G0 + 1, G0 + 3, TT)
    a(f'v_add_f32 v{G0+1}, 0x3727c5ac, v{G0+1}')
    a(f'v_add_f32 v{G0+3}, 0x3727c5ac, v{G0+3}')
    rb2(a, G0 + 1, G0 + 3, TT)
    a(f'v_sqrt_f32 v{G0+1}, v{G0+1}')
    a(f'v_sqrt_f32 v{G0+3}, v{G0+3}')
    a('s_nop 0')
    rb2(a, G0 + 1, G0 + 3, TT)
    a(f'v_rcp_f32 v{G0+1}, v{G0+1}')
    a(f'v_rcp_f32 v{G0+3}, v{G0+3}')
    a(f'v_mov_b32 v{G0}, v{G0+4}')
    a(f'v_mov_b32 v{G0+2}, v{G0+5}')
    a('v_lshrrev_b32 v6, 4, v23')
    a('v_lshlrev_b32 v6, 3, v6')
    a(f'ds_write_b64 v6, v[{G0}:{G0+1}] offset:{TAB}')
    a(f'ds_write_b64 v6, v[{G0+2}:{G0+3}] offset:{TAB+256}')
    a('s_lshl_b32 s10, s14, 8')
    a('v_lshlrev_b32 v7, 5, v3')
    a('v_add_u32 v7, s10, v7')
    a('s_waitcnt lgkmcnt(0)')
    a('s_barrier')
    L3 = only_compute(a)
    for j in range(wn):
        a(f'ds_read_b128 v[{PB+8*j}:{PB+8*j+3}], v7 offset:{TAB+128*j}')
        a(f'ds_read_b128 v[{PB+8*j+4}:{PB+8*j+7}], v7 offset:{TAB+128*j+16}')
    a('s_waitcnt lgkmcnt(0)')
    for i in range(3):
        for j in range(wn):
            for x in range(4):
                a(f'v_sub_f32 v{zacc(i,j)+x}, v{zacc(i,j)+x}, v{PB+8*j+2*x}')
    rb_batch(a, [ac + x for ac in zt for x in (0, 2)], WK)
    for i in range(3):
        for j in range(wn):
            for x in range(4):
                a(f'v_mul_f32 v{zacc(i,j)+x}, v{zacc(i,j)+x}, v{PB+8*j+2*x+1}')
    for ac in zt:
        a(f'v_cvt_pk_bf16_f32 v{ac}, v{ac}, v{ac+1}')
        a(f'v_cvt_pk_bf16_f32 v{ac+1}, v{ac+2}, v{ac+3}')
    for i in range(3):
        for j in range(wn):
            a(f'ds_write_b64 v21, v[{zacc(i,j)}:{zacc(i,j)+1}] offset:{16*i*RS2+32*j}')
    a('s_waitcnt lgkmcnt(0)')
    a.label(L3)
    a('s_barrier')
    for r in range(NR2):
        a(f'ds_read_b128 v[{CH+4*r}:{CH+4*r+3}], v{OL2+r}')
    for r in range(NR2):
        a(f's_waitcnt lgkmcnt({NR2-1-r})')
        a(f'buffer_store_dwordx4 v[{CH+4*r}:{CH+4*r+3}], v{OG2+r}, s[60:63], s72 offen')
    return CH + 10, AOFF + NSA * ASTG

def trans_addr(a, g, RS, TOFF):
    a(f's_mul_i32 s10, s14, {g.wn*16*RS}')
    a(f's_mul_i32 s11, s13, {g.wm*16*2}')
    a('s_add_u32 s10, s10, s11')
    a(f's_add_u32 s10, s10, {TOFF}')
    a(f'v_mul_u32_u24 v20, {RS}, v5')
    a('v_lshl_add_u32 v20, v3, 3, v20')
    a('v_add_u32 v20, s10, v20')

def phase_g2(a, layer, sig_cnt):
    srd_ws(a, 44, Z2[layer], SZ_Z2); srd_ptr(a, 48, P_WSP, S * S * 2); srd_ws(a, 52, PP, S * FH * 2)
    srd_ws(a, 56, ZZ, S * F * 2); srd_ptr(a, 60, P_BSP, S * 2)
    g = Gemm(a, 96, 64, 2048, 2, 2, 7, LDT if G2LD is None else G2LD[0], 4096 if G2LD is None else G2LD[1], 44, 48)
    a('s_mul_i32 s6, s4, 96')
    a('s_lshl_b32 s7, s5, 6')
    g.setup()
    g.prologue()
    T = g.FR; ACC = g.ACC; wn = g.wn
    TOFF = 65536; RS = 208
    OLDS = g.free; OGL = OLDS + 2; OZ = OGL + 2
    ZR = (OZ + 2 + 3) // 4 * 4; BR = ZR + 8; CH = BR + 4
    NR = chunk_map(a, 64, 12, RS, TOFF, 1536, OLDS, OGL, extra=[(OZ, 3072)])
    a('s_mul_i32 s15, s7, 1536')
    a('s_lshl_b32 s11, s6, 1')
    a('s_add_u32 s15, s15, s11')
    a('s_mul_i32 s72, s7, 3072')
    a('s_add_u32 s72, s72, s11')
    for r in range(NR):
        a(f'buffer_load_dwordx4 v[{ZR+4*r}:{ZR+4*r+3}], v{OZ+r}, s[56:59], s72 offen')
    a(f's_mul_i32 s10, s14, {wn*16}')
    a('s_add_u32 s10, s10, s7')
    a('s_lshl_b32 s73, s10, 1')
    a('v_lshlrev_b32 v22, 1, v5')
    for j in range(wn):
        a(f'buffer_load_ushort v{BR+j}, v22, s[60:63], s73 offen offset:{32*j}')
    trans_addr(a, g, RS, TOFF)
    g.run(extra_young=NR + wn)
    stamp(a)
    a('s_waitcnt vmcnt(0)')
    a('s_barrier')
    L1 = only_compute(a)
    for j in range(wn):
        a(f'v_lshlrev_b32 v{BR+j}, 16, v{BR+j}')
    a('s_nop 3')
    rb_batch(a, [ACC + 4 * (i * wn + j) + x for (i, j) in g.tiles for x in (0, 2)], T)
    for (i, j) in g.tiles:
        ac = ACC + 4 * (i * wn + j)
        for x in range(4):
            a(f'v_add_f32 v{ac+x}, v{ac+x}, v{BR+j}')
    for (i, j) in g.tiles:
        ac = ACC + 4 * (i * wn + j)
        a(f'v_cvt_pk_bf16_f32 v{ac}, v{ac}, v{ac+1}')
        a(f'v_cvt_pk_bf16_f32 v{ac+1}, v{ac+2}, v{ac+3}')
    for (i, j) in g.tiles:
        ac = ACC + 4 * (i * wn + j)
        a(f'ds_write_b64 v20, v[{ac}:{ac+1}] offset:{16*j*RS+32*i}')
    a('s_waitcnt lgkmcnt(0)')
    a.label(L1)
    a('s_barrier')
    for r in range(NR):
        a(f'ds_read_b128 v[{CH+4*r}:{CH+4*r+3}], v{OLDS+r}')
    for r in range(NR):
        a(f's_waitcnt lgkmcnt({NR-1-r})')
        for x in range(4):
            t = T + 4 * (x & 1)
            unpack(a, t, t + 1, CH + 4 * r + x)
            unpack(a, t + 2, t + 3, ZR + 4 * r + x)
            a(f'v_pk_mul_f32 v[{t}:{t+1}], v[{t}:{t+1}], v[{t+2}:{t+3}]')
            a(f'v_cvt_pk_bf16_f32 v{CH+4*r+x}, v{t}, v{t+1}')
        a(f'buffer_store_dwordx4 v[{CH+4*r}:{CH+4*r+3}], v{OGL+r}, s[52:55], s15 offen {SC()}')
    stamp(a)
    npf = pf_wout(a)
    sync_signal(a, sig_cnt, npf)
    stamp(a)
    return CH + 8, max(g.NS * g.STG, TOFF + 64 * RS)

def e_rows(a, xsrd, xcache, ER, EY):
    XA = 48; NA = 60; TT = 72
    for jx in range(5):
        unpack(a, XA + 2 * jx, XA + 2 * jx + 1, ER + jx)
    ln_row1(a, XA, 10, 640, TT, NA, 64)
    for jx in range(5):
        unpack(a, TT + 2 * jx, TT + 2 * jx + 1, EY + jx)
    for i in range(0, 10, 2):
        a(f'v_pk_mul_f32 v[{NA+i}:{NA+i+1}], v[{NA+i}:{NA+i+1}], v[{TT+i}:{TT+i+1}]')
    for jx in range(5):
        rb2(a, NA + 2 * jx, NA + 2 * jx + 1, TT + 10 + (jx & 1))
    for i in range(0, 10, 2):
        a(f'v_pk_add_f32 v[{XA+i}:{XA+i+1}], v[{XA+i}:{XA+i+1}], v[{NA+i}:{NA+i+1}]')
    for jx in range(5):
        a(f'v_cvt_pk_bf16_f32 v{ER+jx}, v{XA+2*jx}, v{XA+2*jx+1}')
        unpack(a, XA + 2 * jx, XA + 2 * jx + 1, ER + jx)
        a(f'buffer_store_dword v{ER+jx}, v21, s[60:63], s15 offen offset:{256*jx}')
    ln_row1(a, XA, 10, 640, TT, NA, 64)
    for jx in range(5):
        a(f'v_cvt_pk_bf16_f32 v{EY+jx}, v{NA+2*jx}, v{NA+2*jx+1}')
        a(f'buffer_store_dword v{EY+jx}, v21, s[52:55], s15 offen offset:{256*jx} {SC()}')

def phase_g3(a, final, wait_cnt, sig_cnt, mid_cnt=None):
    srd_ws(a, 44, WOUTT, FH * D * 2); srd_ws(a, 48, PP, S * FH * 2)
    g = Gemm(a, 80, 64, 768, 1, 4, 8, 1536, 1536, 44, 48)
    g.bcache = 'sc1'
    a('s_mul_i32 s6, s4, 80')
    a('s_lshl_b32 s7, s5, 6')
    g.setup()
    T = g.FR; ACC = g.ACC; wn = g.wn
    TOFF = 65536; RS = 176
    OLDS = g.free; OGL = OLDS + 2
    ZR = (OGL + 2 + 3) // 4 * 4; CH = ZR + 8
    srd_ws(a, 60, X1, SZ_SD)
    if final: srd_ptr(a, 52, P_OUT, SZ_SD)
    else: srd_ws(a, 52, X2, SZ_SD)
    NR = chunk_map(a, 64, 10, RS, TOFF, 1280, OLDS, OGL)
    a('s_mul_i32 s15, s7, 1280')
    a('s_lshl_b32 s11, s6, 1')
    a('s_add_u32 s15, s15, s11')
    for r in range(NR):
        a(f'buffer_load_dwordx4 v[{ZR+4*r}:{ZR+4*r+3}], v{OGL+r}, s[60:63], s15 offen')
    trans_addr(a, g, RS, TOFF)
    sync_wait(a, wait_cnt, 8, pre=lambda: g.prologue('A'))
    stamp(a)
    g.prologue('B')
    g.run(split_prologue=True)
    stamp(a)
    a('s_waitcnt vmcnt(0)')
    a('s_barrier')
    L1 = only_compute(a)
    a('s_nop 4')
    for (i, j) in g.tiles:
        ac = ACC + 4 * (i * wn + j)
        a(f'v_cvt_pk_bf16_f32 v{ac}, v{ac}, v{ac+1}')
        a(f'v_cvt_pk_bf16_f32 v{ac+1}, v{ac+2}, v{ac+3}')
        a(f'ds_write_b64 v20, v[{ac}:{ac+1}] offset:{16*j*RS+32*i}')
    a('s_waitcnt lgkmcnt(0)')
    a.label(L1)
    a('s_barrier')
    for r in range(NR):
        a(f'ds_read_b128 v[{CH+4*r}:{CH+4*r+3}], v{OLDS+r}')
    for r in range(NR):
        a(f's_waitcnt lgkmcnt({NR-1-r})')
        for x in range(4):
            t = T + 4 * (x & 1)
            unpack(a, t, t + 1, CH + 4 * r + x)
            unpack(a, t + 2, t + 3, ZR + 4 * r + x)
            a(f'v_pk_add_f32 v[{t}:{t+1}], v[{t}:{t+1}], v[{t+2}:{t+3}]')
            a(f'v_cvt_pk_bf16_f32 v{CH+4*r+x}, v{t}, v{t+1}')
        a(f'buffer_store_dwordx4 v[{CH+4*r}:{CH+4*r+3}], v{OGL+r}, s[52:55], s15 offen {"" if final else SC()}')
    if final:
        return CH + 8, max(g.NS * g.STG, TOFF + 64 * RS)
    srd_ws(a, 56, YY, SZ_SD)
    a('s_lshl_b32 s10, s4, 3')
    a('s_add_u32 s10, s10, s7')
    a('s_add_u32 s10, s10, s3')
    a('s_mul_i32 s15, s10, 1280')
    a('v_lshlrev_b32 v21, 2, v0')
    ER = 24; EY = 30
    for jx in range(5):
        a(f'buffer_load_dword v{EY+jx}, v21, s[56:59], s15 offen offset:{256*jx}')
    stamp(a)
    npf = pf_win(a)
    sync_signal(a, mid_cnt, npf + 5)
    sync_wait(a, mid_cnt, 8)
    stamp(a)
    for jx in range(5):
        a(f'buffer_load_dword v{ER+jx}, v21, s[52:55], s15 offen offset:{256*jx} sc1')
    srd_ws(a, 52, HH, SZ_SD)
    a('s_waitcnt vmcnt(0)')
    stamp(a)
    e_rows(a, 0, '', ER, EY)
    stamp(a)
    sync_signal(a, sig_cnt)
    stamp(a)
    return max(CH + 8, 96), max(g.NS * g.STG, TOFF + 64 * RS)

def phase_e1(a, sig_cnt):
    srd_ptr(a, 44, P_Q, SZ_SD)
    srd_ws(a, 48, YT, SZ_T)
    srd_ws(a, 56, YY, SZ_SD)
    srd_ws(a, 60, X1, SZ_SD)
    srd_ws(a, 52, HH, SZ_SD)
    a('s_lshl_b32 s10, s5, 3')
    a('s_add_u32 s10, s10, s4')
    a('s_lshl_b32 s11, s10, 3')
    a('s_add_u32 s11, s11, s3')
    a('s_mul_i32 s15, s11, 1280')
    a('v_lshlrev_b32 v21, 2, v0')
    ER = 24; EY = 30
    a('s_lshl_b32 s12, s10, 4')
    a(f'v_mul_u32_u24 v6, {LDT}, v23')
    a('v_add_u32 v6, s12, v6')
    a(f'v_add_u32 v7, {512*LDT}, v6')
    a('buffer_load_dwordx4 v[36:39], v6, s[48:51], 0 offen')
    a('buffer_load_dwordx4 v[40:43], v7, s[48:51], 0 offen')
    for jx in range(5):
        a(f'buffer_load_dword v{ER+jx}, v21, s[44:47], s15 offen offset:{256*jx}')
    a('v_lshlrev_b32 v6, 4, v23')
    a('s_waitcnt vmcnt(5)')
    a('ds_write_b128 v6, v[36:39]')
    a('ds_write_b128 v6, v[40:43] offset:8192')
    a('v_lshlrev_b32 v7, 5, v0')
    a('s_lshl_b32 s12, s3, 1')
    a('v_add_u32 v7, s12, v7')
    a('s_waitcnt lgkmcnt(0)')
    a('s_barrier')
    for jx in range(5):
        a(f'ds_read_u16 v{EY+jx}, v7 offset:{2048*jx}')
        a(f'ds_read_u16 v{36+jx}, v7 offset:{2048*jx+16}')
    a('s_waitcnt vmcnt(0) lgkmcnt(0)')
    for jx in range(5):
        a(f'v_lshl_or_b32 v{EY+jx}, v{36+jx}, 16, v{EY+jx}')
        a(f'buffer_store_dword v{EY+jx}, v21, s[56:59], s15 offen offset:{256*jx}')
    stamp(a)
    a('s_nop 1')
    e_rows(a, 0, '', ER, EY)
    stamp(a)
    sync_signal(a, sig_cnt)
    stamp(a)
    return 96, 16384

def gen_first(a):
    def body():
        cnt_reg(a, 91, 192)
        t1, l1 = phase_e1(a, 91)
        t2, l2 = phase_g1(a, 0, 91)
        return max(t1, t2), max(l1, l2)
    return kernel_wrap(a, 'g1f0_kernel', body)

def gen_mid(a):
    def body():
        cnt_reg(a, 90, 0); cnt_reg(a, 91, 32); cnt_reg(a, 93, 160)
        t1, l1 = phase_g2(a, 0, 90)
        t2, l2 = phase_g3(a, False, 90, 91, 93)
        t3, l3 = phase_g1(a, 1, 91)
        return max(t1, t2, t3), max(l1, l2, l3)
    return kernel_wrap(a, 'mid_kernel', body)

def gen_last(a):
    def body():
        cnt_reg(a, 90, 64)
        t1, l1 = phase_g2(a, 1, 90)
        t2, l2 = phase_g3(a, True, 90, None)
        return max(t1, t2), max(l1, l2)
    return kernel_wrap(a, 'last_kernel', body)

def main():
    if 'stamp' in sys.argv[2:]: gen.STAMP = True
    if 'tlb' in sys.argv[2:]: gen.TLBWARM = True
    if 'code' in sys.argv[2:]: gen.CODEWARM = True
    if 'fast' in sys.argv[2:]: gen2.FAST = True
    global G2LD
    if 'ld0' in sys.argv[2:]: G2LD = (0, 0)
    if 'ldA0' in sys.argv[2:]: G2LD = (0, 4096)
    if 'ldB0' in sys.argv[2:]: G2LD = (LDT, 0)
    a = Asm()
    prep = gen_prep(a, zero=(CNT, 65536))
    conv = gen_conv(a)
    first = gen_first(a)
    mid = gen_mid(a)
    last = gen_last(a)
    launches = [prep, conv, first, mid, last]
    hdr = open('interleave_layers__ssm_conv_h3__mixer_gmlp__prompt.s.ref').read().split('; Override launch')[0]
    txt = a.text(launches, hdr).replace('CODE_TAIL_BYTES', '55000')
    out = sys.argv[1] if len(sys.argv) > 1 else 'interleave_layers__ssm_conv_h3__mixer_gmlp__prompt.s'
    open(out, 'w').write(txt)
    print('wrote', out, len(txt), 'bytes')

if __name__ == '__main__':
    main()
```

```python
import sys
sys.path.insert(0, 'dev')
from asmlib import *

S, D, F, FH = 2048, 640, 1536, 768
WINT  = 0x0000000
WOUTT = 0x0200000
LDT = 4224
UT    = 0x0300000
YT    = 0x0600000
YY    = 0x0900000
X1    = 0x0C00000
HH    = 0x0F00000
ZZ    = 0x1200000
Z2NT  = 0x1800000
PP    = 0x1C00000
X2    = 0x1F00000
SZ_SD = S * D * 2
SZ_T = D * LDT
SZ_Z2 = FH * LDT

P_Q, P_K, P_V, P_SK, P_SSMK, P_SSMD, P_BX, P_WIN, P_WSP, P_BSP, P_WOUT, P_OUT, P_DBG, P_WS = \
    [16 + 2 * i for i in range(14)]

import struct
def fhex(f): return '0x%08x' % struct.unpack('<I', struct.pack('<f', f))[0]

STAMP = False
TLBWARM = False
_stampn = [0]
def stamp_reset():
    _stampn[0] = 0
def stamp(a):
    if not STAMP: return
    i = _stampn[0]; _stampn[0] += 1
    assert i < 60
    a('s_memtime s[98:99]')
    a('s_waitcnt lgkmcnt(0)')
    a(f'v_writelane_b32 v251, s98, {i}')
def stamp_flush(a, wg=0):
    if not STAMP: return
    L = a.newlabel('Lst')
    a(f's_cmp_lg_u32 s2, {wg}')
    a(f's_cbranch_scc1 {L}')
    a('s_cmp_lg_u32 s3, 0')
    a(f's_cbranch_scc1 {L}')
    a('v_mbcnt_lo_u32_b32 v250, -1, 0')
    a('v_mbcnt_hi_u32_b32 v250, -1, v250')
    a('v_lshlrev_b32 v250, 2, v250')
    a('global_store_dword v250, v251, s[40:41]')
    a.label(L)

def load_ptrs(a):
    a('''s_load_dwordx16 s[16:31], s[0:1], 0
         s_load_dwordx8 s[32:39], s[0:1], 64
         s_load_dwordx4 s[40:43], s[0:1], 96''')

def srd_ptr(a, d, p, nbytes, off=0):
    if off:
        a(f's_add_u32 s{d}, s{p}, {off}')
        a(f's_addc_u32 s{d+1}, s{p+1}, 0')
    else:
        a(f's_mov_b32 s{d}, s{p}')
        a(f's_mov_b32 s{d+1}, s{p+1}')
    a(f's_mov_b32 s{d+2}, {nbytes}')
    a(f's_mov_b32 s{d+3}, 0x20000')

def srd_ws(a, d, off, nbytes):
    srd_ptr(a, d, P_WS, nbytes, off)

def unpack(a, lo, hi, src):
    a(f'v_lshlrev_b32 v{lo}, 16, v{src}')
    a(f'v_and_b32 v{hi}, 0xffff0000, v{src}')

def rb2(a, x0, x1, tmp):
    a(f'v_cvt_pk_bf16_f32 v{tmp}, v{x0}, v{x1}')
    unpack(a, x0, x1, tmp)

def gen_prep(a, zero=None):
    name = 'prep_kernel'
    a.begin_kernel(name)
    Lend = a.newlabel('Lend'); Lw1 = a.newlabel('Lw1'); Lw2 = a.newlabel('Lw2'); Ltr = a.newlabel('Ltr'); Ltr2 = a.newlabel('Ltr2')
    nz = (zero[1] + 4095) // 4096 if zero else 0
    a(f's_cmp_ge_u32 s2, {680+nz}')
    a(f's_cbranch_scc1 {Lend}')
    load_ptrs(a)
    a('v_and_b32 v1, 7, v0          ; cg')
    a('v_lshrrev_b32 v2, 3, v0')
    a('s_waitcnt lgkmcnt(0)')
    if zero:
        Lnz = a.newlabel('Lnz')
        a('s_cmp_lt_u32 s2, 680')
        a(f's_cbranch_scc1 {Lnz}')
        srd_ws(a, 44, zero[0], zero[1])
        a('s_sub_u32 s3, s2, 680')
        a('s_lshl_b32 s3, s3, 12')
        a('v_lshlrev_b32 v3, 4, v0')
        for i in range(4): a(f'v_mov_b32 v{4+i}, 0')
        a('buffer_store_dwordx4 v[4:7], v3, s[44:47], s3 offen')
        a(f's_branch {Lend}')
        a.label(Lnz)
    a('s_cmp_ge_u32 s2, 320')
    a(f's_cbranch_scc1 {Lw1}')
    a('s_mov_b32 s4, 0x1999999a')
    a('s_mul_hi_u32 s5, s2, s4      ; sblk')
    a('s_mul_i32 s6, s5, 10')
    a('s_sub_u32 s6, s2, s6         ; dblk')
    srd_ptr(a, 44, P_K, SZ_SD)
    srd_ptr(a, 48, P_V, SZ_SD)
    srd_ptr(a, 56, P_SK, D * 8)
    srd_ws(a, 52, UT, SZ_T)
    a('s_mul_i32 s7, s5, 64*1280')
    a('s_lshl_b32 s8, s6, 7')
    a('s_add_u32 s7, s7, s8')
    a('v_mul_u32_u24 v3, 2560, v2')
    a('v_lshl_add_u32 v3, v1, 4, v3')
    a('v_add_u32 v3, s7, v3')
    for i in range(5):
        if i < 3:
            a(f'v_subrev_u32 v{10+i}, {1280*(3-i)}, v3')
            a(f'buffer_load_dwordx4 v[{16+4*i}:{19+4*i}], v{10+i}, s[44:47], 0 offen')
        else:
            a(f'buffer_load_dwordx4 v[{16+4*i}:{19+4*i}], v3, s[44:47], 0 offen offset:{1280*(i-3)}')
    for i in range(2):
        a(f'buffer_load_dwordx4 v[{36+4*i}:{39+4*i}], v3, s[48:51], 0 offen offset:{1280*i}')
    a('s_lshl_b32 s8, s6, 9')
    a('v_lshlrev_b32 v5, 6, v1')
    a('v_add_u32 v5, s8, v5')
    for i in range(4):
        a(f'buffer_load_dwordx4 v[{44+4*i}:{47+4*i}], v5, s[56:59], 0 offen offset:{16*i}')
    a('s_waitcnt vmcnt(0)')
    KF = 64
    SK = 70
    VF = 74
    A0, A1, T0, T1, TMP = 76, 77, 78, 79, 80
    RES = 84
    for e in range(8):
        dw = e // 2; hi = e & 1
        def ext(dst, src):
            if hi: a(f'v_and_b32 v{dst}, 0xffff0000, v{src}')
            else:  a(f'v_lshlrev_b32 v{dst}, 16, v{src}')
        for i in range(5): ext(KF + i, 16 + 4 * i + dw)
        for i in range(2): ext(VF + i, 36 + 4 * i + dw)
        unpack(a, SK + 0, SK + 1, 44 + 2 * e)
        unpack(a, SK + 2, SK + 3, 44 + 2 * e + 1)
        a(f'v_mul_f32 v{A0}, v{KF+0}, v{SK+3}')
        a(f'v_mul_f32 v{A1}, v{KF+1}, v{SK+3}')
        rb2(a, A0, A1, TMP)
        for i in range(1, 4):
            a(f'v_mul_f32 v{T0}, v{KF+i}, v{SK+3-i}')
            a(f'v_mul_f32 v{T1}, v{KF+i+1}, v{SK+3-i}')
            rb2(a, T0, T1, TMP)
            a(f'v_add_f32 v{A0}, v{A0}, v{T0}')
            a(f'v_add_f32 v{A1}, v{A1}, v{T1}')
            rb2(a, A0, A1, TMP)
        a(f'v_mul_f32 v{A0}, v{A0}, v{VF}')
        a(f'v_mul_f32 v{A1}, v{A1}, v{VF+1}')
        a(f'v_cvt_pk_bf16_f32 v{RES+e}, v{A0}, v{A1}')
    a(f's_mov_b32 s60, {LDT}')
    a(f's_mul_i32 s61, s6, {64*LDT}')
    a('s_lshl_b32 s8, s5, 7')
    a('s_add_u32 s61, s61, s8')
    a(f's_branch {Ltr2}')
    a.label(Lw1)
    a('s_cmp_ge_u32 s2, 560')
    a(f's_cbranch_scc1 {Lw2}')
    a('s_sub_u32 s3, s2, 320')
    a('s_mov_b32 s4, 0x0aaaaaab')
    a('s_mul_hi_u32 s5, s3, s4      ; kblk')
    a('s_mul_i32 s6, s5, 24')
    a('s_sub_u32 s6, s3, s6         ; fblk')
    srd_ptr(a, 44, P_WIN, D * F * 2)
    srd_ws(a, 52, WINT, D * F * 2)
    a('s_mov_b32 s9, 3072')
    a('s_mul_i32 s7, s5, 64*3072')
    a('s_lshl_b32 s8, s6, 7')
    a('s_add_u32 s7, s7, s8')
    a('s_mov_b32 s60, 1280')
    a('s_mul_i32 s61, s6, 64*1280')
    a('s_lshl_b32 s8, s5, 7')
    a('s_add_u32 s61, s61, s8')
    a(f's_branch {Ltr}')
    a.label(Lw2)
    a('s_sub_u32 s3, s2, 560')
    a('s_mov_b32 s4, 0x1999999a')
    a('s_mul_hi_u32 s5, s3, s4      ; fblk')
    a('s_mul_i32 s6, s5, 10')
    a('s_sub_u32 s6, s3, s6         ; dblk')
    srd_ptr(a, 44, P_WOUT, FH * D * 2)
    srd_ws(a, 52, WOUTT, FH * D * 2)
    a('s_mov_b32 s9, 1280')
    a('s_mul_i32 s7, s5, 64*1280')
    a('s_lshl_b32 s8, s6, 7')
    a('s_add_u32 s7, s7, s8')
    a('s_mov_b32 s60, 1536')
    a('s_mul_i32 s61, s6, 64*1536')
    a('s_lshl_b32 s8, s5, 7')
    a('s_add_u32 s61, s61, s8')
    a.label(Ltr)
    a('v_lshlrev_b32 v3, 1, v2')
    a('v_mul_lo_u32 v3, v3, s9')
    a('v_lshl_add_u32 v3, v1, 4, v3')
    a('v_add_u32 v3, s7, v3')
    a('v_add_u32 v4, s9, v3')
    a('buffer_load_dwordx4 v[16:19], v3, s[44:47], 0 offen')
    a('buffer_load_dwordx4 v[20:23], v4, s[44:47], 0 offen')
    a('s_mov_b32 s10, 0x05040100')
    a('s_mov_b32 s11, 0x07060302')
    a('s_waitcnt vmcnt(0)')
    for j in range(4):
        a(f'v_perm_b32 v{84+2*j}, v{20+j}, v{16+j}, s10')
        a(f'v_perm_b32 v{85+2*j}, v{20+j}, v{16+j}, s11')
    a.label(Ltr2)
    a('v_mul_u32_u24 v5, 1088, v1')
    a('v_lshl_add_u32 v5, v2, 2, v5')
    for e in range(8):
        a(f'ds_write_b32 v5, v{84+e} offset:{136*e}')
    a('v_lshrrev_b32 v6, 2, v0       ; c')
    a('v_and_b32 v7, 3, v0           ; seg')
    a('v_mul_u32_u24 v8, 136, v6')
    a('v_lshl_add_u32 v8, v7, 5, v8')
    a('v_mul_lo_u32 v9, v6, s60')
    a('v_lshl_add_u32 v9, v7, 5, v9')
    a('v_add_u32 v9, s61, v9')
    a('s_waitcnt lgkmcnt(0)')
    a('s_barrier')
    for i in range(4):
        a(f'ds_read_b64 v[{16+2*i}:{17+2*i}], v8 offset:{8*i}')
    a('s_waitcnt lgkmcnt(0)')
    a('buffer_store_dwordx4 v[16:19], v9, s[52:55], 0 offen')
    a('buffer_store_dwordx4 v[20:23], v9, s[52:55], 0 offen offset:16')
    a.label(Lend)
    a.end_kernel(name, 96, 72)
    return (name, 680 + nz, 256, 64 * 136)

def gen_conv(a):
    name = 'conv_kernel'
    a.begin_kernel(name)
    Lend = a.newlabel('Lend')
    UB = 37504; WB = UB + 7680
    Lwarm = a.newlabel('Lwarm')
    a('s_cmp_ge_u32 s2, 214')
    a(f's_cbranch_scc1 {Lend}')
    stamp_reset(); stamp(a)
    load_ptrs(a)
    a('v_lshrrev_b32 v1, 6, v0')
    a('v_and_b32 v0, 63, v0')
    a('s_nop 0')
    a('v_readfirstlane_b32 s3, v1     ; wave')
    a('s_nop 3')
    a('s_cmp_eq_u32 s3, 3')
    a(f's_cbranch_scc1 {Lwarm}')
    a('s_mul_i32 s4, s2, 3')
    a('s_add_u32 s4, s4, s3           ; channel d')
    a('s_cmp_ge_u32 s4, 640')
    a(f's_cbranch_scc1 {Lend}')
    a(f's_mul_i32 s5, s3, {WB}')
    a('s_lshl_b32 s6, s4, 12')
    a(f's_mul_i32 s13, s4, {LDT}       ; d*LDT')
    a('s_waitcnt lgkmcnt(0)')
    stamp(a)
    a(f's_add_u32 s44, s{P_SSMK}, s6')
    a(f's_addc_u32 s45, s{P_SSMK+1}, 0')
    a('s_mov_b32 s46, 4096')
    a('s_mov_b32 s47, 0x20000')
    srd_ws(a, 48, UT, SZ_T)
    srd_ws(a, 52, YT, SZ_T)
    srd_ptr(a, 56, P_SSMD, D * 2)
    a('v_lshlrev_b32 v2, 4, v0')
    HR = 140
    for j in range(4):
        a(f'buffer_load_dwordx4 v[{HR+8*j}:{HR+8*j+3}], v2, s[44:47], 0 offen offset:{1024*j}')
        a(f'buffer_load_dwordx4 v[{HR+8*j+4}:{HR+8*j+7}], v2, s[44:47], 0 offen offset:{1024*j+16}')
    for j in range(4):
        a(f'buffer_load_dwordx4 v[{100+4*j}:{103+4*j}], v2, s[48:51], s13 offen offset:{1024*j}')
    a('v_lshrrev_b32 v3, 3, v0')
    a('v_and_b32 v4, 7, v0')
    a('v_add_u32 v3, v3, v4')
    a('v_subrev_u32 v3, 7, v3')
    a('v_max_i32 v4, 0, v3')
    a('v_lshlrev_b32 v4, 1, v4')
    a('buffer_load_ushort v5, v4, s[44:47], 0 offen')
    a('s_lshl_b32 s7, s4, 1')
    a('v_mov_b32 v6, 0')
    a('buffer_load_ushort v7, v6, s[56:59], s7 offen')
    a('v_and_b32 v8, 15, v0           ; ii / m')
    a('v_lshrrev_b32 v9, 4, v0        ; kq / q')
    a('v_lshlrev_b32 v10, 2, v9')
    a('v_and_b32 v11, 2, v9')
    a('v_lshlrev_b32 v11, 1, v11')
    a('v_xor_b32 v10, v10, v11        ; a[q] = r0 (mod 16)')
    a('v_sub_u32 v18, 15, v8')
    a('v_mul_u32_u24 v18, 96, v18')
    a('v_lshlrev_b32 v19, 1, v10')
    a('v_sub_u32 v18, v18, v19')
    a('v_add_u32 v18, s5, v18')
    a(f'v_add_u32 v18, {UB+56-32}, v18')
    a('v_lshlrev_b32 v10, 1, v10')
    a('v_lshl_add_u32 v10, v8, 6, v10')
    a('v_add_u32 v10, s5, v10')
    a('v_mov_b32 v12, 0')
    a('v_mov_b32 v13, 0')
    a('v_mov_b32 v14, 0')
    a('v_mov_b32 v15, 0')
    a('v_min_u32 v16, 26, v0')
    a('v_lshlrev_b32 v16, 4, v16')
    a('v_add_u32 v16, s5, v16')
    a('ds_write_b128 v16, v[12:15]')
    a('v_lshlrev_b32 v16, 4, v0')
    a('v_add_u32 v16, s5, v16')
    a(f'ds_write_b128 v16, v[12:15] offset:{UB+64*96}')
    a('v_min_u32 v16, 25, v0')
    a('v_lshlrev_b32 v16, 4, v16')
    a('v_add_u32 v16, s5, v16')
    a(f'ds_write_b128 v16, v[12:15] offset:{UB+64*96+1024}')
    a('v_mul_u32_u24 v16, 144, v0')
    a('v_add_u32 v16, s5, v16          ; 144*l + base')
    E0 = 20
    E1 = 29
    D1 = 39
    for j in range(4):
        d = HR + 8 * j
        a(f's_waitcnt vmcnt({12 - 2*j})')
        for k in range(7):
            a(f'v_alignbit_b32 v{E0+k}, v{d+k+1}, v{d+k}, 16')
        for k in range(1, 7):
            a(f'v_alignbit_b32 v{E1+k}, v{d+k+1}, v{d+k}, 16')
            a(f'v_mov_b32 v{D1+k}, v{d+k}')
        for p in range(8):
            off = 9216 * j + 16 * (p + (34 if p == 0 else 35))
            if p % 2 == 0:
                k = p // 2
                src = d + k if k % 2 == 0 else D1 + k
            else:
                k = (p - 1) // 2
                src = E0 + k if k % 2 == 0 else E1 + k
            assert src % 2 == 0
            a(f'ds_write_b128 v16, v[{src}:{src+3}] offset:{off}')
        a('s_nop 1')
    a('s_waitcnt vmcnt(0)')
    a('s_barrier')
    a('v_cmp_gt_i32 vcc, 0, v3')
    a('s_nop 1')
    a('v_cndmask_b32 v5, v5, v12, vcc')
    a('v_lshlrev_b32 v16, 1, v0')
    a('v_add_u32 v16, s5, v16')
    a('ds_write_b16 v16, v5 offset:432')
    a('v_sub_u32 v16, 63, v0          ; 63-l ; pc = (63-l) + 64*(3-j)')
    a('v_lshrrev_b32 v17, 2, v16')
    a('v_and_b32 v16, 3, v16')
    a('v_mul_u32_u24 v17, 96, v17')
    a('v_lshl_add_u32 v17, v16, 4, v17')
    a('v_add_u32 v17, s5, v17')
    for j in range(4):
        s0 = 100 + 4 * j
        t0 = 48 + 4 * j
        for x in range(4):
            a(f'v_alignbit_b32 v{t0+x}, v{s0+3-x}, v{s0+3-x}, 16')
        a(f'ds_write_b128 v17, v[{t0}:{t0+3}] offset:{UB + 96*16*(3-j)}')
    a('v_lshrrev_b32 v16, 1, v8')
    a('v_and_b32 v16, 4, v16')
    a('v_xor_b32 v16, v8, v16         ; rr')
    a('v_lshl_add_u32 v16, v9, 3, v16')
    a('v_lshrrev_b32 v17, 3, v16')
    a('v_add_u32 v16, v16, v17        ; x + (x>>3)')
    a('v_lshlrev_b32 v16, 4, v16')
    a('v_add_u32 v16, s5, v16         ; A addr')
    a('v_sub_u32 v17, 15, v8')
    a('v_mul_u32_u24 v17, 96, v17')
    a('v_lshl_add_u32 v17, v9, 4, v17')
    a('v_add_u32 v17, s5, v17')
    a(f'v_add_u32 v17, {UB}, v17        ; B addr')
    ACC = 64
    for i in range(32):
        a(f'v_mov_b32 v{ACC+i}, 0')
    for i in range(16):
        a(f'v_mov_b32 v{164+i}, 0')
    FR = [20, 140, 96]
    def nreads(t): return (2 + 4 - (t >> 4)) if t < 64 else 0
    def reads(t):
        f = FR[t % 3]
        for j in range(2):
            a(f'ds_read_b128 v[{f+4*j}:{f+4*j+3}], v16 offset:{576*t+288*j}')
        for c in range(t >> 4, 4):
            a(f'ds_read_b128 v[{f+8+4*c}:{f+11+4*c}], v17 offset:{96*(48-16*c+t)}')
    a('s_waitcnt lgkmcnt(0)')
    stamp(a)
    reads(0); reads(1)
    for t in range(64):
        if t + 2 < 64: reads(t + 2)
        a(f's_waitcnt lgkmcnt({nreads(t+1) + nreads(t+2)})')
        f = FR[t % 3]
        for c in range(t >> 4, 4):
            for j in range(2):
                ac = ACC + 4 * (2 * c + j)
                if c >= 2 and (t & 1) and t >= 32: ac = 164 + 4 * (2 * (c - 2) + j)
                a(f'v_mfma_f32_16x16x32_bf16 v[{ac}:{ac+3}], v[{f+4*j}:{f+4*j+3}], v[{f+8+4*c}:{f+11+4*c}], v[{ac}:{ac+3}]')
    a('s_nop 7')
    a('s_nop 1')
    for i in range(16):
        a(f'v_add_f32 v{ACC+16+i}, v{ACC+16+i}, v{164+i}')
    stamp(a)
    for c in range(4):
        for j in range(2):
            ur = 120 + 2 * (2 * c + j)
            a(f'ds_read_b64 v[{ur}:{ur+1}], v18 offset:{96*(48-16*c) + 32*(1-j)}')
    a('v_lshlrev_b32 v7, 16, v7       ; D as f32')
    a('s_nop 7')
    a('s_waitcnt lgkmcnt(0)')
    for c in range(4):
        for j in range(2):
            ac = ACC + 4 * (2 * c + j)
            ur = 120 + 2 * (2 * c + j)
            rb2(a, ac, ac + 1, 18)
            rb2(a, ac + 2, ac + 3, 19)
            unpack(a, 23, 22, ur)
            unpack(a, 21, 20, ur + 1)
            for x in range(4):
                a(f'v_mul_f32 v{20+x}, v{20+x}, v7')
            rb2(a, 20, 21, 18)
            rb2(a, 22, 23, 19)
            for x in range(4):
                a(f'v_add_f32 v{ac+x}, v{ac+x}, v{20+x}')
            a(f'v_cvt_pk_bf16_f32 v{ur}, v{ac}, v{ac+1}')
            a(f'v_cvt_pk_bf16_f32 v{ur+1}, v{ac+2}, v{ac+3}')
            a(f'ds_write_b64 v10, v[{ur}:{ur+1}] offset:{1024*c+32*j}')
    a('v_add_u32 v16, s5, v2')
    a('s_waitcnt lgkmcnt(0)')
    for x in range(4):
        a(f'ds_read_b128 v[{20+4*x}:{23+4*x}], v16 offset:{1024*x}')
    for x in range(4):
        a(f's_waitcnt lgkmcnt({3-x})')
        a(f'buffer_store_dwordx4 v[{20+4*x}:{23+4*x}], v2, s[52:55], s13 offen offset:{1024*x}')
    if STAMP:
        stamp(a)
        a('s_waitcnt vmcnt(0)')
        stamp(a)
        stamp_flush(a, 37)
    a(f's_branch {Lend}')
    a.label(Lwarm)
    a('s_waitcnt lgkmcnt(0)')
    a('s_barrier')
    srd_ptr(a, 44, P_WSP, S * S * 2)
    srd_ptr(a, 48, P_Q, SZ_SD)
    a('s_mul_i32 s4, s2, 40960')
    a('s_mul_i32 s5, s2, 13312')
    a('v_lshlrev_b32 v1, 4, v0')
    if TLBWARM:
        srd_ws(a, 52, 0, 0x2900000)
        srd_ptr(a, 56, P_OUT, SZ_SD)
        a('v_mul_u32_u24 v2, 655360, v0')
        a('buffer_load_dword v3, v2, s[52:55], 0 offen')
        a('v_mul_u32_u24 v2, 40960, v0')
        a('buffer_load_dword v4, v2, s[56:59], 0 offen')
    for i in range(13):
        a(f'buffer_load_dwordx4 v[{8+4*i}:{11+4*i}], v1, s[48:51], s5 offen')
        a('s_add_u32 s5, s5, 1024')
    for i in range(40):
        a(f'buffer_load_dwordx4 v[{8+4*(i%40)}:{11+4*(i%40)}], v1, s[44:47], s4 offen')
        a('s_add_u32 s4, s4, 1024')
    a('s_waitcnt vmcnt(0)')
    a.label(Lend)
    a.end_kernel(name, 256 if STAMP else 184, 102 if STAMP else 72)
    return (name, 214, 256, 3 * WB)

def reduce2(a, va, vb, sbase):
    for n in (8, 4, 2, 1):
        a('s_nop 1')
        a(f'v_add_f32_dpp v{va}, v{va}, v{va} row_ror:{n} row_mask:0xf bank_mask:0xf')
        a(f'v_add_f32_dpp v{vb}, v{vb}, v{vb} row_ror:{n} row_mask:0xf bank_mask:0xf')
    a('s_nop 0')
    for i in range(4):
        a(f'v_readlane_b32 s{sbase+i}, v{va}, {16*i}')
    for i in range(4):
        a(f'v_readlane_b32 s{sbase+4+i}, v{vb}, {16*i}')
    a(f'v_mov_b32 v{va}, s{sbase}')
    a(f'v_add_f32 v{va}, s{sbase+1}, v{va}')
    a(f'v_add_f32 v{va}, s{sbase+2}, v{va}')
    a(f'v_add_f32 v{va}, s{sbase+3}, v{va}')
    a(f'v_mov_b32 v{vb}, s{sbase+4}')
    a(f'v_add_f32 v{vb}, s{sbase+5}, v{vb}')
    a(f'v_add_f32 v{vb}, s{sbase+6}, v{vb}')
    a(f'v_add_f32 v{vb}, s{sbase+7}, v{vb}')

def ln_rows2(a, xa, xb, n, ntot, t, outa, outb, sbase):
    sa, sb_, ma, mb, ra, rb_ = t, t + 1, t + 2, t + 3, t + 4, t + 5
    tm = t + 6
    da = t + 8; db = t + 8 + n
    inv = 1.0 / ntot
    import struct
    invh = '0x%08x' % struct.unpack('<I', struct.pack('<f', inv))[0]
    for (x, s_) in ((xa, sa), (xb, sb_)):
        a(f'v_add_f32 v{s_}, v{x}, v{x+1}')
        for i in range(2, n):
            a(f'v_add_f32 v{s_}, v{s_}, v{x+i}')
    reduce2(a, sa, sb_, sbase)
    a(f'v_mul_f32 v{ma}, {invh}, v{sa}')
    a(f'v_mul_f32 v{mb}, {invh}, v{sb_}')
    for (x, d, m, s_) in ((xa, da, ma, sa), (xb, db, mb, sb_)):
        for i in range(n):
            a(f'v_sub_f32 v{d+i}, v{x+i}, v{m}')
        a(f'v_mul_f32 v{s_}, v{d}, v{d}')
        for i in range(1, n):
            a(f'v_fmac_f32 v{s_}, v{d+i}, v{d+i}')
    reduce2(a, sa, sb_, sbase)
    a(f'v_mul_f32 v{sa}, {invh}, v{sa}')
    a(f'v_mul_f32 v{sb_}, {invh}, v{sb_}')
    rb2(a, ma, mb, tm)
    rb2(a, sa, sb_, tm)
    a(f'v_add_f32 v{sa}, 0x3727c5ac, v{sa}')
    a(f'v_add_f32 v{sb_}, 0x3727c5ac, v{sb_}')
    rb2(a, sa, sb_, tm)
    a(f'v_sqrt_f32 v{sa}, v{sa}')
    a(f'v_sqrt_f32 v{sb_}, v{sb_}')
    a('s_nop 0')
    rb2(a, sa, sb_, tm)
    a(f'v_rcp_f32 v{ra}, v{sa}')
    a(f'v_rcp_f32 v{rb_}, v{sb_}')
    a('s_nop 0')
    for (x, o, m, r) in ((xa, outa, ma, ra), (xb, outb, mb, rb_)):
        for i in range(0, n, 2):
            a(f'v_sub_f32 v{o+i}, v{x+i}, v{m}')
            a(f'v_sub_f32 v{o+i+1}, v{x+i+1}, v{m}')
            rb2(a, o + i, o + i + 1, tm)
            a(f'v_mul_f32 v{o+i}, v{o+i}, v{r}')
            a(f'v_mul_f32 v{o+i+1}, v{o+i+1}, v{r}')
            rb2(a, o + i, o + i + 1, tm)

def ln_row1(a, x, n, ntot, t, out, sbase):
    s1, s2, m, r, tm = t, t + 1, t + 2, t + 3, t + 4
    d = t + 8
    invh = fhex(1.0 / ntot)
    sp = sbase + 8
    a('s_nop 0')
    a(f'v_readfirstlane_b32 s{sp}, v{x}')
    a('s_nop 1')
    for i in range(n):
        a(f'v_subrev_f32 v{d+i}, s{sp}, v{x+i}')
    a(f'v_add_f32 v{s1}, v{d}, v{d+1}')
    a(f'v_mul_f32 v{s2}, v{d}, v{d}')
    for i in range(1, n):
        if i >= 2: a(f'v_add_f32 v{s1}, v{s1}, v{d+i}')
        a(f'v_fmac_f32 v{s2}, v{d+i}, v{d+i}')
    reduce2(a, s1, s2, sbase)
    a(f'v_mul_f32 v{s1}, {invh}, v{s1}')
    a(f'v_mul_f32 v{s2}, {invh}, v{s2}')
    a(f'v_fma_f32 v{s2}, -v{s1}, v{s1}, v{s2}  ; var')
    a(f'v_max_f32 v{s2}, 0, v{s2}')
    a(f'v_add_f32 v{m}, s{sp}, v{s1}           ; mean')
    rb2(a, m, s2, tm)
    a(f'v_add_f32 v{s2}, 0x3727c5ac, v{s2}')
    a(f'v_cvt_pk_bf16_f32 v{tm}, v{s2}, v{s2}')
    a(f'v_lshlrev_b32 v{s2}, 16, v{tm}')
    a(f'v_sqrt_f32 v{s2}, v{s2}')
    a('s_nop 0')
    a(f'v_cvt_pk_bf16_f32 v{tm}, v{s2}, v{s2}')
    a(f'v_lshlrev_b32 v{s2}, 16, v{tm}')
    a(f'v_rcp_f32 v{r}, v{s2}')
    for i in range(n):
        a(f'v_sub_f32 v{out+i}, v{x+i}, v{m}')
    for i in range(0, n, 2):
        rb2(a, out + i, out + i + 1, tm + (i // 2) % 2)
    for i in range(n):
        a(f'v_mul_f32 v{out+i}, v{out+i}, v{r}')
    for i in range(0, n, 2):
        rb2(a, out + i, out + i + 1, tm + (i // 2) % 2)

def gen_e(a, first):
    name = 'e1_kernel' if first else 'e2_kernel'
    a.begin_kernel(name)
    Lend = a.newlabel('Lend')
    a('s_cmp_ge_u32 s2, 256')
    a(f's_cbranch_scc1 {Lend}')
    stamp_reset(); stamp(a)
    load_ptrs(a)
    a('v_lshrrev_b32 v1, 6, v0')
    a('v_and_b32 v2, 63, v0          ; lane')
    a('s_and_b32 s5, s2, 7')
    a('s_lshl_b32 s5, s5, 5')
    a('s_lshr_b32 s6, s2, 3')
    a('s_add_u32 s5, s5, s6')
    a('s_waitcnt lgkmcnt(0)')
    stamp(a)
    if first:
        srd_ptr(a, 44, P_Q, SZ_SD)
        srd_ws(a, 48, YT, SZ_T)
    else:
        srd_ws(a, 44, X2, SZ_SD)
    srd_ws(a, 52, YY, SZ_SD)
    srd_ws(a, 56, X1, SZ_SD)
    srd_ws(a, 60, HH, SZ_SD)
    a('s_mul_i32 s3, s5, 8*1280')
    a('v_mul_u32_u24 v3, 1280, v1')
    a('v_lshl_add_u32 v3, v2, 2, v3')
    a('v_add_u32 v3, s3, v3')
    XR = 16; YR = 22
    if first:
        a('s_lshl_b32 s4, s5, 4')
        a(f'v_mul_u32_u24 v4, {LDT}, v0')
        a('v_add_u32 v4, s4, v4')
        a(f'v_add_u32 v5, {512*LDT}, v4')
        a('buffer_load_dwordx4 v[36:39], v4, s[48:51], 0 offen')
        a('buffer_load_dwordx4 v[40:43], v5, s[48:51], 0 offen')
    for j in range(5):
        a(f'buffer_load_dword v{XR+j}, v3, s[44:47], 0 offen offset:{256*j}')
    if first:
        a('v_lshlrev_b32 v4, 4, v0')
        a('s_waitcnt vmcnt(5)')
        a('ds_write_b128 v4, v[36:39]')
        a('ds_write_b128 v4, v[40:43] offset:8192')
        a('v_lshlrev_b32 v5, 5, v2')
        a('v_lshl_add_u32 v5, v1, 1, v5')
        a('s_waitcnt lgkmcnt(0)')
        a('s_barrier')
        for j in range(5):
            a(f'ds_read_u16 v{YR+j}, v5 offset:{2048*j}')
            a(f'ds_read_u16 v{36+j}, v5 offset:{2048*j+16}')
        a('s_waitcnt vmcnt(0) lgkmcnt(0)')
        for j in range(5):
            a(f'v_lshl_or_b32 v{YR+j}, v{36+j}, 16, v{YR+j}')
        for j in range(5):
            a(f'buffer_store_dword v{YR+j}, v3, s[52:55], 0 offen offset:{256*j}')
    else:
        for j in range(5):
            a(f'buffer_load_dword v{YR+j}, v3, s[52:55], 0 offen offset:{256*j}')
        a('s_waitcnt vmcnt(0)')
    XA = 48; NA = 60; T = 72
    stamp(a)
    for j in range(5):
        unpack(a, XA + 2 * j, XA + 2 * j + 1, XR + j)
    ln_row1(a, XA, 10, 640, T, NA, 64)
    for j in range(5):
        unpack(a, T + 2 * j, T + 2 * j + 1, YR + j)
    for i in range(10):
        a(f'v_mul_f32 v{NA+i}, v{NA+i}, v{T+i}')
    for j in range(5):
        rb2(a, NA + 2 * j, NA + 2 * j + 1, T + 10 + (j & 1))
    for i in range(10):
        a(f'v_add_f32 v{XA+i}, v{XA+i}, v{NA+i}')
    for j in range(5):
        a(f'v_cvt_pk_bf16_f32 v{XR+j}, v{XA+2*j}, v{XA+2*j+1}')
        unpack(a, XA + 2 * j, XA + 2 * j + 1, XR + j)
        a(f'buffer_store_dword v{XR+j}, v3, s[56:59], 0 offen offset:{256*j}')
    ln_row1(a, XA, 10, 640, T, NA, 64)
    for j in range(5):
        a(f'v_cvt_pk_bf16_f32 v{YR+j}, v{NA+2*j}, v{NA+2*j+1}')
        a(f'buffer_store_dword v{YR+j}, v3, s[60:63], 0 offen offset:{256*j}')
    if STAMP:
        stamp(a)
        a('s_waitcnt vmcnt(0)')
        stamp(a)
        stamp_flush(a, 37)
    a.label(Lend)
    a.end_kernel(name, 256 if STAMP else 96, 102 if STAMP else 80)
    return (name, 256, 512, 16384 if first else 0)

def gen_ln2(a):
    name = 'ln2_kernel'
    a.begin_kernel(name)
    Lend = a.newlabel('Lend')
    a('s_cmp_ge_u32 s2, 128')
    a(f's_cbranch_scc1 {Lend}')
    stamp_reset(); stamp(a)
    load_ptrs(a)
    a('v_lshrrev_b32 v1, 6, v0       ; wave')
    a('v_and_b32 v2, 63, v0          ; lane')
    a('s_and_b32 s5, s2, 7')
    a('s_lshl_b32 s5, s5, 4')
    a('s_lshr_b32 s6, s2, 3')
    a('s_add_u32 s5, s5, s6')
    a('s_waitcnt lgkmcnt(0)')
    stamp(a)
    srd_ws(a, 44, ZZ, S * F * 2)
    srd_ws(a, 48, Z2NT, SZ_Z2)
    a('s_mul_i32 s3, s5, 16*3072')
    a('s_add_u32 s3, s3, 1536')
    a('v_mul_u32_u24 v3, 4*3072, v1')
    a('v_lshl_add_u32 v3, v2, 2, v3')
    a('v_add_u32 v3, s3, v3')
    R = 16
    for r in range(4):
        if r: a(f'v_add_u32 v{3+r}, {3072*r}, v3')
    for r in range(4):
        for j in range(6):
            a(f'buffer_load_dword v{R+6*r+j}, v{3+r}, s[44:47], 0 offen offset:{256*j}')
    a('v_lshlrev_b32 v8, 6, v2')
    a('v_lshl_add_u32 v8, v1, 3, v8')
    a('s_waitcnt vmcnt(0)')
    XA, XB, T = 48, 60, 80
    stamp(a)
    for p in range(2):
        for j in range(6):
            unpack(a, XA + 2 * j, XA + 2 * j + 1, R + 12 * p + j)
            unpack(a, XB + 2 * j, XB + 2 * j + 1, R + 12 * p + 6 + j)
        ln_rows2(a, XA, XB, 12, 768, T, XA, XB, 64)
        for i in range(12):
            a(f'v_cvt_pk_bf16_f32 v{T+i}, v{XA+i}, v{XB+i}')
            a(f'ds_write_b32 v8, v{T+i} offset:{4096*(i//2) + 32*(i&1) + 4*p}')
    a('v_lshlrev_b32 v9, 5, v0')
    a('s_lshl_b32 s4, s5, 5')
    a(f'v_mul_u32_u24 v10, {LDT}, v0')
    a('v_add_u32 v10, s4, v10')
    a('s_waitcnt lgkmcnt(0)')
    a('s_barrier')
    for i in range(3):
        a(f'ds_read_b128 v[{16+8*i}:{19+8*i}], v9 offset:{8192*i}')
        a(f'ds_read_b128 v[{20+8*i}:{23+8*i}], v9 offset:{8192*i+16}')
    a('s_waitcnt lgkmcnt(0)')
    for i in range(3):
        if i: a(f'v_add_u32 v10, {256*LDT}, v10')
        a(f'buffer_store_dwordx4 v[{16+8*i}:{19+8*i}], v10, s[48:51], 0 offen')
        a(f'buffer_store_dwordx4 v[{20+8*i}:{23+8*i}], v10, s[48:51], 0 offen offset:16')
    if STAMP:
        stamp(a)
        a('s_waitcnt vmcnt(0)')
        stamp(a)
        stamp_flush(a, 37)
    a.label(Lend)
    a.end_kernel(name, 256 if STAMP else 128, 102 if STAMP else 80)
    return (name, 128, 256, 24576)

def gen_gemm(a, name, kind, BM, BN, K, WM, WN, NS, ntm, ntn, ldA, ldB, final=False):
    wm = BM // WM // 16; wn = BN // WN // 16
    nst = K // 64
    STG = (BM + BN) * 128
    ngA = BM // 8; ngB = BN // 8
    nAw = (ngA + 3) // 4; nBw = (ngB + 3) // 4
    npw = nAw + nBw
    a.begin_kernel(name)
    Lend = a.newlabel('Lend')
    a(f's_cmp_ge_u32 s2, {ntm*ntn}')
    a(f's_cbranch_scc1 {Lend}')
    stamp_reset(); stamp(a)
    load_ptrs(a)
    a('v_lshrrev_b32 v1, 6, v0')
    a('v_and_b32 v0, 63, v0')
    a('s_nop 0')
    a('v_readfirstlane_b32 s3, v1     ; wave')
    assert ntm in (8, 16)
    a('s_and_b32 s10, s2, 7')
    a('s_lshr_b32 s11, s2, 3')
    if ntm == 8:
        a('s_and_b32 s4, s11, 7')
        a('s_lshr_b32 s5, s11, 3')
        a('s_lshl_b32 s10, s10, 2')
        a('s_add_u32 s5, s5, s10')
    else:
        a('s_and_b32 s4, s11, 7')
        a('s_and_b32 s12, s10, 1')
        a('s_lshl_b32 s12, s12, 3')
        a('s_add_u32 s4, s4, s12')
        a('s_lshr_b32 s5, s11, 3')
        a('s_lshr_b32 s10, s10, 1')
        a('s_lshl_b32 s10, s10, 2')
        a('s_add_u32 s5, s5, s10')
    a(f's_mul_i32 s6, s4, {BM}          ; m0')
    a(f's_mul_i32 s7, s5, {BN}          ; n0')
    a('s_waitcnt lgkmcnt(0)')
    stamp(a)
    if kind == 'g1':
        srd_ws(a, 44, WINT, D * F * 2); srd_ws(a, 48, HH, SZ_SD); srd_ws(a, 52, ZZ, S * F * 2); ldo = 3072
    elif kind == 'g2':
        srd_ws(a, 44, Z2NT, FH * S * 2); srd_ptr(a, 48, P_WSP, S * S * 2); srd_ws(a, 52, PP, S * FH * 2); ldo = 1536
        srd_ws(a, 56, ZZ, S * F * 2); srd_ptr(a, 60, P_BSP, S * 2)
    else:
        srd_ws(a, 44, WOUTT, FH * D * 2); srd_ws(a, 48, PP, S * FH * 2); ldo = 1280
        if final: srd_ptr(a, 52, P_OUT, SZ_SD)
        else: srd_ws(a, 52, X2, SZ_SD)
        srd_ws(a, 56, X1, SZ_SD)
    a(f's_mul_i32 s8, s6, {ldA}         ; A soffset')
    a(f's_mul_i32 s9, s7, {ldB}         ; B soffset')
    a('v_lshrrev_b32 v2, 3, v0        ; l>>3')
    a('v_lshrrev_b32 v3, 4, v0        ; l>>4')
    a('v_and_b32 v4, 7, v0            ; l&7')
    VA = 8; VB = VA + nAw
    SMA = 64; SMB = SMA + nAw
    def grp_setup(i, ng, ld, vdst, sdst, ldsbase):
        if 4 * i + 3 < ng:
            a(f's_add_u32 s10, s3, {4*i}')
        else:
            assert ng - 4 * i == 2
            a('s_and_b32 s10, s3, 1')
            a(f's_add_u32 s10, s10, {4*i}')
        a('s_lshl_b32 s11, s10, 2')
        a('v_add_u32 v5, s11, v3')
        a('v_and_b32 v5, 7, v5')
        a('v_xor_b32 v5, v5, v4')
        a('s_lshl_b32 s11, s10, 3')
        a('v_add_u32 v6, s11, v2          ; row')
        a(f's_mov_b32 s12, {ld}')
        a('v_mul_lo_u32 v6, v6, s12')
        a(f'v_lshl_add_u32 v{vdst}, v5, 4, v6')
        a(f's_lshl_b32 s{sdst}, s10, 10')
        if ldsbase: a(f's_add_u32 s{sdst}, s{sdst}, {ldsbase}')
    for i in range(nAw): grp_setup(i, ngA, ldA, VA + i, SMA + i, 0)
    for i in range(nBw): grp_setup(i, ngB, ldB, VB + i, SMB + i, BM * 128)
    def issue(st):
        buf = (st % NS) * STG
        for i in range(nAw):
            a(f's_add_u32 m0, s{SMA+i}, {buf}')
            a('s_nop 0')
            a(f'buffer_load_dwordx4 v{VA+i}, s[44:47], s8 offen lds')
        for i in range(nBw):
            a(f's_add_u32 m0, s{SMB+i}, {buf}')
            a('s_nop 0')
            a(f'buffer_load_dwordx4 v{VB+i}, s[48:51], s9 offen lds')
        a('s_add_u32 s8, s8, 128')
        a('s_add_u32 s9, s9, 128')
    for st in range(min(NS - 1, nst)):
        issue(st)
    if WN == 4:   a('s_mov_b32 s13, 0'); a('s_mov_b32 s14, s3')
    elif WN == 2: a('s_lshr_b32 s13, s3, 1'); a('s_and_b32 s14, s3, 1')
    else:         a('s_mov_b32 s13, s3'); a('s_mov_b32 s14, 0')
    a('v_and_b32 v5, 15, v0')
    a('v_lshrrev_b32 v6, 1, v5')
    a('v_xor_b32 v6, v6, v3')
    a('v_lshlrev_b32 v6, 4, v6')
    a('v_lshl_add_u32 v6, v5, 7, v6')
    a('v_xor_b32 v7, 64, v6           ; ks=1')
    nwin = (NS * STG + 65535) // 65536
    RA = 24; RBb = RA + 2 * nwin
    a(f's_mul_i32 s10, s13, {wm*16*128}')
    a(f's_mul_i32 s11, s14, {wn*16*128}')
    a(f's_add_u32 s11, s11, {BM*128}')
    for w in range(nwin):
        for ks in range(2):
            a(f'v_add_u32 v{RA+2*w+ks}, s10, v{6+ks}')
            a(f'v_add_u32 v{RBb+2*w+ks}, s11, v{6+ks}')
            if w:
                a(f'v_add_u32 v{RA+2*w+ks}, {65536*w}, v{RA+2*w+ks}')
                a(f'v_add_u32 v{RBb+2*w+ks}, {65536*w}, v{RBb+2*w+ks}')
    FR = 40
    nfr = wm + wn
    ACC = FR + 2 * nfr * 4
    for i in range(wm * wn * 4):
        a(f'v_mov_b32 v{ACC+i}, 0')
    for st in range(nst):
        later = min(NS - 2, nst - 1 - st)
        a(f's_waitcnt vmcnt({later*npw})')
        a('s_barrier')
        if st in (0, 1, nst // 2, nst - 1): stamp(a)
        if st + NS - 1 < nst: issue(st + NS - 1)
        buf = (st % NS) * STG
        for ks in range(2):
            for i in range(wm):
                off = buf + i * 2048
                w = off >> 16
                a(f'ds_read_b128 v[{FR+(ks*nfr+i)*4}:{FR+(ks*nfr+i)*4+3}], v{RA+2*w+ks} offset:{off&65535}')
            for j in range(wn):
                off = buf + j * 2048
                w = off >> 16
                a(f'ds_read_b128 v[{FR+(ks*nfr+wm+j)*4}:{FR+(ks*nfr+wm+j)*4+3}], v{RBb+2*w+ks} offset:{off&65535}')
        for ks in range(2):
            a(f's_waitcnt lgkmcnt({nfr if ks == 0 else 0})')
            for i in range(wm):
                for j in range(wn):
                    ac = ACC + 4 * (i * wn + j)
                    fa = FR + (ks * nfr + i) * 4; fb = FR + (ks * nfr + wm + j) * 4
                    a(f'v_mfma_f32_16x16x32_bf16 v[{ac}:{ac+3}], v[{fa}:{fa+3}], v[{fb}:{fb+3}], v[{ac}:{ac+3}]')
    stamp(a)
    a(f's_mov_b32 s12, {ldo}')
    a('v_mul_lo_u32 v2, v5, s12')
    a('v_lshl_add_u32 v2, v3, 3, v2')
    a(f's_mul_i32 s10, s14, {wn*16}')
    a('s_add_u32 s10, s10, s7          ; n base')
    a(f's_mul_i32 s11, s13, {wm*16}')
    a('s_add_u32 s11, s11, s6          ; m base')
    a(f's_mul_i32 s15, s10, {ldo}')
    a('s_lshl_b32 s11, s11, 1')
    a('s_add_u32 s15, s15, s11')
    T = FR
    if kind == 'g2':
        a('s_mov_b32 s12, 3072')
        a('v_mul_lo_u32 v4, v5, s12')
        a('v_lshl_add_u32 v4, v3, 3, v4')
        a('s_mul_i32 s72, s10, 3072')
        a('s_add_u32 s72, s72, s11')
        a('v_lshlrev_b32 v6, 1, v5')
        a('s_lshl_b32 s73, s10, 1')
        ZR = ACC + wm * wn * 4
        BR = ZR + wm * wn * 2
        for j in range(wn):
            for i in range(wm):
                r = ZR + 2 * (i * wn + j)
                a(f'buffer_load_dwordx2 v[{r}:{r+1}], v4, s[56:59], s72 offen offset:{32*i}')
            a(f'buffer_load_ushort v{BR+j}, v6, s[60:63], s73 offen offset:{32*j}')
            if j + 1 < wn: a(f's_add_u32 s72, s72, {16*3072}')
        top = BR + wn
    elif kind == 'g3':
        ZR = ACC + wm * wn * 4
        a('s_mov_b32 s72, s15')
        for j in range(wn):
            for i in range(wm):
                r = ZR + 2 * (i * wn + j)
                a(f'buffer_load_dwordx2 v[{r}:{r+1}], v2, s[56:59], s72 offen offset:{32*i}')
            if j + 1 < wn: a(f's_add_u32 s72, s72, {16*ldo}')
        top = ZR + wm * wn * 2
    else:
        top = ACC + wm * wn * 4
    a('s_nop 7')
    a('s_waitcnt vmcnt(0)')
    for j in range(wn):
        if kind == 'g2':
            a(f'v_lshlrev_b32 v{BR+j}, 16, v{BR+j}')
        for i in range(wm):
            ac = ACC + 4 * (i * wn + j)
            rb2(a, ac, ac + 1, T)
            rb2(a, ac + 2, ac + 3, T + 1)
            if kind == 'g1':
                c1 = -2.0 * 1.4426950408889634 * 0.7978845608028654
                c2 = c1 * 0.044715
                import struct
                h = lambda f: '0x%08x' % struct.unpack('<I', struct.pack('<f', f))[0]
                a(f's_mov_b32 s74, {h(c1)}')
                for x in range(4):
                    a(f'v_mul_f32 v{T+4+x}, v{ac+x}, v{ac+x}')
                for x in range(4):
                    a(f'v_mul_f32 v{T+4+x}, {h(c2)}, v{T+4+x}')
                for x in range(4):
                    a(f'v_add_f32 v{T+4+x}, s74, v{T+4+x}')
                for x in range(4):
                    a(f'v_mul_f32 v{T+4+x}, v{T+4+x}, v{ac+x}')
                for x in range(4):
                    a(f'v_exp_f32 v{T+4+x}, v{T+4+x}')
                a('s_nop 0')
                for x in range(4):
                    a(f'v_add_f32 v{T+4+x}, 1.0, v{T+4+x}')
                for x in range(4):
                    a(f'v_rcp_f32 v{T+4+x}, v{T+4+x}')
                a('s_nop 0')
                for x in range(4):
                    a(f'v_mul_f32 v{ac+x}, v{ac+x}, v{T+4+x}')
            elif kind == 'g2':
                r = ZR + 2 * (i * wn + j)
                for x in range(4):
                    a(f'v_add_f32 v{ac+x}, v{ac+x}, v{BR+j}')
                rb2(a, ac, ac + 1, T)
                rb2(a, ac + 2, ac + 3, T + 1)
                unpack(a, T + 4, T + 5, r)
                unpack(a, T + 6, T + 7, r + 1)
                for x in range(4):
                    a(f'v_mul_f32 v{ac+x}, v{ac+x}, v{T+4+x}')
            else:
                r = ZR + 2 * (i * wn + j)
                unpack(a, T + 4, T + 5, r)
                unpack(a, T + 6, T + 7, r + 1)
                for x in range(4):
                    a(f'v_add_f32 v{ac+x}, v{ac+x}, v{T+4+x}')
            a(f'v_cvt_pk_bf16_f32 v{ac}, v{ac}, v{ac+1}')
            a(f'v_cvt_pk_bf16_f32 v{ac+1}, v{ac+2}, v{ac+3}')
            a(f'buffer_store_dwordx2 v[{ac}:{ac+1}], v2, s[52:55], s15 offen offset:{32*i}')
        if j + 1 < wn: a(f's_add_u32 s15, s15, {16*ldo}')
    if STAMP:
        stamp(a)
        a('s_waitcnt vmcnt(0)')
        stamp(a)
        stamp_flush(a, 37)
    a.label(Lend)
    a.end_kernel(name, 256 if STAMP else max(top, 64), 102 if STAMP else 80)
    return (name, ntm * ntn, 256, NS * STG)


def gen_gemm2(a, name, kind, BM, BN, K, WM, WN, KS, NS, ntm, ntn, ldA, ldB, final=False):
    assert WM * WN * KS == 8
    wm = BM // WM // 16; wn = BN // WN // 16
    nst = K // 64
    STG = (BM + BN) * 128
    ngA = BM // 8; ngB = BN // 8
    slots = []
    for g0 in range(0, ngA, 8): slots.append(('A', g0, min(8, ngA - g0)))
    for g0 in range(0, ngB, 8): slots.append(('B', g0, min(8, ngB - g0)))
    npw = sum(1 for s_ in slots if s_[2] == 8)
    a.begin_kernel(name)
    Lend = a.newlabel('Lend')
    a(f's_cmp_ge_u32 s2, {ntm*ntn}')
    a(f's_cbranch_scc1 {Lend}')
    stamp_reset(); stamp(a)
    load_ptrs(a)
    a('v_mov_b32 v23, v0              ; tid')
    a('v_lshrrev_b32 v1, 6, v0')
    a('v_and_b32 v0, 63, v0')
    a('s_nop 0')
    a('v_readfirstlane_b32 s3, v1     ; wave')
    a('s_and_b32 s10, s2, 7')
    a('s_lshr_b32 s11, s2, 3')
    lg = ntm.bit_length() - 1
    a(f's_and_b32 s4, s11, {ntm-1}      ; mt')
    a(f's_lshr_b32 s5, s11, {lg}')
    a(f's_lshl_b32 s10, s10, {5-lg}')
    a('s_add_u32 s5, s5, s10')
    a(f's_mul_i32 s6, s4, {BM}          ; m0')
    a(f's_mul_i32 s7, s5, {BN}          ; n0')
    a(f's_mul_i32 s8, s6, {ldA}         ; A soffset')
    a(f's_mul_i32 s9, s7, {ldB}         ; B soffset')
    a('v_lshrrev_b32 v2, 3, v0        ; l>>3')
    a('v_lshrrev_b32 v3, 4, v0        ; l>>4')
    a('v_and_b32 v4, 7, v0            ; l&7')
    VS = 8; SS = 64
    for i, (op, g0, nw) in enumerate(slots):
        ld = ldA if op == 'A' else ldB
        a(f's_add_u32 s10, s3, {g0}')
        a('s_lshl_b32 s11, s10, 2')
        a('v_add_u32 v5, s11, v3')
        a('v_and_b32 v5, 7, v5')
        a('v_xor_b32 v5, v5, v4')
        a('s_lshl_b32 s11, s10, 3')
        a('v_add_u32 v6, s11, v2          ; row')
        a(f's_mov_b32 s12, {ld}')
        a('v_mul_lo_u32 v6, v6, s12')
        a(f'v_lshl_add_u32 v{VS+i}, v5, 4, v6')
        a(f's_lshl_b32 s{SS+i}, s10, 10')
        if op == 'B': a(f's_add_u32 s{SS+i}, s{SS+i}, {BM*128}')
    a('s_and_b32 s10, s3, 3')
    a('s_lshr_b32 s75, s3, 2')
    if KS == 2:
        if WN == 4:   a('s_mov_b32 s13, 0'); a('s_mov_b32 s14, s10')
        elif WN == 2: a('s_lshr_b32 s13, s10, 1'); a('s_and_b32 s14, s10, 1')
        else:         a('s_mov_b32 s13, s10'); a('s_mov_b32 s14, 0')
    else:
        assert WM == 2 and WN == 4
        a('s_mov_b32 s13, s75'); a('s_mov_b32 s14, s10')
    a('s_waitcnt lgkmcnt(0)')
    stamp(a)
    if kind == 'g1':
        srd_ws(a, 44, WINT, D * F * 2); srd_ws(a, 48, HH, SZ_SD); srd_ws(a, 52, ZZ, S * F * 2); ldo = 3072
    elif kind == 'g2':
        srd_ws(a, 44, Z2NT, SZ_Z2); srd_ptr(a, 48, P_WSP, S * S * 2); srd_ws(a, 52, PP, S * FH * 2); ldo = 1536
        srd_ws(a, 56, ZZ, S * F * 2); srd_ptr(a, 60, P_BSP, S * 2)
    else:
        srd_ws(a, 44, WOUTT, FH * D * 2); srd_ws(a, 48, PP, S * FH * 2); ldo = 1280
        if final: srd_ptr(a, 52, P_OUT, SZ_SD)
        else: srd_ws(a, 52, X2, SZ_SD)
        srd_ws(a, 56, X1, SZ_SD)
    def issue(st):
        buf = (st % NS) * STG
        for i, (op, g0, nw) in enumerate(slots):
            Ls = None
            if nw < 8:
                Ls = a.newlabel('Lsk')
                a(f's_cmp_ge_u32 s3, {nw}')
                a(f's_cbranch_scc1 {Ls}')
            a(f's_add_u32 m0, s{SS+i}, {buf}')
            a('s_nop 0')
            if op == 'A': a(f'buffer_load_dwordx4 v{VS+i}, s[44:47], s8 offen lds')
            else:         a(f'buffer_load_dwordx4 v{VS+i}, s[48:51], s9 offen lds')
            if Ls: a.label(Ls)
        a('s_add_u32 s8, s8, 128')
        a('s_add_u32 s9, s9, 128')
    for st in range(0, min(NS - 1, nst)):
        issue(st)
    T_ = wm * wn
    tiles = [(i, j) for i in range(wm) for j in range(wn)]
    if KS == 2:
        h = (T_ + 1) // 2
        keep = [tiles[:h], tiles[h:]]
    else:
        keep = [tiles]
    nwin = (NS * STG + 65535) // 65536
    RA = 24; RBb = RA + 2 * nwin
    FR = 40
    nfr = wm + wn
    nks = 2 if KS == 1 else 1
    ACC = FR + max(nks * nfr * 4, 24)
    CPR = BM // 8
    NCH = BN * CPR
    NR = (NCH + 511) // 512
    RS = BM * 2 + 16
    TOFF = 65536
    OLDS = ACC + T_ * 4
    OGL = OLDS + NR
    ZR = (OGL + NR + 3) // 4 * 4
    BR = ZR + 4 * NR
    top = BR + wn
    magic = {12: 43691, 10: 52429}[CPR]
    a('v_and_b32 v5, 15, v0')
    a(f's_mul_i32 s15, s7, {ldo}')
    a('s_lshl_b32 s11, s6, 1')
    a('s_add_u32 s15, s15, s11')
    if kind == 'g2':
        a('s_mul_i32 s72, s7, 3072')
        a('s_add_u32 s72, s72, s11')
    for r in range(NR):
        a(f'v_add_u32 v6, {512*r}, v23')
        a(f'v_mul_u32_u24 v7, {magic}, v6')
        a('v_lshrrev_b32 v7, 19, v7       ; row')
        a(f'v_mul_u32_u24 v20, {CPR}, v7')
        a('v_sub_u32 v20, v6, v20         ; c')
        a(f'v_mul_u32_u24 v{OLDS+r}, {RS}, v7')
        a(f'v_lshl_add_u32 v{OLDS+r}, v20, 4, v{OLDS+r}')
        a(f'v_add_u32 v{OLDS+r}, {TOFF}, v{OLDS+r}')
        a(f'v_mul_u32_u24 v{OGL+r}, {ldo}, v7')
        a(f'v_lshl_add_u32 v{OGL+r}, v20, 4, v{OGL+r}')
        if kind == 'g2':
            a(f'v_mul_u32_u24 v21, 3072, v7')
            a('v_lshl_add_u32 v21, v20, 4, v21')
        if 512 * (r + 1) > NCH:
            a(f'v_cmp_gt_u32 vcc, {NCH}, v6')
            a('v_mov_b32 v22, 0x7ffffff0')
            a('s_nop 0')
            a(f'v_cndmask_b32 v{OGL+r}, v22, v{OGL+r}, vcc')
            if kind == 'g2': a('v_cndmask_b32 v21, v22, v21, vcc')
            a(f'v_mov_b32 v22, {TOFF}')
            a(f'v_cndmask_b32 v{OLDS+r}, v22, v{OLDS+r}, vcc')
        if kind == 'g2':
            a(f'buffer_load_dwordx4 v[{ZR+4*r}:{ZR+4*r+3}], v21, s[56:59], s72 offen')
        elif kind == 'g3':
            a(f'buffer_load_dwordx4 v[{ZR+4*r}:{ZR+4*r+3}], v{OGL+r}, s[56:59], s15 offen')
    npre = NR if kind != 'g1' else 0
    if kind == 'g2':
        a(f's_mul_i32 s10, s14, {wn*16}')
        a('s_add_u32 s10, s10, s7          ; n base')
        a('s_lshl_b32 s73, s10, 1')
        a('v_lshlrev_b32 v22, 1, v5')
        for j in range(wn):
            a(f'buffer_load_ushort v{BR+j}, v22, s[60:63], s73 offen offset:{32*j}')
        npre += wn
    a(f's_mul_i32 s10, s14, {wn*16*RS}')
    a(f's_mul_i32 s11, s13, {wm*16*2}')
    a('s_add_u32 s10, s10, s11')
    a(f's_add_u32 s10, s10, {TOFF}')
    a(f'v_mul_u32_u24 v20, {RS}, v5')
    a('v_lshl_add_u32 v20, v3, 3, v20')
    a('v_add_u32 v20, s10, v20')
    a('v_lshrrev_b32 v6, 1, v5')
    a('v_xor_b32 v6, v6, v3')
    a('v_lshlrev_b32 v6, 4, v6')
    a('v_lshl_add_u32 v6, v5, 7, v6')
    if KS == 2:
        a('s_lshl_b32 s10, s75, 6')
        a('v_xor_b32 v6, s10, v6')
    else:
        a('v_xor_b32 v7, 64, v6           ; ks=1')
    a(f's_mul_i32 s10, s13, {wm*16*128}')
    a(f's_mul_i32 s11, s14, {wn*16*128}')
    a(f's_add_u32 s11, s11, {BM*128}')
    for w in range(nwin):
        for ks in range(nks):
            a(f'v_add_u32 v{RA+2*w+ks}, s10, v{6+ks}')
            a(f'v_add_u32 v{RBb+2*w+ks}, s11, v{6+ks}')
            if w:
                a(f'v_add_u32 v{RA+2*w+ks}, {65536*w}, v{RA+2*w+ks}')
                a(f'v_add_u32 v{RBb+2*w+ks}, {65536*w}, v{RBb+2*w+ks}')
    for i in range(T_ * 4):
        a(f'v_mov_b32 v{ACC+i}, 0')
    for st in range(nst):
        later = min(NS - 2, nst - 1 - st)
        extra = npre if st < NS - 1 and st == 0 else 0
        cnt = later * npw + (npre if st == 0 else 0)
        a(f's_waitcnt vmcnt({cnt})')
        a('s_barrier')
        if st in (0, 1, nst // 2, nst - 1): stamp(a)
        doiss = st + NS - 1 < nst
        if doiss:
            L1 = a.newlabel('Le')
            a('s_cmp_lg_u32 s75, 0')
            a(f's_cbranch_scc1 {L1}')
            issue(st + NS - 1)
            a.label(L1)
        buf = (st % NS) * STG
        for ks in range(nks):
            for i in range(wm):
                off = buf + i * 2048
                w = off >> 16
                a(f'ds_read_b128 v[{FR+(ks*nfr+i)*4}:{FR+(ks*nfr+i)*4+3}], v{RA+2*w+ks} offset:{off&65535}')
            for j in range(wn):
                off = buf + j * 2048
                w = off >> 16
                a(f'ds_read_b128 v[{FR+(ks*nfr+wm+j)*4}:{FR+(ks*nfr+wm+j)*4+3}], v{RBb+2*w+ks} offset:{off&65535}')
        for ks in range(nks):
            a(f's_waitcnt lgkmcnt({nfr if ks < nks-1 else 0})')
            for i in range(wm):
                for j in range(wn):
                    ac = ACC + 4 * (i * wn + j)
                    fa = FR + (ks * nfr + i) * 4; fb = FR + (ks * nfr + wm + j) * 4
                    a(f'v_mfma_f32_16x16x32_bf16 v[{ac}:{ac+3}], v[{fa}:{fa+3}], v[{fb}:{fb+3}], v[{ac}:{ac+3}]')
        if doiss:
            L2 = a.newlabel('Ll')
            a('s_cmp_eq_u32 s75, 0')
            a(f's_cbranch_scc1 {L2}')
            issue(st + NS - 1)
            a.label(L2)
    stamp(a)
    T = FR
    def epi1(tl):
        for (i, j) in tl:
            ac = ACC + 4 * (i * wn + j)
            if kind == 'g3':
                a(f'v_cvt_pk_bf16_f32 v{ac}, v{ac}, v{ac+1}')
                a(f'v_cvt_pk_bf16_f32 v{ac+1}, v{ac+2}, v{ac+3}')
            else:
                rb2(a, ac, ac + 1, T)
                rb2(a, ac + 2, ac + 3, T + 1)
                if kind == 'g1':
                    for x in range(4):
                        a(f'v_mul_f32 v{T+4+x}, v{ac+x}, v{ac+x}')
                    for x in range(4):
                        a(f'v_fma_f32 v{T+4+x}, v{T+4+x}, s77, v{T+3}')
                    for x in range(4):
                        a(f'v_mul_f32 v{T+4+x}, v{T+4+x}, v{ac+x}')
                    for x in range(4):
                        a(f'v_exp_f32 v{T+4+x}, v{T+4+x}')
                    a('s_nop 0')
                    for x in range(4):
                        a(f'v_add_f32 v{T+4+x}, 1.0, v{T+4+x}')
                    for x in range(4):
                        a(f'v_rcp_f32 v{T+4+x}, v{T+4+x}')
                    a('s_nop 0')
                    for x in range(4):
                        a(f'v_mul_f32 v{ac+x}, v{ac+x}, v{T+4+x}')
                else:
                    for x in range(4):
                        a(f'v_add_f32 v{ac+x}, v{ac+x}, v{BR+j}')
                a(f'v_cvt_pk_bf16_f32 v{ac}, v{ac}, v{ac+1}')
                a(f'v_cvt_pk_bf16_f32 v{ac+1}, v{ac+2}, v{ac+3}')
            a(f'ds_write_b64 v20, v[{ac}:{ac+1}] offset:{16*j*RS+32*i}')
    if kind == 'g1':
        c1 = -2.0 * 1.4426950408889634 * 0.7978845608028654
        a(f's_mov_b32 s77, {fhex(c1*0.044715)}')
        a(f'v_mov_b32 v{T+3}, {fhex(c1)}')
    if kind == 'g2':
        for j in range(wn):
            a(f'v_lshlrev_b32 v{BR+j}, 16, v{BR+j}')
    a('s_barrier')
    a('s_nop 4')
    if KS == 1:
        epi1(tiles)
    else:
        a('v_lshlrev_b32 v6, 4, v0')
        a(f's_mul_i32 s10, s3, {T_*1024}')
        a('s_xor_b32 s11, s3, 4')
        a(f's_mul_i32 s11, s11, {T_*1024}')
        a('v_add_u32 v7, s11, v6')
        a('v_add_u32 v6, s10, v6')
        Lk1 = a.newlabel('Lk1'); Lkd = a.newlabel('Lkd')
        a('s_cmp_lg_u32 s75, 0')
        a(f's_cbranch_scc1 {Lk1}')
        for ksi in range(2):
            if ksi == 1: a.label(Lk1)
            send = keep[1 - ksi]; kp = keep[ksi]
            for (i, j) in send:
                ac = ACC + 4 * (i * wn + j)
                a(f'ds_write_b128 v6, v[{ac}:{ac+3}] offset:{1024*(i*wn+j)}')
            a('s_waitcnt lgkmcnt(0)')
            a('s_barrier')
            for n_, (i, j) in enumerate(kp):
                a(f'ds_read_b128 v[{T+8+4*n_}:{T+11+4*n_}], v7 offset:{1024*(i*wn+j)}')
            a('s_waitcnt lgkmcnt(0)')
            for n_, (i, j) in enumerate(kp):
                ac = ACC + 4 * (i * wn + j)
                for x in range(4):
                    a(f'v_add_f32 v{ac+x}, v{ac+x}, v{T+8+4*n_+x}')
            epi1(kp)
            if ksi == 0: a(f's_branch {Lkd}')
        a.label(Lkd)
    a('s_waitcnt lgkmcnt(0)')
    a('s_barrier')
    for r in range(NR):
        a(f'ds_read_b128 v[{ACC+4*r}:{ACC+4*r+3}], v{OLDS+r}')
    for r in range(NR):
        a(f's_waitcnt lgkmcnt({NR-1-r})')
        if kind != 'g1':
            for x in range(4):
                unpack(a, T, T + 1, ACC + 4 * r + x)
                unpack(a, T + 2, T + 3, ZR + 4 * r + x)
                op = 'v_mul_f32' if kind == 'g2' else 'v_add_f32'
                a(f'{op} v{T}, v{T}, v{T+2}')
                a(f'{op} v{T+1}, v{T+1}, v{T+3}')
                a(f'v_cvt_pk_bf16_f32 v{ACC+4*r+x}, v{T}, v{T+1}')
        a(f'buffer_store_dwordx4 v[{ACC+4*r}:{ACC+4*r+3}], v{OGL+r}, s[52:55], s15 offen')
    if STAMP:
        stamp(a)
        a('s_waitcnt vmcnt(0)')
        stamp(a)
        stamp_flush(a, 37)
    a.label(Lend)
    a.end_kernel(name, 256 if STAMP else max(top, 64), 102 if STAMP else 80)
    return (name, ntm * ntn, 512, max(NS * STG, TOFF + BN * RS))

def main():
    global STAMP
    if len(sys.argv) > 2 and sys.argv[2] == 'stamp': STAMP = True
    a = Asm()
    prep = gen_prep(a)
    conv = gen_conv(a)
    e1 = gen_e(a, True)
    e2 = gen_e(a, False)
    ln2 = gen_ln2(a)
    g1 = gen_gemm2(a, 'g1_kernel', 'g1', 96, 128, 640, 2, 4, 1, 5, 16, 16, 1280, 1280)
    g2 = gen_gemm2(a, 'g2_kernel', 'g2', 96, 64, 2048, 2, 2, 2, 7, 8, 32, LDT, 4096)
    g3 = gen_gemm2(a, 'g3_kernel', 'g3', 80, 64, 768, 1, 4, 2, 8, 8, 32, 1536, 1536)
    g3f = gen_gemm2(a, 'g3f_kernel', 'g3', 80, 64, 768, 1, 4, 2, 8, 8, 32, 1536, 1536, final=True)
    launches = [prep, conv, e1, g1, ln2, g2, g3, e2, g1, ln2, g2, g3f]
    hdr = open('interleave_layers__ssm_conv_h3__mixer_gmlp__prompt.s.ref').read().split('; Override launch')[0]
    txt = a.text(launches, hdr)
    out = sys.argv[1] if len(sys.argv) > 1 else 'interleave_layers__ssm_conv_h3__mixer_gmlp__prompt.s'
    open(out, 'w').write(txt)
    print('wrote', out, len(txt), 'bytes')

if __name__ == '__main__':
    main()
```

```python
import sys
sys.path.insert(0, 'dev')
from asmlib import *

S, D, F, FH = 2048, 640, 1536, 768
WINT  = 0x0000000
WOUTT = 0x0200000
LDT = 4224
UT    = 0x0300000
YT    = 0x0600000
YY    = 0x0900000
X1    = 0x0C00000
HH    = 0x0F00000
ZZ    = 0x1200000
Z2NT  = 0x1800000
PP    = 0x1C00000
X2    = 0x1F00000
SZ_SD = S * D * 2
SZ_T = D * LDT
SZ_Z2 = FH * LDT

P_Q, P_K, P_V, P_SK, P_SSMK, P_SSMD, P_BX, P_WIN, P_WSP, P_BSP, P_WOUT, P_OUT, P_DBG, P_WS = \
    [16 + 2 * i for i in range(14)]

import struct
def fhex(f): return '0x%08x' % struct.unpack('<I', struct.pack('<f', f))[0]

STAMP = False
TLBWARM = False
CODEWARM = False
_stampn = [0]
def stamp_reset():
    _stampn[0] = 0
def stamp(a):
    if not STAMP: return
    i = _stampn[0]; _stampn[0] += 1
    assert i < 60
    a('s_memtime s[98:99]')
    a('s_waitcnt lgkmcnt(0)')
    a(f'v_writelane_b32 v251, s98, {i}')
def stamp_flush(a, wg=0):
    if not STAMP: return
    L = a.newlabel('Lst')
    a(f's_cmp_lg_u32 s2, {wg}')
    a(f's_cbranch_scc1 {L}')
    a('s_cmp_lg_u32 s3, 0')
    a(f's_cbranch_scc1 {L}')
    a('v_mbcnt_lo_u32_b32 v250, -1, 0')
    a('v_mbcnt_hi_u32_b32 v250, -1, v250')
    a('v_lshlrev_b32 v250, 2, v250')
    a('global_store_dword v250, v251, s[40:41]')
    a.label(L)

def load_ptrs(a):
    a('''s_load_dwordx16 s[16:31], s[0:1], 0
         s_load_dwordx8 s[32:39], s[0:1], 64
         s_load_dwordx4 s[40:43], s[0:1], 96''')

def srd_ptr(a, d, p, nbytes, off=0):
    if off:
        a(f's_add_u32 s{d}, s{p}, {off}')
        a(f's_addc_u32 s{d+1}, s{p+1}, 0')
    else:
        a(f's_mov_b32 s{d}, s{p}')
        a(f's_mov_b32 s{d+1}, s{p+1}')
    a(f's_mov_b32 s{d+2}, {nbytes}')
    a(f's_mov_b32 s{d+3}, 0x20000')

def srd_ws(a, d, off, nbytes):
    srd_ptr(a, d, P_WS, nbytes, off)

def unpack(a, lo, hi, src):
    a(f'v_lshlrev_b32 v{lo}, 16, v{src}')
    a(f'v_and_b32 v{hi}, 0xffff0000, v{src}')

def rb2(a, x0, x1, tmp):
    a(f'v_cvt_pk_bf16_f32 v{tmp}, v{x0}, v{x1}')
    unpack(a, x0, x1, tmp)

def gen_prep(a, zero=None):
    name = 'prep_kernel'
    a.begin_kernel(name)
    Lend = a.newlabel('Lend'); Lw1 = a.newlabel('Lw1'); Lw2 = a.newlabel('Lw2'); Ltr = a.newlabel('Ltr'); Ltr2 = a.newlabel('Ltr2')
    nz = (zero[1] + 4095) // 4096 if zero else 0
    a(f's_cmp_ge_u32 s2, {680+nz}')
    a(f's_cbranch_scc1 {Lend}')
    load_ptrs(a)
    a('v_and_b32 v1, 7, v0          ; cg')
    a('v_lshrrev_b32 v2, 3, v0')
    a('s_waitcnt lgkmcnt(0)')
    if zero:
        Lnz = a.newlabel('Lnz')
        a('s_cmp_lt_u32 s2, 680')
        a(f's_cbranch_scc1 {Lnz}')
        srd_ws(a, 44, zero[0], zero[1])
        a('s_sub_u32 s3, s2, 680')
        a('s_lshl_b32 s3, s3, 12')
        a('v_lshlrev_b32 v3, 4, v0')
        for i in range(4): a(f'v_mov_b32 v{4+i}, 0')
        a('buffer_store_dwordx4 v[4:7], v3, s[44:47], s3 offen')
        a(f's_branch {Lend}')
        a.label(Lnz)
    a('s_cmp_ge_u32 s2, 320')
    a(f's_cbranch_scc1 {Lw1}')
    a('s_mov_b32 s4, 0x1999999a')
    a('s_mul_hi_u32 s5, s2, s4      ; sblk')
    a('s_mul_i32 s6, s5, 10')
    a('s_sub_u32 s6, s2, s6         ; dblk')
    srd_ptr(a, 44, P_K, SZ_SD)
    srd_ptr(a, 48, P_V, SZ_SD)
    srd_ptr(a, 56, P_SK, D * 8)
    srd_ws(a, 52, UT, SZ_T)
    a('s_mul_i32 s7, s5, 64*1280')
    a('s_lshl_b32 s8, s6, 7')
    a('s_add_u32 s7, s7, s8')
    a('v_mul_u32_u24 v3, 2560, v2')
    a('v_lshl_add_u32 v3, v1, 4, v3')
    a('v_add_u32 v3, s7, v3')
    for i in range(5):
        if i < 3:
            a(f'v_subrev_u32 v{10+i}, {1280*(3-i)}, v3')
            a(f'buffer_load_dwordx4 v[{16+4*i}:{19+4*i}], v{10+i}, s[44:47], 0 offen')
        else:
            a(f'buffer_load_dwordx4 v[{16+4*i}:{19+4*i}], v3, s[44:47], 0 offen offset:{1280*(i-3)}')
    for i in range(2):
        a(f'buffer_load_dwordx4 v[{36+4*i}:{39+4*i}], v3, s[48:51], 0 offen offset:{1280*i}')
    a('s_lshl_b32 s8, s6, 9')
    a('v_lshlrev_b32 v5, 6, v1')
    a('v_add_u32 v5, s8, v5')
    for i in range(4):
        a(f'buffer_load_dwordx4 v[{44+4*i}:{47+4*i}], v5, s[56:59], 0 offen offset:{16*i}')
    a('s_waitcnt vmcnt(0)')
    KF = 64
    SK = 70
    VF = 74
    A0, A1, T0, T1, TMP = 76, 77, 78, 79, 80
    RES = 84
    for e in range(8):
        dw = e // 2; hi = e & 1
        def ext(dst, src):
            if hi: a(f'v_and_b32 v{dst}, 0xffff0000, v{src}')
            else:  a(f'v_lshlrev_b32 v{dst}, 16, v{src}')
        for i in range(5): ext(KF + i, 16 + 4 * i + dw)
        for i in range(2): ext(VF + i, 36 + 4 * i + dw)
        unpack(a, SK + 0, SK + 1, 44 + 2 * e)
        unpack(a, SK + 2, SK + 3, 44 + 2 * e + 1)
        a(f'v_mul_f32 v{A0}, v{KF+0}, v{SK+3}')
        a(f'v_mul_f32 v{A1}, v{KF+1}, v{SK+3}')
        rb2(a, A0, A1, TMP)
        for i in range(1, 4):
            a(f'v_mul_f32 v{T0}, v{KF+i}, v{SK+3-i}')
            a(f'v_mul_f32 v{T1}, v{KF+i+1}, v{SK+3-i}')
            rb2(a, T0, T1, TMP)
            a(f'v_add_f32 v{A0}, v{A0}, v{T0}')
            a(f'v_add_f32 v{A1}, v{A1}, v{T1}')
            rb2(a, A0, A1, TMP)
        a(f'v_mul_f32 v{A0}, v{A0}, v{VF}')
        a(f'v_mul_f32 v{A1}, v{A1}, v{VF+1}')
        a(f'v_cvt_pk_bf16_f32 v{RES+e}, v{A0}, v{A1}')
    a(f's_mov_b32 s60, {LDT}')
    a(f's_mul_i32 s61, s6, {64*LDT}')
    a('s_lshl_b32 s8, s5, 7')
    a('s_add_u32 s61, s61, s8')
    a(f's_branch {Ltr2}')
    a.label(Lw1)
    a('s_cmp_ge_u32 s2, 560')
    a(f's_cbranch_scc1 {Lw2}')
    a('s_sub_u32 s3, s2, 320')
    a('s_mov_b32 s4, 0x0aaaaaab')
    a('s_mul_hi_u32 s5, s3, s4      ; kblk')
    a('s_mul_i32 s6, s5, 24')
    a('s_sub_u32 s6, s3, s6         ; fblk')
    srd_ptr(a, 44, P_WIN, D * F * 2)
    srd_ws(a, 52, WINT, D * F * 2)
    a('s_mov_b32 s9, 3072')
    a('s_mul_i32 s7, s5, 64*3072')
    a('s_lshl_b32 s8, s6, 7')
    a('s_add_u32 s7, s7, s8')
    a('s_mov_b32 s60, 1280')
    a('s_mul_i32 s61, s6, 64*1280')
    a('s_lshl_b32 s8, s5, 7')
    a('s_add_u32 s61, s61, s8')
    a(f's_branch {Ltr}')
    a.label(Lw2)
    a('s_sub_u32 s3, s2, 560')
    a('s_mov_b32 s4, 0x1999999a')
    a('s_mul_hi_u32 s5, s3, s4      ; fblk')
    a('s_mul_i32 s6, s5, 10')
    a('s_sub_u32 s6, s3, s6         ; dblk')
    srd_ptr(a, 44, P_WOUT, FH * D * 2)
    srd_ws(a, 52, WOUTT, FH * D * 2)
    a('s_mov_b32 s9, 1280')
    a('s_mul_i32 s7, s5, 64*1280')
    a('s_lshl_b32 s8, s6, 7')
    a('s_add_u32 s7, s7, s8')
    a('s_mov_b32 s60, 1536')
    a('s_mul_i32 s61, s6, 64*1536')
    a('s_lshl_b32 s8, s5, 7')
    a('s_add_u32 s61, s61, s8')
    a.label(Ltr)
    a('v_lshlrev_b32 v3, 1, v2')
    a('v_mul_lo_u32 v3, v3, s9')
    a('v_lshl_add_u32 v3, v1, 4, v3')
    a('v_add_u32 v3, s7, v3')
    a('v_add_u32 v4, s9, v3')
    a('buffer_load_dwordx4 v[16:19], v3, s[44:47], 0 offen')
    a('buffer_load_dwordx4 v[20:23], v4, s[44:47], 0 offen')
    a('s_mov_b32 s10, 0x05040100')
    a('s_mov_b32 s11, 0x07060302')
    a('s_waitcnt vmcnt(0)')
    for j in range(4):
        a(f'v_perm_b32 v{84+2*j}, v{20+j}, v{16+j}, s10')
        a(f'v_perm_b32 v{85+2*j}, v{20+j}, v{16+j}, s11')
    a.label(Ltr2)
    a('v_mul_u32_u24 v5, 1088, v1')
    a('v_lshl_add_u32 v5, v2, 2, v5')
    for e in range(8):
        a(f'ds_write_b32 v5, v{84+e} offset:{136*e}')
    a('v_lshrrev_b32 v6, 2, v0       ; c')
    a('v_and_b32 v7, 3, v0           ; seg')
    a('v_mul_u32_u24 v8, 136, v6')
    a('v_lshl_add_u32 v8, v7, 5, v8')
    a('v_mul_lo_u32 v9, v6, s60')
    a('v_lshl_add_u32 v9, v7, 5, v9')
    a('v_add_u32 v9, s61, v9')
    a('s_waitcnt lgkmcnt(0)')
    a('s_barrier')
    for i in range(4):
        a(f'ds_read_b64 v[{16+2*i}:{17+2*i}], v8 offset:{8*i}')
    a('s_waitcnt lgkmcnt(0)')
    a('buffer_store_dwordx4 v[16:19], v9, s[52:55], 0 offen')
    a('buffer_store_dwordx4 v[20:23], v9, s[52:55], 0 offen offset:16')
    a.label(Lend)
    a.end_kernel(name, 96, 72)
    return (name, 680 + nz, 256, 64 * 136)

def gen_conv(a):
    name = 'conv_kernel'
    a.begin_kernel(name)
    Lend = a.newlabel('Lend')
    UB = 37504; WB = UB + 7680
    Lwarm = a.newlabel('Lwarm')
    a('s_cmp_ge_u32 s2, 214')
    a(f's_cbranch_scc1 {Lend}')
    stamp_reset(); stamp(a)
    load_ptrs(a)
    a('v_lshrrev_b32 v1, 6, v0')
    a('v_and_b32 v0, 63, v0')
    a('s_nop 0')
    a('v_readfirstlane_b32 s3, v1     ; wave')
    a('s_nop 3')
    a('s_cmp_eq_u32 s3, 3')
    a(f's_cbranch_scc1 {Lwarm}')
    a('s_mul_i32 s4, s2, 3')
    a('s_add_u32 s4, s4, s3           ; channel d')
    a('s_cmp_ge_u32 s4, 640')
    a(f's_cbranch_scc1 {Lend}')
    a(f's_mul_i32 s5, s3, {WB}')
    a('s_lshl_b32 s6, s4, 12')
    a(f's_mul_i32 s13, s4, {LDT}       ; d*LDT')
    a('s_waitcnt lgkmcnt(0)')
    stamp(a)
    a(f's_add_u32 s44, s{P_SSMK}, s6')
    a(f's_addc_u32 s45, s{P_SSMK+1}, 0')
    a('s_mov_b32 s46, 4096')
    a('s_mov_b32 s47, 0x20000')
    srd_ws(a, 48, UT, SZ_T)
    srd_ws(a, 52, YT, SZ_T)
    srd_ptr(a, 56, P_SSMD, D * 2)
    a('v_lshlrev_b32 v2, 4, v0')
    HR = 140
    for j in range(4):
        a(f'buffer_load_dwordx4 v[{HR+8*j}:{HR+8*j+3}], v2, s[44:47], 0 offen offset:{1024*j}')
        a(f'buffer_load_dwordx4 v[{HR+8*j+4}:{HR+8*j+7}], v2, s[44:47], 0 offen offset:{1024*j+16}')
    for j in range(4):
        a(f'buffer_load_dwordx4 v[{100+4*j}:{103+4*j}], v2, s[48:51], s13 offen offset:{1024*j}')
    a('v_lshrrev_b32 v3, 3, v0')
    a('v_and_b32 v4, 7, v0')
    a('v_add_u32 v3, v3, v4')
    a('v_subrev_u32 v3, 7, v3')
    a('v_max_i32 v4, 0, v3')
    a('v_lshlrev_b32 v4, 1, v4')
    a('buffer_load_ushort v5, v4, s[44:47], 0 offen')
    a('s_lshl_b32 s7, s4, 1')
    a('v_mov_b32 v6, 0')
    a('buffer_load_ushort v7, v6, s[56:59], s7 offen')
    a('v_and_b32 v8, 15, v0           ; ii / m')
    a('v_lshrrev_b32 v9, 4, v0        ; kq / q')
    a('v_lshlrev_b32 v10, 2, v9')
    a('v_and_b32 v11, 2, v9')
    a('v_lshlrev_b32 v11, 1, v11')
    a('v_xor_b32 v10, v10, v11        ; a[q] = r0 (mod 16)')
    a('v_sub_u32 v18, 15, v8')
    a('v_mul_u32_u24 v18, 96, v18')
    a('v_lshlrev_b32 v19, 1, v10')
    a('v_sub_u32 v18, v18, v19')
    a('v_add_u32 v18, s5, v18')
    a(f'v_add_u32 v18, {UB+56-32}, v18')
    a('v_lshlrev_b32 v10, 1, v10')
    a('v_lshl_add_u32 v10, v8, 6, v10')
    a('v_add_u32 v10, s5, v10')
    a('v_mov_b32 v12, 0')
    a('v_mov_b32 v13, 0')
    a('v_mov_b32 v14, 0')
    a('v_mov_b32 v15, 0')
    a('v_min_u32 v16, 26, v0')
    a('v_lshlrev_b32 v16, 4, v16')
    a('v_add_u32 v16, s5, v16')
    a('ds_write_b128 v16, v[12:15]')
    a('v_lshlrev_b32 v16, 4, v0')
    a('v_add_u32 v16, s5, v16')
    a(f'ds_write_b128 v16, v[12:15] offset:{UB+64*96}')
    a('v_min_u32 v16, 25, v0')
    a('v_lshlrev_b32 v16, 4, v16')
    a('v_add_u32 v16, s5, v16')
    a(f'ds_write_b128 v16, v[12:15] offset:{UB+64*96+1024}')
    a('v_mul_u32_u24 v16, 144, v0')
    a('v_add_u32 v16, s5, v16          ; 144*l + base')
    E0 = 20
    E1 = 29
    D1 = 39
    for j in range(4):
        d = HR + 8 * j
        a(f's_waitcnt vmcnt({12 - 2*j})')
        for k in range(7):
            a(f'v_alignbit_b32 v{E0+k}, v{d+k+1}, v{d+k}, 16')
        for k in range(1, 7):
            a(f'v_alignbit_b32 v{E1+k}, v{d+k+1}, v{d+k}, 16')
            a(f'v_mov_b32 v{D1+k}, v{d+k}')
        for p in range(8):
            off = 9216 * j + 16 * (p + (34 if p == 0 else 35))
            if p % 2 == 0:
                k = p // 2
                src = d + k if k % 2 == 0 else D1 + k
            else:
                k = (p - 1) // 2
                src = E0 + k if k % 2 == 0 else E1 + k
            assert src % 2 == 0
            a(f'ds_write_b128 v16, v[{src}:{src+3}] offset:{off}')
        a('s_nop 1')
    a('s_waitcnt vmcnt(0)')
    a('s_barrier')
    a('v_cmp_gt_i32 vcc, 0, v3')
    a('s_nop 1')
    a('v_cndmask_b32 v5, v5, v12, vcc')
    a('v_lshlrev_b32 v16, 1, v0')
    a('v_add_u32 v16, s5, v16')
    a('ds_write_b16 v16, v5 offset:432')
    a('v_sub_u32 v16, 63, v0          ; 63-l ; pc = (63-l) + 64*(3-j)')
    a('v_lshrrev_b32 v17, 2, v16')
    a('v_and_b32 v16, 3, v16')
    a('v_mul_u32_u24 v17, 96, v17')
    a('v_lshl_add_u32 v17, v16, 4, v17')
    a('v_add_u32 v17, s5, v17')
    for j in range(4):
        s0 = 100 + 4 * j
        t0 = 48 + 4 * j
        for x in range(4):
            a(f'v_alignbit_b32 v{t0+x}, v{s0+3-x}, v{s0+3-x}, 16')
        a(f'ds_write_b128 v17, v[{t0}:{t0+3}] offset:{UB + 96*16*(3-j)}')
    a('v_lshrrev_b32 v16, 1, v8')
    a('v_and_b32 v16, 4, v16')
    a('v_xor_b32 v16, v8, v16         ; rr')
    a('v_lshl_add_u32 v16, v9, 3, v16')
    a('v_lshrrev_b32 v17, 3, v16')
    a('v_add_u32 v16, v16, v17        ; x + (x>>3)')
    a('v_lshlrev_b32 v16, 4, v16')
    a('v_add_u32 v16, s5, v16         ; A addr')
    a('v_sub_u32 v17, 15, v8')
    a('v_mul_u32_u24 v17, 96, v17')
    a('v_lshl_add_u32 v17, v9, 4, v17')
    a('v_add_u32 v17, s5, v17')
    a(f'v_add_u32 v17, {UB}, v17        ; B addr')
    ACC = 64
    for i in range(32):
        a(f'v_mov_b32 v{ACC+i}, 0')
    for i in range(16):
        a(f'v_mov_b32 v{164+i}, 0')
    FR = [20, 140, 96]
    def nreads(t): return (2 + 4 - (t >> 4)) if t < 64 else 0
    def reads(t):
        f = FR[t % 3]
        for j in range(2):
            a(f'ds_read_b128 v[{f+4*j}:{f+4*j+3}], v16 offset:{576*t+288*j}')
        for c in range(t >> 4, 4):
            a(f'ds_read_b128 v[{f+8+4*c}:{f+11+4*c}], v17 offset:{96*(48-16*c+t)}')
    a('s_waitcnt lgkmcnt(0)')
    stamp(a)
    reads(0); reads(1)
    for t in range(64):
        if t + 2 < 64: reads(t + 2)
        a(f's_waitcnt lgkmcnt({nreads(t+1) + nreads(t+2)})')
        f = FR[t % 3]
        for c in range(t >> 4, 4):
            for j in range(2):
                ac = ACC + 4 * (2 * c + j)
                if c >= 2 and (t & 1) and t >= 32: ac = 164 + 4 * (2 * (c - 2) + j)
                a(f'v_mfma_f32_16x16x32_bf16 v[{ac}:{ac+3}], v[{f+4*j}:{f+4*j+3}], v[{f+8+4*c}:{f+11+4*c}], v[{ac}:{ac+3}]')
    a('s_nop 7')
    a('s_nop 1')
    for i in range(16):
        a(f'v_add_f32 v{ACC+16+i}, v{ACC+16+i}, v{164+i}')
    stamp(a)
    for c in range(4):
        for j in range(2):
            ur = 120 + 2 * (2 * c + j)
            a(f'ds_read_b64 v[{ur}:{ur+1}], v18 offset:{96*(48-16*c) + 32*(1-j)}')
    a('v_lshlrev_b32 v7, 16, v7       ; D as f32')
    a('s_nop 7')
    a('s_waitcnt lgkmcnt(0)')
    for c in range(4):
        for j in range(2):
            ac = ACC + 4 * (2 * c + j)
            ur = 120 + 2 * (2 * c + j)
            rb2(a, ac, ac + 1, 18)
            rb2(a, ac + 2, ac + 3, 19)
            unpack(a, 23, 22, ur)
            unpack(a, 21, 20, ur + 1)
            for x in range(4):
                a(f'v_mul_f32 v{20+x}, v{20+x}, v7')
            rb2(a, 20, 21, 18)
            rb2(a, 22, 23, 19)
            for x in range(4):
                a(f'v_add_f32 v{ac+x}, v{ac+x}, v{20+x}')
            a(f'v_cvt_pk_bf16_f32 v{ur}, v{ac}, v{ac+1}')
            a(f'v_cvt_pk_bf16_f32 v{ur+1}, v{ac+2}, v{ac+3}')
            a(f'ds_write_b64 v10, v[{ur}:{ur+1}] offset:{1024*c+32*j}')
    a('v_add_u32 v16, s5, v2')
    a('s_waitcnt lgkmcnt(0)')
    for x in range(4):
        a(f'ds_read_b128 v[{20+4*x}:{23+4*x}], v16 offset:{1024*x}')
    for x in range(4):
        a(f's_waitcnt lgkmcnt({3-x})')
        a(f'buffer_store_dwordx4 v[{20+4*x}:{23+4*x}], v2, s[52:55], s13 offen offset:{1024*x}')
    if STAMP:
        stamp(a)
        a('s_waitcnt vmcnt(0)')
        stamp(a)
        stamp_flush(a, 37)
    a(f's_branch {Lend}')
    a.label(Lwarm)
    a('s_waitcnt lgkmcnt(0)')
    a('s_barrier')
    srd_ptr(a, 44, P_WSP, S * S * 2)
    srd_ptr(a, 48, P_Q, SZ_SD)
    a('s_mul_i32 s4, s2, 40960')
    a('s_mul_i32 s5, s2, 13312')
    a('v_lshlrev_b32 v1, 4, v0')
    if CODEWARM:
        a('s_getpc_b64 s[60:61]')
        a('s_lshr_b32 s6, s2, 3')
        a('s_mul_i32 s6, s6, 3072')
        a('s_add_u32 s60, s60, s6')
        a('s_addc_u32 s61, s61, 0')
        a('s_cmp_ge_u32 s6, CODE_TAIL_BYTES')
        Lc = a.newlabel('Lcw')
        a(f's_cbranch_scc1 {Lc}')
        for i in range(3):
            a(f'global_load_dwordx4 v[{170+4*i}:{173+4*i}], v1, s[60:61] offset:{1024*i}')
        a.label(Lc)
    if TLBWARM:
        srd_ws(a, 52, 0, 0x2900000)
        srd_ptr(a, 56, P_OUT, SZ_SD)
        a('v_mul_u32_u24 v2, 655360, v0')
        a('buffer_load_dword v3, v2, s[52:55], 0 offen')
        a('v_mul_u32_u24 v2, 40960, v0')
        a('buffer_load_dword v4, v2, s[56:59], 0 offen')
    for i in range(13):
        a(f'buffer_load_dwordx4 v[{8+4*i}:{11+4*i}], v1, s[48:51], s5 offen')
        a('s_add_u32 s5, s5, 1024')
    for i in range(40):
        a(f'buffer_load_dwordx4 v[{8+4*(i%40)}:{11+4*(i%40)}], v1, s[44:47], s4 offen')
        a('s_add_u32 s4, s4, 1024')
    a('s_waitcnt vmcnt(0)')
    a.label(Lend)
    a.end_kernel(name, 256 if STAMP else 184, 102 if STAMP else 72)
    return (name, 214, 256, 3 * WB)

def reduce2(a, va, vb, sbase):
    for n in (8, 4, 2, 1):
        a('s_nop 1')
        a(f'v_add_f32_dpp v{va}, v{va}, v{va} row_ror:{n} row_mask:0xf bank_mask:0xf')
        a(f'v_add_f32_dpp v{vb}, v{vb}, v{vb} row_ror:{n} row_mask:0xf bank_mask:0xf')
    a('s_nop 0')
    for i in range(4):
        a(f'v_readlane_b32 s{sbase+i}, v{va}, {16*i}')
    for i in range(4):
        a(f'v_readlane_b32 s{sbase+4+i}, v{vb}, {16*i}')
    a(f'v_mov_b32 v{va}, s{sbase}')
    a(f'v_add_f32 v{va}, s{sbase+1}, v{va}')
    a(f'v_add_f32 v{va}, s{sbase+2}, v{va}')
    a(f'v_add_f32 v{va}, s{sbase+3}, v{va}')
    a(f'v_mov_b32 v{vb}, s{sbase+4}')
    a(f'v_add_f32 v{vb}, s{sbase+5}, v{vb}')
    a(f'v_add_f32 v{vb}, s{sbase+6}, v{vb}')
    a(f'v_add_f32 v{vb}, s{sbase+7}, v{vb}')

def ln_rows2(a, xa, xb, n, ntot, t, outa, outb, sbase):
    sa, sb_, ma, mb, ra, rb_ = t, t + 1, t + 2, t + 3, t + 4, t + 5
    tm = t + 6
    da = t + 8; db = t + 8 + n
    inv = 1.0 / ntot
    import struct
    invh = '0x%08x' % struct.unpack('<I', struct.pack('<f', inv))[0]
    for (x, s_) in ((xa, sa), (xb, sb_)):
        a(f'v_add_f32 v{s_}, v{x}, v{x+1}')
        for i in range(2, n):
            a(f'v_add_f32 v{s_}, v{s_}, v{x+i}')
    reduce2(a, sa, sb_, sbase)
    a(f'v_mul_f32 v{ma}, {invh}, v{sa}')
    a(f'v_mul_f32 v{mb}, {invh}, v{sb_}')
    for (x, d, m, s_) in ((xa, da, ma, sa), (xb, db, mb, sb_)):
        for i in range(n):
            a(f'v_sub_f32 v{d+i}, v{x+i}, v{m}')
        a(f'v_mul_f32 v{s_}, v{d}, v{d}')
        for i in range(1, n):
            a(f'v_fmac_f32 v{s_}, v{d+i}, v{d+i}')
    reduce2(a, sa, sb_, sbase)
    a(f'v_mul_f32 v{sa}, {invh}, v{sa}')
    a(f'v_mul_f32 v{sb_}, {invh}, v{sb_}')
    rb2(a, ma, mb, tm)
    rb2(a, sa, sb_, tm)
    a(f'v_add_f32 v{sa}, 0x3727c5ac, v{sa}')
    a(f'v_add_f32 v{sb_}, 0x3727c5ac, v{sb_}')
    rb2(a, sa, sb_, tm)
    a(f'v_sqrt_f32 v{sa}, v{sa}')
    a(f'v_sqrt_f32 v{sb_}, v{sb_}')
    a('s_nop 0')
    rb2(a, sa, sb_, tm)
    a(f'v_rcp_f32 v{ra}, v{sa}')
    a(f'v_rcp_f32 v{rb_}, v{sb_}')
    a('s_nop 0')
    for (x, o, m, r) in ((xa, outa, ma, ra), (xb, outb, mb, rb_)):
        for i in range(0, n, 2):
            a(f'v_sub_f32 v{o+i}, v{x+i}, v{m}')
            a(f'v_sub_f32 v{o+i+1}, v{x+i+1}, v{m}')
            rb2(a, o + i, o + i + 1, tm)
            a(f'v_mul_f32 v{o+i}, v{o+i}, v{r}')
            a(f'v_mul_f32 v{o+i+1}, v{o+i+1}, v{r}')
            rb2(a, o + i, o + i + 1, tm)

def ln_row1(a, x, n, ntot, t, out, sbase):
    s1, s2, m, r, tm = t, t + 1, t + 2, t + 3, t + 4
    d = t + 8
    invh = fhex(1.0 / ntot)
    sp = sbase + 8
    a('s_nop 0')
    a(f'v_readfirstlane_b32 s{sp}, v{x}')
    a('s_nop 1')
    for i in range(n):
        a(f'v_subrev_f32 v{d+i}, s{sp}, v{x+i}')
    a(f'v_add_f32 v{s1}, v{d}, v{d+1}')
    a(f'v_mul_f32 v{s2}, v{d}, v{d}')
    for i in range(1, n):
        if i >= 2: a(f'v_add_f32 v{s1}, v{s1}, v{d+i}')
        a(f'v_fmac_f32 v{s2}, v{d+i}, v{d+i}')
    reduce2(a, s1, s2, sbase)
    a(f'v_mul_f32 v{s1}, {invh}, v{s1}')
    a(f'v_mul_f32 v{s2}, {invh}, v{s2}')
    a(f'v_fma_f32 v{s2}, -v{s1}, v{s1}, v{s2}  ; var')
    a(f'v_max_f32 v{s2}, 0, v{s2}')
    a(f'v_add_f32 v{m}, s{sp}, v{s1}           ; mean')
    rb2(a, m, s2, tm)
    a(f'v_add_f32 v{s2}, 0x3727c5ac, v{s2}')
    a(f'v_cvt_pk_bf16_f32 v{tm}, v{s2}, v{s2}')
    a(f'v_lshlrev_b32 v{s2}, 16, v{tm}')
    a(f'v_sqrt_f32 v{s2}, v{s2}')
    a('s_nop 0')
    a(f'v_cvt_pk_bf16_f32 v{tm}, v{s2}, v{s2}')
    a(f'v_lshlrev_b32 v{s2}, 16, v{tm}')
    a(f'v_rcp_f32 v{r}, v{s2}')
    for i in range(n):
        a(f'v_sub_f32 v{out+i}, v{x+i}, v{m}')
    for i in range(0, n, 2):
        rb2(a, out + i, out + i + 1, tm + (i // 2) % 2)
    for i in range(n):
        a(f'v_mul_f32 v{out+i}, v{out+i}, v{r}')
    for i in range(0, n, 2):
        rb2(a, out + i, out + i + 1, tm + (i // 2) % 2)

def gen_e(a, first):
    name = 'e1_kernel' if first else 'e2_kernel'
    a.begin_kernel(name)
    Lend = a.newlabel('Lend')
    a('s_cmp_ge_u32 s2, 256')
    a(f's_cbranch_scc1 {Lend}')
    stamp_reset(); stamp(a)
    load_ptrs(a)
    a('v_lshrrev_b32 v1, 6, v0')
    a('v_and_b32 v2, 63, v0          ; lane')
    a('s_and_b32 s5, s2, 7')
    a('s_lshl_b32 s5, s5, 5')
    a('s_lshr_b32 s6, s2, 3')
    a('s_add_u32 s5, s5, s6')
    a('s_waitcnt lgkmcnt(0)')
    stamp(a)
    if first:
        srd_ptr(a, 44, P_Q, SZ_SD)
        srd_ws(a, 48, YT, SZ_T)
    else:
        srd_ws(a, 44, X2, SZ_SD)
    srd_ws(a, 52, YY, SZ_SD)
    srd_ws(a, 56, X1, SZ_SD)
    srd_ws(a, 60, HH, SZ_SD)
    a('s_mul_i32 s3, s5, 8*1280')
    a('v_mul_u32_u24 v3, 1280, v1')
    a('v_lshl_add_u32 v3, v2, 2, v3')
    a('v_add_u32 v3, s3, v3')
    XR = 16; YR = 22
    if first:
        a('s_lshl_b32 s4, s5, 4')
        a(f'v_mul_u32_u24 v4, {LDT}, v0')
        a('v_add_u32 v4, s4, v4')
        a(f'v_add_u32 v5, {512*LDT}, v4')
        a('buffer_load_dwordx4 v[36:39], v4, s[48:51], 0 offen')
        a('buffer_load_dwordx4 v[40:43], v5, s[48:51], 0 offen')
    for j in range(5):
        a(f'buffer_load_dword v{XR+j}, v3, s[44:47], 0 offen offset:{256*j}')
    if first:
        a('v_lshlrev_b32 v4, 4, v0')
        a('s_waitcnt vmcnt(5)')
        a('ds_write_b128 v4, v[36:39]')
        a('ds_write_b128 v4, v[40:43] offset:8192')
        a('v_lshlrev_b32 v5, 5, v2')
        a('v_lshl_add_u32 v5, v1, 1, v5')
        a('s_waitcnt lgkmcnt(0)')
        a('s_barrier')
        for j in range(5):
            a(f'ds_read_u16 v{YR+j}, v5 offset:{2048*j}')
            a(f'ds_read_u16 v{36+j}, v5 offset:{2048*j+16}')
        a('s_waitcnt vmcnt(0) lgkmcnt(0)')
        for j in range(5):
            a(f'v_lshl_or_b32 v{YR+j}, v{36+j}, 16, v{YR+j}')
        for j in range(5):
            a(f'buffer_store_dword v{YR+j}, v3, s[52:55], 0 offen offset:{256*j}')
    else:
        for j in range(5):
            a(f'buffer_load_dword v{YR+j}, v3, s[52:55], 0 offen offset:{256*j}')
        a('s_waitcnt vmcnt(0)')
    XA = 48; NA = 60; T = 72
    stamp(a)
    for j in range(5):
        unpack(a, XA + 2 * j, XA + 2 * j + 1, XR + j)
    ln_row1(a, XA, 10, 640, T, NA, 64)
    for j in range(5):
        unpack(a, T + 2 * j, T + 2 * j + 1, YR + j)
    for i in range(10):
        a(f'v_mul_f32 v{NA+i}, v{NA+i}, v{T+i}')
    for j in range(5):
        rb2(a, NA + 2 * j, NA + 2 * j + 1, T + 10 + (j & 1))
    for i in range(10):
        a(f'v_add_f32 v{XA+i}, v{XA+i}, v{NA+i}')
    for j in range(5):
        a(f'v_cvt_pk_bf16_f32 v{XR+j}, v{XA+2*j}, v{XA+2*j+1}')
        unpack(a, XA + 2 * j, XA + 2 * j + 1, XR + j)
        a(f'buffer_store_dword v{XR+j}, v3, s[56:59], 0 offen offset:{256*j}')
    ln_row1(a, XA, 10, 640, T, NA, 64)
    for j in range(5):
        a(f'v_cvt_pk_bf16_f32 v{YR+j}, v{NA+2*j}, v{NA+2*j+1}')
        a(f'buffer_store_dword v{YR+j}, v3, s[60:63], 0 offen offset:{256*j}')
    if STAMP:
        stamp(a)
        a('s_waitcnt vmcnt(0)')
        stamp(a)
        stamp_flush(a, 37)
    a.label(Lend)
    a.end_kernel(name, 256 if STAMP else 96, 102 if STAMP else 80)
    return (name, 256, 512, 16384 if first else 0)

def gen_ln2(a):
    name = 'ln2_kernel'
    a.begin_kernel(name)
    Lend = a.newlabel('Lend')
    a('s_cmp_ge_u32 s2, 128')
    a(f's_cbranch_scc1 {Lend}')
    stamp_reset(); stamp(a)
    load_ptrs(a)
    a('v_lshrrev_b32 v1, 6, v0       ; wave')
    a('v_and_b32 v2, 63, v0          ; lane')
    a('s_and_b32 s5, s2, 7')
    a('s_lshl_b32 s5, s5, 4')
    a('s_lshr_b32 s6, s2, 3')
    a('s_add_u32 s5, s5, s6')
    a('s_waitcnt lgkmcnt(0)')
    stamp(a)
    srd_ws(a, 44, ZZ, S * F * 2)
    srd_ws(a, 48, Z2NT, SZ_Z2)
    a('s_mul_i32 s3, s5, 16*3072')
    a('s_add_u32 s3, s3, 1536')
    a('v_mul_u32_u24 v3, 4*3072, v1')
    a('v_lshl_add_u32 v3, v2, 2, v3')
    a('v_add_u32 v3, s3, v3')
    R = 16
    for r in range(4):
        if r: a(f'v_add_u32 v{3+r}, {3072*r}, v3')
    for r in range(4):
        for j in range(6):
            a(f'buffer_load_dword v{R+6*r+j}, v{3+r}, s[44:47], 0 offen offset:{256*j}')
    a('v_lshlrev_b32 v8, 6, v2')
    a('v_lshl_add_u32 v8, v1, 3, v8')
    a('s_waitcnt vmcnt(0)')
    XA, XB, T = 48, 60, 80
    stamp(a)
    for p in range(2):
        for j in range(6):
            unpack(a, XA + 2 * j, XA + 2 * j + 1, R + 12 * p + j)
            unpack(a, XB + 2 * j, XB + 2 * j + 1, R + 12 * p + 6 + j)
        ln_rows2(a, XA, XB, 12, 768, T, XA, XB, 64)
        for i in range(12):
            a(f'v_cvt_pk_bf16_f32 v{T+i}, v{XA+i}, v{XB+i}')
            a(f'ds_write_b32 v8, v{T+i} offset:{4096*(i//2) + 32*(i&1) + 4*p}')
    a('v_lshlrev_b32 v9, 5, v0')
    a('s_lshl_b32 s4, s5, 5')
    a(f'v_mul_u32_u24 v10, {LDT}, v0')
    a('v_add_u32 v10, s4, v10')
    a('s_waitcnt lgkmcnt(0)')
    a('s_barrier')
    for i in range(3):
        a(f'ds_read_b128 v[{16+8*i}:{19+8*i}], v9 offset:{8192*i}')
        a(f'ds_read_b128 v[{20+8*i}:{23+8*i}], v9 offset:{8192*i+16}')
    a('s_waitcnt lgkmcnt(0)')
    for i in range(3):
        if i: a(f'v_add_u32 v10, {256*LDT}, v10')
        a(f'buffer_store_dwordx4 v[{16+8*i}:{19+8*i}], v10, s[48:51], 0 offen')
        a(f'buffer_store_dwordx4 v[{20+8*i}:{23+8*i}], v10, s[48:51], 0 offen offset:16')
    if STAMP:
        stamp(a)
        a('s_waitcnt vmcnt(0)')
        stamp(a)
        stamp_flush(a, 37)
    a.label(Lend)
    a.end_kernel(name, 256 if STAMP else 128, 102 if STAMP else 80)
    return (name, 128, 256, 24576)

def gen_gemm(a, name, kind, BM, BN, K, WM, WN, NS, ntm, ntn, ldA, ldB, final=False):
    wm = BM // WM // 16; wn = BN // WN // 16
    nst = K // 64
    STG = (BM + BN) * 128
    ngA = BM // 8; ngB = BN // 8
    nAw = (ngA + 3) // 4; nBw = (ngB + 3) // 4
    npw = nAw + nBw
    a.begin_kernel(name)
    Lend = a.newlabel('Lend')
    a(f's_cmp_ge_u32 s2, {ntm*ntn}')
    a(f's_cbranch_scc1 {Lend}')
    stamp_reset(); stamp(a)
    load_ptrs(a)
    a('v_lshrrev_b32 v1, 6, v0')
    a('v_and_b32 v0, 63, v0')
    a('s_nop 0')
    a('v_readfirstlane_b32 s3, v1     ; wave')
    assert ntm in (8, 16)
    a('s_and_b32 s10, s2, 7')
    a('s_lshr_b32 s11, s2, 3')
    if ntm == 8:
        a('s_and_b32 s4, s11, 7')
        a('s_lshr_b32 s5, s11, 3')
        a('s_lshl_b32 s10, s10, 2')
        a('s_add_u32 s5, s5, s10')
    else:
        a('s_and_b32 s4, s11, 7')
        a('s_and_b32 s12, s10, 1')
        a('s_lshl_b32 s12, s12, 3')
        a('s_add_u32 s4, s4, s12')
        a('s_lshr_b32 s5, s11, 3')
        a('s_lshr_b32 s10, s10, 1')
        a('s_lshl_b32 s10, s10, 2')
        a('s_add_u32 s5, s5, s10')
    a(f's_mul_i32 s6, s4, {BM}          ; m0')
    a(f's_mul_i32 s7, s5, {BN}          ; n0')
    a('s_waitcnt lgkmcnt(0)')
    stamp(a)
    if kind == 'g1':
        srd_ws(a, 44, WINT, D * F * 2); srd_ws(a, 48, HH, SZ_SD); srd_ws(a, 52, ZZ, S * F * 2); ldo = 3072
    elif kind == 'g2':
        srd_ws(a, 44, Z2NT, FH * S * 2); srd_ptr(a, 48, P_WSP, S * S * 2); srd_ws(a, 52, PP, S * FH * 2); ldo = 1536
        srd_ws(a, 56, ZZ, S * F * 2); srd_ptr(a, 60, P_BSP, S * 2)
    else:
        srd_ws(a, 44, WOUTT, FH * D * 2); srd_ws(a, 48, PP, S * FH * 2); ldo = 1280
        if final: srd_ptr(a, 52, P_OUT, SZ_SD)
        else: srd_ws(a, 52, X2, SZ_SD)
        srd_ws(a, 56, X1, SZ_SD)
    a(f's_mul_i32 s8, s6, {ldA}         ; A soffset')
    a(f's_mul_i32 s9, s7, {ldB}         ; B soffset')
    a('v_lshrrev_b32 v2, 3, v0        ; l>>3')
    a('v_lshrrev_b32 v3, 4, v0        ; l>>4')
    a('v_and_b32 v4, 7, v0            ; l&7')
    VA = 8; VB = VA + nAw
    SMA = 64; SMB = SMA + nAw
    def grp_setup(i, ng, ld, vdst, sdst, ldsbase):
        if 4 * i + 3 < ng:
            a(f's_add_u32 s10, s3, {4*i}')
        else:
            assert ng - 4 * i == 2
            a('s_and_b32 s10, s3, 1')
            a(f's_add_u32 s10, s10, {4*i}')
        a('s_lshl_b32 s11, s10, 2')
        a('v_add_u32 v5, s11, v3')
        a('v_and_b32 v5, 7, v5')
        a('v_xor_b32 v5, v5, v4')
        a('s_lshl_b32 s11, s10, 3')
        a('v_add_u32 v6, s11, v2          ; row')
        a(f's_mov_b32 s12, {ld}')
        a('v_mul_lo_u32 v6, v6, s12')
        a(f'v_lshl_add_u32 v{vdst}, v5, 4, v6')
        a(f's_lshl_b32 s{sdst}, s10, 10')
        if ldsbase: a(f's_add_u32 s{sdst}, s{sdst}, {ldsbase}')
    for i in range(nAw): grp_setup(i, ngA, ldA, VA + i, SMA + i, 0)
    for i in range(nBw): grp_setup(i, ngB, ldB, VB + i, SMB + i, BM * 128)
    def issue(st):
        buf = (st % NS) * STG
        for i in range(nAw):
            a(f's_add_u32 m0, s{SMA+i}, {buf}')
            a('s_nop 0')
            a(f'buffer_load_dwordx4 v{VA+i}, s[44:47], s8 offen lds')
        for i in range(nBw):
            a(f's_add_u32 m0, s{SMB+i}, {buf}')
            a('s_nop 0')
            a(f'buffer_load_dwordx4 v{VB+i}, s[48:51], s9 offen lds')
        a('s_add_u32 s8, s8, 128')
        a('s_add_u32 s9, s9, 128')
    for st in range(min(NS - 1, nst)):
        issue(st)
    if WN == 4:   a('s_mov_b32 s13, 0'); a('s_mov_b32 s14, s3')
    elif WN == 2: a('s_lshr_b32 s13, s3, 1'); a('s_and_b32 s14, s3, 1')
    else:         a('s_mov_b32 s13, s3'); a('s_mov_b32 s14, 0')
    a('v_and_b32 v5, 15, v0')
    a('v_lshrrev_b32 v6, 1, v5')
    a('v_xor_b32 v6, v6, v3')
    a('v_lshlrev_b32 v6, 4, v6')
    a('v_lshl_add_u32 v6, v5, 7, v6')
    a('v_xor_b32 v7, 64, v6           ; ks=1')
    nwin = (NS * STG + 65535) // 65536
    RA = 24; RBb = RA + 2 * nwin
    a(f's_mul_i32 s10, s13, {wm*16*128}')
    a(f's_mul_i32 s11, s14, {wn*16*128}')
    a(f's_add_u32 s11, s11, {BM*128}')
    for w in range(nwin):
        for ks in range(2):
            a(f'v_add_u32 v{RA+2*w+ks}, s10, v{6+ks}')
            a(f'v_add_u32 v{RBb+2*w+ks}, s11, v{6+ks}')
            if w:
                a(f'v_add_u32 v{RA+2*w+ks}, {65536*w}, v{RA+2*w+ks}')
                a(f'v_add_u32 v{RBb+2*w+ks}, {65536*w}, v{RBb+2*w+ks}')
    FR = 40
    nfr = wm + wn
    ACC = FR + 2 * nfr * 4
    for i in range(wm * wn * 4):
        a(f'v_mov_b32 v{ACC+i}, 0')
    for st in range(nst):
        later = min(NS - 2, nst - 1 - st)
        a(f's_waitcnt vmcnt({later*npw})')
        a('s_barrier')
        if st in (0, 1, nst // 2, nst - 1): stamp(a)
        if st + NS - 1 < nst: issue(st + NS - 1)
        buf = (st % NS) * STG
        for ks in range(2):
            for i in range(wm):
                off = buf + i * 2048
                w = off >> 16
                a(f'ds_read_b128 v[{FR+(ks*nfr+i)*4}:{FR+(ks*nfr+i)*4+3}], v{RA+2*w+ks} offset:{off&65535}')
            for j in range(wn):
                off = buf + j * 2048
                w = off >> 16
                a(f'ds_read_b128 v[{FR+(ks*nfr+wm+j)*4}:{FR+(ks*nfr+wm+j)*4+3}], v{RBb+2*w+ks} offset:{off&65535}')
        for ks in range(2):
            a(f's_waitcnt lgkmcnt({nfr if ks == 0 else 0})')
            for i in range(wm):
                for j in range(wn):
                    ac = ACC + 4 * (i * wn + j)
                    fa = FR + (ks * nfr + i) * 4; fb = FR + (ks * nfr + wm + j) * 4
                    a(f'v_mfma_f32_16x16x32_bf16 v[{ac}:{ac+3}], v[{fa}:{fa+3}], v[{fb}:{fb+3}], v[{ac}:{ac+3}]')
    stamp(a)
    a(f's_mov_b32 s12, {ldo}')
    a('v_mul_lo_u32 v2, v5, s12')
    a('v_lshl_add_u32 v2, v3, 3, v2')
    a(f's_mul_i32 s10, s14, {wn*16}')
    a('s_add_u32 s10, s10, s7          ; n base')
    a(f's_mul_i32 s11, s13, {wm*16}')
    a('s_add_u32 s11, s11, s6          ; m base')
    a(f's_mul_i32 s15, s10, {ldo}')
    a('s_lshl_b32 s11, s11, 1')
    a('s_add_u32 s15, s15, s11')
    T = FR
    if kind == 'g2':
        a('s_mov_b32 s12, 3072')
        a('v_mul_lo_u32 v4, v5, s12')
        a('v_lshl_add_u32 v4, v3, 3, v4')
        a('s_mul_i32 s72, s10, 3072')
        a('s_add_u32 s72, s72, s11')
        a('v_lshlrev_b32 v6, 1, v5')
        a('s_lshl_b32 s73, s10, 1')
        ZR = ACC + wm * wn * 4
        BR = ZR + wm * wn * 2
        for j in range(wn):
            for i in range(wm):
                r = ZR + 2 * (i * wn + j)
                a(f'buffer_load_dwordx2 v[{r}:{r+1}], v4, s[56:59], s72 offen offset:{32*i}')
            a(f'buffer_load_ushort v{BR+j}, v6, s[60:63], s73 offen offset:{32*j}')
            if j + 1 < wn: a(f's_add_u32 s72, s72, {16*3072}')
        top = BR + wn
    elif kind == 'g3':
        ZR = ACC + wm * wn * 4
        a('s_mov_b32 s72, s15')
        for j in range(wn):
            for i in range(wm):
                r = ZR + 2 * (i * wn + j)
                a(f'buffer_load_dwordx2 v[{r}:{r+1}], v2, s[56:59], s72 offen offset:{32*i}')
            if j + 1 < wn: a(f's_add_u32 s72, s72, {16*ldo}')
        top = ZR + wm * wn * 2
    else:
        top = ACC + wm * wn * 4
    a('s_nop 7')
    a('s_waitcnt vmcnt(0)')
    for j in range(wn):
        if kind == 'g2':
            a(f'v_lshlrev_b32 v{BR+j}, 16, v{BR+j}')
        for i in range(wm):
            ac = ACC + 4 * (i * wn + j)
            rb2(a, ac, ac + 1, T)
            rb2(a, ac + 2, ac + 3, T + 1)
            if kind == 'g1':
                c1 = -2.0 * 1.4426950408889634 * 0.7978845608028654
                c2 = c1 * 0.044715
                import struct
                h = lambda f: '0x%08x' % struct.unpack('<I', struct.pack('<f', f))[0]
                a(f's_mov_b32 s74, {h(c1)}')
                for x in range(4):
                    a(f'v_mul_f32 v{T+4+x}, v{ac+x}, v{ac+x}')
                for x in range(4):
                    a(f'v_mul_f32 v{T+4+x}, {h(c2)}, v{T+4+x}')
                for x in range(4):
                    a(f'v_add_f32 v{T+4+x}, s74, v{T+4+x}')
                for x in range(4):
                    a(f'v_mul_f32 v{T+4+x}, v{T+4+x}, v{ac+x}')
                for x in range(4):
                    a(f'v_exp_f32 v{T+4+x}, v{T+4+x}')
                a('s_nop 0')
                for x in range(4):
                    a(f'v_add_f32 v{T+4+x}, 1.0, v{T+4+x}')
                for x in range(4):
                    a(f'v_rcp_f32 v{T+4+x}, v{T+4+x}')
                a('s_nop 0')
                for x in range(4):
                    a(f'v_mul_f32 v{ac+x}, v{ac+x}, v{T+4+x}')
            elif kind == 'g2':
                r = ZR + 2 * (i * wn + j)
                for x in range(4):
                    a(f'v_add_f32 v{ac+x}, v{ac+x}, v{BR+j}')
                rb2(a, ac, ac + 1, T)
                rb2(a, ac + 2, ac + 3, T + 1)
                unpack(a, T + 4, T + 5, r)
                unpack(a, T + 6, T + 7, r + 1)
                for x in range(4):
                    a(f'v_mul_f32 v{ac+x}, v{ac+x}, v{T+4+x}')
            else:
                r = ZR + 2 * (i * wn + j)
                unpack(a, T + 4, T + 5, r)
                unpack(a, T + 6, T + 7, r + 1)
                for x in range(4):
                    a(f'v_add_f32 v{ac+x}, v{ac+x}, v{T+4+x}')
            a(f'v_cvt_pk_bf16_f32 v{ac}, v{ac}, v{ac+1}')
            a(f'v_cvt_pk_bf16_f32 v{ac+1}, v{ac+2}, v{ac+3}')
            a(f'buffer_store_dwordx2 v[{ac}:{ac+1}], v2, s[52:55], s15 offen offset:{32*i}')
        if j + 1 < wn: a(f's_add_u32 s15, s15, {16*ldo}')
    if STAMP:
        stamp(a)
        a('s_waitcnt vmcnt(0)')
        stamp(a)
        stamp_flush(a, 37)
    a.label(Lend)
    a.end_kernel(name, 256 if STAMP else max(top, 64), 102 if STAMP else 80)
    return (name, ntm * ntn, 256, NS * STG)


def gen_gemm2(a, name, kind, BM, BN, K, WM, WN, KS, NS, ntm, ntn, ldA, ldB, final=False):
    assert WM * WN * KS == 8
    wm = BM // WM // 16; wn = BN // WN // 16
    nst = K // 64
    STG = (BM + BN) * 128
    ngA = BM // 8; ngB = BN // 8
    slots = []
    for g0 in range(0, ngA, 8): slots.append(('A', g0, min(8, ngA - g0)))
    for g0 in range(0, ngB, 8): slots.append(('B', g0, min(8, ngB - g0)))
    npw = sum(1 for s_ in slots if s_[2] == 8)
    a.begin_kernel(name)
    Lend = a.newlabel('Lend')
    a(f's_cmp_ge_u32 s2, {ntm*ntn}')
    a(f's_cbranch_scc1 {Lend}')
    stamp_reset(); stamp(a)
    load_ptrs(a)
    a('v_mov_b32 v23, v0              ; tid')
    a('v_lshrrev_b32 v1, 6, v0')
    a('v_and_b32 v0, 63, v0')
    a('s_nop 0')
    a('v_readfirstlane_b32 s3, v1     ; wave')
    a('s_and_b32 s10, s2, 7')
    a('s_lshr_b32 s11, s2, 3')
    lg = ntm.bit_length() - 1
    a(f's_and_b32 s4, s11, {ntm-1}      ; mt')
    a(f's_lshr_b32 s5, s11, {lg}')
    a(f's_lshl_b32 s10, s10, {5-lg}')
    a('s_add_u32 s5, s5, s10')
    a(f's_mul_i32 s6, s4, {BM}          ; m0')
    a(f's_mul_i32 s7, s5, {BN}          ; n0')
    a(f's_mul_i32 s8, s6, {ldA}         ; A soffset')
    a(f's_mul_i32 s9, s7, {ldB}         ; B soffset')
    a('v_lshrrev_b32 v2, 3, v0        ; l>>3')
    a('v_lshrrev_b32 v3, 4, v0        ; l>>4')
    a('v_and_b32 v4, 7, v0            ; l&7')
    VS = 8; SS = 64
    for i, (op, g0, nw) in enumerate(slots):
        ld = ldA if op == 'A' else ldB
        a(f's_add_u32 s10, s3, {g0}')
        a('s_lshl_b32 s11, s10, 2')
        a('v_add_u32 v5, s11, v3')
        a('v_and_b32 v5, 7, v5')
        a('v_xor_b32 v5, v5, v4')
        a('s_lshl_b32 s11, s10, 3')
        a('v_add_u32 v6, s11, v2          ; row')
        a(f's_mov_b32 s12, {ld}')
        a('v_mul_lo_u32 v6, v6, s12')
        a(f'v_lshl_add_u32 v{VS+i}, v5, 4, v6')
        a(f's_lshl_b32 s{SS+i}, s10, 10')
        if op == 'B': a(f's_add_u32 s{SS+i}, s{SS+i}, {BM*128}')
    a('s_and_b32 s10, s3, 3')
    a('s_lshr_b32 s75, s3, 2')
    if KS == 2:
        if WN == 4:   a('s_mov_b32 s13, 0'); a('s_mov_b32 s14, s10')
        elif WN == 2: a('s_lshr_b32 s13, s10, 1'); a('s_and_b32 s14, s10, 1')
        else:         a('s_mov_b32 s13, s10'); a('s_mov_b32 s14, 0')
    else:
        assert WM == 2 and WN == 4
        a('s_mov_b32 s13, s75'); a('s_mov_b32 s14, s10')
    a('s_waitcnt lgkmcnt(0)')
    stamp(a)
    if kind == 'g1':
        srd_ws(a, 44, WINT, D * F * 2); srd_ws(a, 48, HH, SZ_SD); srd_ws(a, 52, ZZ, S * F * 2); ldo = 3072
    elif kind == 'g2':
        srd_ws(a, 44, Z2NT, SZ_Z2); srd_ptr(a, 48, P_WSP, S * S * 2); srd_ws(a, 52, PP, S * FH * 2); ldo = 1536
        srd_ws(a, 56, ZZ, S * F * 2); srd_ptr(a, 60, P_BSP, S * 2)
    else:
        srd_ws(a, 44, WOUTT, FH * D * 2); srd_ws(a, 48, PP, S * FH * 2); ldo = 1280
        if final: srd_ptr(a, 52, P_OUT, SZ_SD)
        else: srd_ws(a, 52, X2, SZ_SD)
        srd_ws(a, 56, X1, SZ_SD)
    def issue(st):
        buf = (st % NS) * STG
        for i, (op, g0, nw) in enumerate(slots):
            Ls = None
            if nw < 8:
                Ls = a.newlabel('Lsk')
                a(f's_cmp_ge_u32 s3, {nw}')
                a(f's_cbranch_scc1 {Ls}')
            a(f's_add_u32 m0, s{SS+i}, {buf}')
            a('s_nop 0')
            if op == 'A': a(f'buffer_load_dwordx4 v{VS+i}, s[44:47], s8 offen lds')
            else:         a(f'buffer_load_dwordx4 v{VS+i}, s[48:51], s9 offen lds')
            if Ls: a.label(Ls)
        a('s_add_u32 s8, s8, 128')
        a('s_add_u32 s9, s9, 128')
    for st in range(0, min(NS - 1, nst)):
        issue(st)
    T_ = wm * wn
    tiles = [(i, j) for i in range(wm) for j in range(wn)]
    if KS == 2:
        h = (T_ + 1) // 2
        keep = [tiles[:h], tiles[h:]]
    else:
        keep = [tiles]
    nwin = (NS * STG + 65535) // 65536
    RA = 24; RBb = RA + 2 * nwin
    FR = 40
    nfr = wm + wn
    nks = 2 if KS == 1 else 1
    ACC = FR + max(nks * nfr * 4, 24)
    CPR = BM // 8
    NCH = BN * CPR
    NR = (NCH + 511) // 512
    RS = BM * 2 + 16
    TOFF = 65536
    OLDS = ACC + T_ * 4
    OGL = OLDS + NR
    ZR = (OGL + NR + 3) // 4 * 4
    BR = ZR + 4 * NR
    top = BR + wn
    magic = {12: 43691, 10: 52429}[CPR]
    a('v_and_b32 v5, 15, v0')
    a(f's_mul_i32 s15, s7, {ldo}')
    a('s_lshl_b32 s11, s6, 1')
    a('s_add_u32 s15, s15, s11')
    if kind == 'g2':
        a('s_mul_i32 s72, s7, 3072')
        a('s_add_u32 s72, s72, s11')
    for r in range(NR):
        a(f'v_add_u32 v6, {512*r}, v23')
        a(f'v_mul_u32_u24 v7, {magic}, v6')
        a('v_lshrrev_b32 v7, 19, v7       ; row')
        a(f'v_mul_u32_u24 v20, {CPR}, v7')
        a('v_sub_u32 v20, v6, v20         ; c')
        a(f'v_mul_u32_u24 v{OLDS+r}, {RS}, v7')
        a(f'v_lshl_add_u32 v{OLDS+r}, v20, 4, v{OLDS+r}')
        a(f'v_add_u32 v{OLDS+r}, {TOFF}, v{OLDS+r}')
        a(f'v_mul_u32_u24 v{OGL+r}, {ldo}, v7')
        a(f'v_lshl_add_u32 v{OGL+r}, v20, 4, v{OGL+r}')
        if kind == 'g2':
            a(f'v_mul_u32_u24 v21, 3072, v7')
            a('v_lshl_add_u32 v21, v20, 4, v21')
        if 512 * (r + 1) > NCH:
            a(f'v_cmp_gt_u32 vcc, {NCH}, v6')
            a('v_mov_b32 v22, 0x7ffffff0')
            a('s_nop 0')
            a(f'v_cndmask_b32 v{OGL+r}, v22, v{OGL+r}, vcc')
            if kind == 'g2': a('v_cndmask_b32 v21, v22, v21, vcc')
            a(f'v_mov_b32 v22, {TOFF}')
            a(f'v_cndmask_b32 v{OLDS+r}, v22, v{OLDS+r}, vcc')
        if kind == 'g2':
            a(f'buffer_load_dwordx4 v[{ZR+4*r}:{ZR+4*r+3}], v21, s[56:59], s72 offen')
        elif kind == 'g3':
            a(f'buffer_load_dwordx4 v[{ZR+4*r}:{ZR+4*r+3}], v{OGL+r}, s[56:59], s15 offen')
    npre = NR if kind != 'g1' else 0
    if kind == 'g2':
        a(f's_mul_i32 s10, s14, {wn*16}')
        a('s_add_u32 s10, s10, s7          ; n base')
        a('s_lshl_b32 s73, s10, 1')
        a('v_lshlrev_b32 v22, 1, v5')
        for j in range(wn):
            a(f'buffer_load_ushort v{BR+j}, v22, s[60:63], s73 offen offset:{32*j}')
        npre += wn
    a(f's_mul_i32 s10, s14, {wn*16*RS}')
    a(f's_mul_i32 s11, s13, {wm*16*2}')
    a('s_add_u32 s10, s10, s11')
    a(f's_add_u32 s10, s10, {TOFF}')
    a(f'v_mul_u32_u24 v20, {RS}, v5')
    a('v_lshl_add_u32 v20, v3, 3, v20')
    a('v_add_u32 v20, s10, v20')
    a('v_lshrrev_b32 v6, 1, v5')
    a('v_xor_b32 v6, v6, v3')
    a('v_lshlrev_b32 v6, 4, v6')
    a('v_lshl_add_u32 v6, v5, 7, v6')
    if KS == 2:
        a('s_lshl_b32 s10, s75, 6')
        a('v_xor_b32 v6, s10, v6')
    else:
        a('v_xor_b32 v7, 64, v6           ; ks=1')
    a(f's_mul_i32 s10, s13, {wm*16*128}')
    a(f's_mul_i32 s11, s14, {wn*16*128}')
    a(f's_add_u32 s11, s11, {BM*128}')
    for w in range(nwin):
        for ks in range(nks):
            a(f'v_add_u32 v{RA+2*w+ks}, s10, v{6+ks}')
            a(f'v_add_u32 v{RBb+2*w+ks}, s11, v{6+ks}')
            if w:
                a(f'v_add_u32 v{RA+2*w+ks}, {65536*w}, v{RA+2*w+ks}')
                a(f'v_add_u32 v{RBb+2*w+ks}, {65536*w}, v{RBb+2*w+ks}')
    for i in range(T_ * 4):
        a(f'v_mov_b32 v{ACC+i}, 0')
    for st in range(nst):
        later = min(NS - 2, nst - 1 - st)
        extra = npre if st < NS - 1 and st == 0 else 0
        cnt = later * npw + (npre if st == 0 else 0)
        a(f's_waitcnt vmcnt({cnt})')
        a('s_barrier')
        if st in (0, 1, nst // 2, nst - 1): stamp(a)
        doiss = st + NS - 1 < nst
        if doiss:
            L1 = a.newlabel('Le')
            a('s_cmp_lg_u32 s75, 0')
            a(f's_cbranch_scc1 {L1}')
            issue(st + NS - 1)
            a.label(L1)
        buf = (st % NS) * STG
        for ks in range(nks):
            for i in range(wm):
                off = buf + i * 2048
                w = off >> 16
                a(f'ds_read_b128 v[{FR+(ks*nfr+i)*4}:{FR+(ks*nfr+i)*4+3}], v{RA+2*w+ks} offset:{off&65535}')
            for j in range(wn):
                off = buf + j * 2048
                w = off >> 16
                a(f'ds_read_b128 v[{FR+(ks*nfr+wm+j)*4}:{FR+(ks*nfr+wm+j)*4+3}], v{RBb+2*w+ks} offset:{off&65535}')
        for ks in range(nks):
            a(f's_waitcnt lgkmcnt({nfr if ks < nks-1 else 0})')
            for i in range(wm):
                for j in range(wn):
                    ac = ACC + 4 * (i * wn + j)
                    fa = FR + (ks * nfr + i) * 4; fb = FR + (ks * nfr + wm + j) * 4
                    a(f'v_mfma_f32_16x16x32_bf16 v[{ac}:{ac+3}], v[{fa}:{fa+3}], v[{fb}:{fb+3}], v[{ac}:{ac+3}]')
        if doiss:
            L2 = a.newlabel('Ll')
            a('s_cmp_eq_u32 s75, 0')
            a(f's_cbranch_scc1 {L2}')
            issue(st + NS - 1)
            a.label(L2)
    stamp(a)
    T = FR
    def epi1(tl):
        for (i, j) in tl:
            ac = ACC + 4 * (i * wn + j)
            if kind == 'g3':
                a(f'v_cvt_pk_bf16_f32 v{ac}, v{ac}, v{ac+1}')
                a(f'v_cvt_pk_bf16_f32 v{ac+1}, v{ac+2}, v{ac+3}')
            else:
                rb2(a, ac, ac + 1, T)
                rb2(a, ac + 2, ac + 3, T + 1)
                if kind == 'g1':
                    for x in range(4):
                        a(f'v_mul_f32 v{T+4+x}, v{ac+x}, v{ac+x}')
                    for x in range(4):
                        a(f'v_fma_f32 v{T+4+x}, v{T+4+x}, s77, v{T+3}')
                    for x in range(4):
                        a(f'v_mul_f32 v{T+4+x}, v{T+4+x}, v{ac+x}')
                    for x in range(4):
                        a(f'v_exp_f32 v{T+4+x}, v{T+4+x}')
                    a('s_nop 0')
                    for x in range(4):
                        a(f'v_add_f32 v{T+4+x}, 1.0, v{T+4+x}')
                    for x in range(4):
                        a(f'v_rcp_f32 v{T+4+x}, v{T+4+x}')
                    a('s_nop 0')
                    for x in range(4):
                        a(f'v_mul_f32 v{ac+x}, v{ac+x}, v{T+4+x}')
                else:
                    for x in range(4):
                        a(f'v_add_f32 v{ac+x}, v{ac+x}, v{BR+j}')
                a(f'v_cvt_pk_bf16_f32 v{ac}, v{ac}, v{ac+1}')
                a(f'v_cvt_pk_bf16_f32 v{ac+1}, v{ac+2}, v{ac+3}')
            a(f'ds_write_b64 v20, v[{ac}:{ac+1}] offset:{16*j*RS+32*i}')
    if kind == 'g1':
        c1 = -2.0 * 1.4426950408889634 * 0.7978845608028654
        a(f's_mov_b32 s77, {fhex(c1*0.044715)}')
        a(f'v_mov_b32 v{T+3}, {fhex(c1)}')
    if kind == 'g2':
        for j in range(wn):
            a(f'v_lshlrev_b32 v{BR+j}, 16, v{BR+j}')
    a('s_barrier')
    a('s_nop 4')
    if KS == 1:
        epi1(tiles)
    else:
        a('v_lshlrev_b32 v6, 4, v0')
        a(f's_mul_i32 s10, s3, {T_*1024}')
        a('s_xor_b32 s11, s3, 4')
        a(f's_mul_i32 s11, s11, {T_*1024}')
        a('v_add_u32 v7, s11, v6')
        a('v_add_u32 v6, s10, v6')
        Lk1 = a.newlabel('Lk1'); Lkd = a.newlabel('Lkd')
        a('s_cmp_lg_u32 s75, 0')
        a(f's_cbranch_scc1 {Lk1}')
        for ksi in range(2):
            if ksi == 1: a.label(Lk1)
            send = keep[1 - ksi]; kp = keep[ksi]
            for (i, j) in send:
                ac = ACC + 4 * (i * wn + j)
                a(f'ds_write_b128 v6, v[{ac}:{ac+3}] offset:{1024*(i*wn+j)}')
            a('s_waitcnt lgkmcnt(0)')
            a('s_barrier')
            for n_, (i, j) in enumerate(kp):
                a(f'ds_read_b128 v[{T+8+4*n_}:{T+11+4*n_}], v7 offset:{1024*(i*wn+j)}')
            a('s_waitcnt lgkmcnt(0)')
            for n_, (i, j) in enumerate(kp):
                ac = ACC + 4 * (i * wn + j)
                for x in range(4):
                    a(f'v_add_f32 v{ac+x}, v{ac+x}, v{T+8+4*n_+x}')
            epi1(kp)
            if ksi == 0: a(f's_branch {Lkd}')
        a.label(Lkd)
    a('s_waitcnt lgkmcnt(0)')
    a('s_barrier')
    for r in range(NR):
        a(f'ds_read_b128 v[{ACC+4*r}:{ACC+4*r+3}], v{OLDS+r}')
    for r in range(NR):
        a(f's_waitcnt lgkmcnt({NR-1-r})')
        if kind != 'g1':
            for x in range(4):
                unpack(a, T, T + 1, ACC + 4 * r + x)
                unpack(a, T + 2, T + 3, ZR + 4 * r + x)
                op = 'v_mul_f32' if kind == 'g2' else 'v_add_f32'
                a(f'{op} v{T}, v{T}, v{T+2}')
                a(f'{op} v{T+1}, v{T+1}, v{T+3}')
                a(f'v_cvt_pk_bf16_f32 v{ACC+4*r+x}, v{T}, v{T+1}')
        a(f'buffer_store_dwordx4 v[{ACC+4*r}:{ACC+4*r+3}], v{OGL+r}, s[52:55], s15 offen')
    if STAMP:
        stamp(a)
        a('s_waitcnt vmcnt(0)')
        stamp(a)
        stamp_flush(a, 37)
    a.label(Lend)
    a.end_kernel(name, 256 if STAMP else max(top, 64), 102 if STAMP else 80)
    return (name, ntm * ntn, 512, max(NS * STG, TOFF + BN * RS))

def main():
    global STAMP
    if len(sys.argv) > 2 and sys.argv[2] == 'stamp': STAMP = True
    a = Asm()
    prep = gen_prep(a)
    conv = gen_conv(a)
    e1 = gen_e(a, True)
    e2 = gen_e(a, False)
    ln2 = gen_ln2(a)
    g1 = gen_gemm2(a, 'g1_kernel', 'g1', 96, 128, 640, 2, 4, 1, 5, 16, 16, 1280, 1280)
    g2 = gen_gemm2(a, 'g2_kernel', 'g2', 96, 64, 2048, 2, 2, 2, 7, 8, 32, LDT, 4096)
    g3 = gen_gemm2(a, 'g3_kernel', 'g3', 80, 64, 768, 1, 4, 2, 8, 8, 32, 1536, 1536)
    g3f = gen_gemm2(a, 'g3f_kernel', 'g3', 80, 64, 768, 1, 4, 2, 8, 8, 32, 1536, 1536, final=True)
    launches = [prep, conv, e1, g1, ln2, g2, g3, e2, g1, ln2, g2, g3f]
    hdr = open('interleave_layers__ssm_conv_h3__mixer_gmlp__prompt.s.ref').read().split('; Override launch')[0]
    txt = a.text(launches, hdr)
    out = sys.argv[1] if len(sys.argv) > 1 else 'interleave_layers__ssm_conv_h3__mixer_gmlp__prompt.s'
    open(out, 'w').write(txt)
    print('wrote', out, len(txt), 'bytes')

if __name__ == '__main__':
    main()
```

```python
import sys
sys.path.insert(0, 'dev')
from asmlib import *
import gen
from gen import *
import gen2
from gen2 import CNT, NCNT, ST2, ZERO_BYTES, Z2, chunk_map, gelu4, gelu_consts, dpp_rowsum, sync_signal, sync_wait, \
    common_prologue, cnt_reg, kernel_wrap, SC

class Gemm:
    def __init__(self, a, BM, BN, K, WM, WN, NS, ldA, ldB, srdA, srdB):
        self.a = a; self.BM = BM; self.BN = BN; self.K = K; self.WM = WM; self.WN = WN; self.NS = NS
        self.ldA = ldA; self.ldB = ldB; self.srdA = srdA; self.srdB = srdB
        assert WM * WN == 4
        self.wm = BM // WM // 16; self.wn = BN // WN // 16
        self.nst = K // 64
        self.STG = (BM + BN) * 128
        ngA = BM // 8; ngB = BN // 8
        self.slots = []
        for g0 in range(0, ngA, 4): self.slots.append(('A', g0, min(4, ngA - g0)))
        for g0 in range(0, ngB, 4): self.slots.append(('B', g0, min(4, ngB - g0)))
        self.npw = sum(1 for s_ in self.slots if s_[2] == 4)
        self.nB = sum(1 for s_ in self.slots if s_[2] == 4 and s_[0] == 'B')
        self.VS = 24; self.SS = 64
        assert len(self.slots) <= 8
        self.nwin = (NS * self.STG + 65535) // 65536
        self.RA = 8; self.RB = self.RA + 2 * self.nwin
        self.FR = 40
        self.nfr = self.wm + self.wn
        self.ACC = self.FR + 4 * self.nfr * 4
        self.T_ = self.wm * self.wn
        self.tiles = [(i, j) for i in range(self.wm) for j in range(self.wn)]
        self.free = self.ACC + self.T_ * 4
        self.bcache = ''
        self.arow_split = None
        self.a_tile_off = None
        self.a_wave_stride = self.wm * 16 * 128
    def setup(self):
        a = self.a
        a(f's_mul_i32 s8, s6, {self.ldA}         ; A soffset')
        a(f's_mul_i32 s9, s7, {self.ldB}         ; B soffset')
        a('s_and_b32 s74, s3, 3')
        for i, (op, g0, nw) in enumerate(self.slots):
            ld = self.ldA if op == 'A' else self.ldB
            a(f's_add_u32 s10, s74, {g0}')
            a('s_lshl_b32 s11, s10, 2')
            a('v_add_u32 v6, s11, v3')
            a('v_and_b32 v6, 7, v6')
            a('v_xor_b32 v6, v6, v4')
            a('s_lshl_b32 s11, s10, 3')
            if op == 'A' and self.arow_split:
                gs, add = self.arow_split
                a(f's_cmp_ge_u32 s10, {gs}')
                a(f's_cselect_b32 s12, {add}, 0')
                a('s_add_u32 s11, s11, s12')
            a('v_add_u32 v7, s11, v2          ; row')
            a(f's_mov_b32 s12, {ld}')
            a('v_mul_lo_u32 v7, v7, s12')
            a(f'v_lshl_add_u32 v{self.VS+i}, v6, 4, v7')
            a(f's_lshl_b32 s{self.SS+i}, s10, 10')
            if op == 'B': a(f's_add_u32 s{self.SS+i}, s{self.SS+i}, {self.BM*128}')
        if self.WN == 4:   a('s_mov_b32 s13, 0'); a('s_mov_b32 s14, s74')
        elif self.WN == 2: a('s_lshr_b32 s13, s74, 1'); a('s_and_b32 s14, s74, 1')
        else:              a('s_mov_b32 s13, s74'); a('s_mov_b32 s14, 0')
        a('v_lshrrev_b32 v6, 1, v5')
        a('v_xor_b32 v6, v6, v3')
        a('v_lshlrev_b32 v6, 4, v6')
        a('v_lshl_add_u32 v6, v5, 7, v6')
        a('v_xor_b32 v7, 64, v6           ; ks=1')
        a(f's_mul_i32 s10, s13, {self.a_wave_stride}')
        a(f's_mul_i32 s11, s14, {self.wn*16*128}')
        a(f's_add_u32 s11, s11, {self.BM*128}')
        for w in range(self.nwin):
            for ks in range(2):
                a(f'v_add_u32 v{self.RA+2*w+ks}, s10, v{6+ks}')
                a(f'v_add_u32 v{self.RB+2*w+ks}, s11, v{6+ks}')
                if w:
                    a(f'v_add_u32 v{self.RA+2*w+ks}, {65536*w}, v{self.RA+2*w+ks}')
                    a(f'v_add_u32 v{self.RB+2*w+ks}, {65536*w}, v{self.RB+2*w+ks}')
    def issue(self, st, parts='AB'):
        a = self.a
        buf = (st % self.NS) * self.STG
        for i, (op, g0, nw) in enumerate(self.slots):
            if op not in parts: continue
            Ls = None
            if nw < 4:
                Ls = a.newlabel('Lsk')
                a(f's_cmp_ge_u32 s74, {nw}')
                a(f's_cbranch_scc1 {Ls}')
            a(f's_add_u32 m0, s{self.SS+i}, {buf}')
            a('s_nop 0')
            if op == 'A': a(f'buffer_load_dwordx4 v{self.VS+i}, s[{self.srdA}:{self.srdA+3}], s8 offen lds')
            else:         a(f'buffer_load_dwordx4 v{self.VS+i}, s[{self.srdB}:{self.srdB+3}], s9 offen {self.bcache} lds')
            if Ls: a.label(Ls)
        if 'A' in parts: a('s_add_u32 s8, s8, 128')
        if 'B' in parts: a('s_add_u32 s9, s9, 128')
    def prologue(self, parts='AB'):
        a = self.a
        L = a.newlabel('Lpr')
        a('s_cmp_eq_u32 s75, 0')
        a(f's_cbranch_scc1 {L}')
        for st in range(min(self.NS - 1, self.nst)): self.issue(st, parts)
        a.label(L)
    def run(self, swap=(), split_prologue=False, extra_young=0):
        a = self.a; NS = self.NS; nst = self.nst; npw = self.npw
        wm, wn, nfr, FR, ACC = self.wm, self.wn, self.nfr, self.FR, self.ACC
        Lld = a.newlabel('Lld'); Ljn = a.newlabel('Ljn')
        a('s_cmp_lg_u32 s75, 0')
        a(f's_cbranch_scc1 {Lld}')
        for i in range(self.T_ * 4): a(f'v_mov_b32 v{ACC+i}, 0')
        FS = 2 * nfr * 4
        def reads(st):
            buf = (st % NS) * self.STG
            f0 = FR + (st & 1) * FS
            for ks in range(2):
                for i in range(wm):
                    off = buf + (self.a_tile_off[i] if self.a_tile_off else i * 2048); w = off >> 16
                    a(f'ds_read_b128 v[{f0+(ks*nfr+i)*4}:{f0+(ks*nfr+i)*4+3}], v{self.RA+2*w+ks} offset:{off&65535}')
                for j in range(wn):
                    off = buf + j * 2048; w = off >> 16
                    a(f'ds_read_b128 v[{f0+(ks*nfr+wm+j)*4}:{f0+(ks*nfr+wm+j)*4+3}], v{self.RB+2*w+ks} offset:{off&65535}')
        def mfmas(st):
            f0 = FR + (st & 1) * FS
            for ks in range(2):
                for i in range(wm):
                    for j in range(wn):
                        ac = ACC + 4 * (i * wn + j)
                        fa = f0 + (ks * nfr + i) * 4; fb = f0 + (ks * nfr + wm + j) * 4
                        if i in swap: fa, fb = fb, fa
                        a(f'v_mfma_f32_16x16x32_bf16 v[{ac}:{ac+3}], v[{fa}:{fa+3}], v[{fb}:{fb+3}], v[{ac}:{ac+3}]')
        for st in range(nst):
            a('s_barrier')
            reads(st)
            if st: mfmas(st - 1)
            a('s_waitcnt lgkmcnt(0)')
        mfmas(nst - 1)
        a(f's_branch {Ljn}')
        a.label(Lld)
        for st in range(nst):
            later = min(NS - 2, nst - 1 - st)
            npro = min(NS - 1, nst)
            if split_prologue and st < npro:
                cnt = (npro - 1 - st) * self.nB + max(0, min(st, nst - npro)) * npw
            else:
                cnt = later * npw + (extra_young if st == 0 else 0)
            a(f's_waitcnt vmcnt({cnt})')
            a('s_barrier')
            if st + NS - 1 < nst: self.issue(st + NS - 1)
        a.label(Ljn)

def l2_prefetch(a, build_srd, soff_code, ninstr):
    build_srd()
    soff_code()
    a(f's_mul_i32 s11, s3, {ninstr*1024}')
    a('s_add_u32 s10, s10, s11')
    a('v_lshlrev_b32 v6, 4, v0')
    for i in range(ninstr):
        if i and i % 4 == 0: a('s_add_u32 s10, s10, 4096')
        a(f'buffer_load_dwordx4 v[252:255], v6, s[80:83], s10 offen offset:{1024*(i%4)}')
    return ninstr

PF = False
G2LD = None
def xidx(a, sh):
    a('s_and_b32 s10, s5, 3'); a('s_lshl_b32 s10, s10, 3'); a('s_add_u32 s10, s10, s4'); a(f's_lshl_b32 s10, s10, {sh}')
def pf_wsp(a):
    if not PF: return 0
    return l2_prefetch(a, lambda: srd_ptr(a, 80, P_WSP, S * S * 2),
                lambda: (a('s_lshl_b32 s10, s5, 18'), a('s_lshl_b32 s11, s4, 15'), a('s_add_u32 s10, s10, s11')), 4)
def pf_wout(a):
    if not PF: return 0
    return l2_prefetch(a, lambda: srd_ws(a, 80, WOUTT, FH * D * 2), lambda: xidx(a, 15), 4)
def pf_win(a):
    if not PF: return 0
    return l2_prefetch(a, lambda: srd_ws(a, 80, WINT, D * F * 2), lambda: xidx(a, 16), 8)

def rb_batch(a, regs, tmp):
    for n, r in enumerate(regs): a(f'v_cvt_pk_bf16_f32 v{tmp+n}, v{r}, v{r+1}')
    for n, r in enumerate(regs):
        a(f'v_lshlrev_b32 v{r}, 16, v{tmp+n}')
        a(f'v_and_b32 v{r+1}, 0xffff0000, v{tmp+n}')

def gelu_batch(a, accs, W, C):
    pairs = [ac + x for ac in accs for x in (0, 2)]
    rb_batch(a, pairs, W)
    wp = [W + 2 * n for n in range(len(pairs))]
    for p, w in zip(pairs, wp): a(f'v_pk_mul_f32 v[{w}:{w+1}], v[{p}:{p+1}], v[{p}:{p+1}]')
    for p, w in zip(pairs, wp): a(f'v_pk_fma_f32 v[{w}:{w+1}], v[{w}:{w+1}], s[78:79], v[{C}:{C+1}]')
    for p, w in zip(pairs, wp): a(f'v_pk_mul_f32 v[{w}:{w+1}], v[{w}:{w+1}], v[{p}:{p+1}]')
    for w in wp:
        a(f'v_exp_f32 v{w}, v{w}'); a(f'v_exp_f32 v{w+1}, v{w+1}')
    a('s_nop 0')
    for w in wp: a(f'v_pk_add_f32 v[{w}:{w+1}], v[{w}:{w+1}], 1.0 op_sel_hi:[1,0]')
    for w in wp:
        a(f'v_rcp_f32 v{w}, v{w}'); a(f'v_rcp_f32 v{w+1}, v{w+1}')
    a('s_nop 0')
    for p, w in zip(pairs, wp): a(f'v_pk_mul_f32 v[{p}:{p+1}], v[{p}:{p+1}], v[{w}:{w+1}]')

def srd_ws_rt(a, d, off0, off1, nbytes):
    a(f's_mul_i32 s10, s101, {off1-off0}')
    a(f's_add_u32 s10, s10, {off0}')
    a(f's_add_u32 s{d}, s{P_WS}, s10')
    a(f's_addc_u32 s{d+1}, s{P_WS+1}, 0')
    a(f's_mov_b32 s{d+2}, {nbytes}')
    a(f's_mov_b32 s{d+3}, 0x20000')
def cnt_reg_rt(a, sreg, base, step):
    a(f's_mul_i32 s{sreg}, s101, {step}')
    a(f's_add_u32 s{sreg}, s{sreg}, s5')
    a(f's_add_u32 s{sreg}, s{sreg}, {base}')
    a(f's_lshl_b32 s{sreg}, s{sreg}, 7')

def only_compute(a):
    L = a.newlabel('Loc')
    a('s_cmp_lg_u32 s75, 0')
    a(f's_cbranch_scc1 {L}')
    return L

def phase_g1(a, layer, wait_cnt=None):
    assert wait_cnt is not None
    srd_ws(a, 44, WINT, D * F * 2); srd_ws(a, 48, HH, SZ_SD)
    NSA = 5; AOFF = 81920; ASTG = 12288
    wm, wn, nfr = 3, 2, 5
    a('s_mul_i32 s6, s4, 96')
    a('s_lshl_b32 s7, s5, 6')
    a('s_and_b32 s74, s3, 3')
    VS = 24; SS = 64
    a('s_add_u32 s10, s6, 768')
    a('s_mul_i32 s8, s10, 1280')
    a('s_mul_i32 s9, s7, 1280           ; B soffset')
    for i in range(5):
        g0 = 4 * i if i < 3 else 4 * (i - 3)
        a(f's_add_u32 s10, s74, {g0}')
        a('s_lshl_b32 s11, s10, 2')
        a('v_add_u32 v6, s11, v3')
        a('v_and_b32 v6, 7, v6')
        a('v_xor_b32 v6, v6, v4')
        a('s_lshl_b32 s11, s10, 3')
        a('v_add_u32 v7, s11, v2')
        a('v_mul_u32_u24 v7, 1280, v7')
        a(f'v_lshl_add_u32 v{VS+i}, v6, 4, v7')
        a(f's_lshl_b32 s{SS+i}, s10, 10')
    a('s_lshr_b32 s13, s74, 1'); a('s_and_b32 s14, s74, 1')
    a('v_lshrrev_b32 v6, 1, v5')
    a('v_xor_b32 v6, v6, v3')
    a('v_lshlrev_b32 v6, 4, v6')
    a('v_lshl_add_u32 v6, v5, 7, v6')
    a('v_xor_b32 v7, 64, v6')
    a(f's_mul_i32 s10, s13, {48*128}')
    a(f's_add_u32 s10, s10, {AOFF}')
    a(f's_mul_i32 s11, s14, {32*128}')
    RA = 8; RB = 10
    for ks in range(2):
        a(f'v_add_u32 v{RA+ks}, s10, v{6+ks}')
        a(f'v_add_u32 v{RB+ks}, s11, v{6+ks}')
        a(f'v_add_u32 v{RB+2+ks}, 65536, v{RB+ks}')
    def issueA(s_):
        buf = AOFF + (s_ % NSA) * ASTG
        for i in range(3):
            a(f's_add_u32 m0, s{SS+i}, {buf}')
            a('s_nop 0')
            a(f'buffer_load_dwordx4 v{VS+i}, s[44:47], s8 offen lds')
        if s_ == 9:
            a(f's_sub_u32 s8, s8, {768*1280 + 9*128}')
        else:
            a('s_add_u32 s8, s8, 128')
    def issueB(k):
        for i in range(2):
            a(f's_add_u32 m0, s{SS+3+i}, {k*8192}')
            a('s_nop 0')
            a(f'buffer_load_dwordx4 v{VS+3+i}, s[48:51], s9 offen sc1 lds')
        a('s_add_u32 s9, s9, 128')
    def only_loader():
        L = a.newlabel('Lol')
        a('s_cmp_eq_u32 s75, 0')
        a(f's_cbranch_scc1 {L}')
        return L
    def preA():
        L = only_loader()
        for s_ in range(NSA - 1): issueA(s_)
        a.label(L)
    sync_wait(a, wait_cnt, 8, pre=preA)
    stamp(a)
    L = only_loader()
    for k in range(10): issueB(k)
    a.label(L)
    FR = 40; FS = 2 * nfr * 4
    ZA = FR + 2 * FS
    YA = ZA + 24
    free = YA + 24
    T = FR; WK = T + 32
    TOFF = 0; TOFF2 = 16384; TAB = 32768
    RS = 96 * 2 + 16; RS2 = 128 + 16
    OL1 = free; OG1 = OL1 + 2; OL2 = OG1 + 2; OG2 = OL2 + 2
    PB = (OG2 + 2 + 3) // 4 * 4
    CH = PB + 16
    srd_ws(a, 52, ZZ, S * F * 2)
    srd_ws_rt(a, 60, Z2[0], Z2[1], SZ_Z2)
    srd_ws_rt(a, 56, ST2, ST2 + 32 * 16384, 32 * 16384)
    NR1 = chunk_map(a, 64, 12, RS, TOFF, 3072, OL1, OG1)
    NR2 = chunk_map(a, 96, 8, RS2, TOFF2, LDT, OL2, OG2)
    a('s_mul_i32 s15, s7, 3072')
    a('s_lshl_b32 s11, s6, 1')
    a('s_add_u32 s15, s15, s11')
    a(f's_mul_i32 s72, s6, {LDT}')
    a('s_lshl_b32 s11, s7, 1')
    a('s_add_u32 s72, s72, s11')
    a(f's_mul_i32 s10, s14, {32*RS}')
    a('s_mul_i32 s11, s13, 96')
    a('s_add_u32 s10, s10, s11')
    a(f's_add_u32 s10, s10, {TOFF}')
    a(f'v_mul_u32_u24 v20, {RS}, v5')
    a('v_lshl_add_u32 v20, v3, 3, v20')
    a('v_add_u32 v20, s10, v20')
    a(f's_mul_i32 s10, s13, {48*RS2}')
    a('s_mul_i32 s11, s14, 64')
    a('s_add_u32 s10, s10, s11')
    a(f's_add_u32 s10, s10, {TOFF2}')
    a(f'v_mul_u32_u24 v21, {RS2}, v5')
    a('v_lshl_add_u32 v21, v3, 3, v21')
    a('v_add_u32 v21, s10, v21')
    cnt_reg_rt(a, 92, 96, 32)
    def zacc(i, j): return ZA + 4 * (i * wn + j)
    def yacc(i, j): return YA + 4 * (i * wn + j)
    zt = [zacc(i, j) for i in range(3) for j in range(wn)]
    yt = [yacc(i, j) for i in range(3) for j in range(wn)]
    Lld = a.newlabel('Lld'); Ljn = a.newlabel('Ljn')
    a('s_cmp_lg_u32 s75, 0')
    a(f's_cbranch_scc1 {Lld}')
    for i in range(48): a(f'v_mov_b32 v{ZA+i}, 0')
    def reads(s_):
        f0 = FR + (s_ & 1) * FS
        abuf = (s_ % NSA) * ASTG
        boff = (s_ % 10) * 8192
        for ks in range(2):
            for i in range(wm):
                a(f'ds_read_b128 v[{f0+(ks*nfr+i)*4}:{f0+(ks*nfr+i)*4+3}], v{RA+ks} offset:{abuf+i*2048}')
            for j in range(wn):
                off = boff + j * 2048; w = off >> 16
                a(f'ds_read_b128 v[{f0+(ks*nfr+wm+j)*4}:{f0+(ks*nfr+wm+j)*4+3}], v{RB+2*w+ks} offset:{off&65535}')
    def mfmas(s_):
        f0 = FR + (s_ & 1) * FS
        for ks in range(2):
            for i in range(wm):
                for j in range(wn):
                    fa = f0 + (ks * nfr + i) * 4; fb = f0 + (ks * nfr + wm + j) * 4
                    if s_ < 10:
                        ac = zacc(i, j); fa, fb = fb, fa
                    else:
                        ac = yacc(i, j)
                    a(f'v_mfma_f32_16x16x32_bf16 v[{ac}:{ac+3}], v[{fa}:{fa+3}], v[{fb}:{fb+3}], v[{ac}:{ac+3}]')
    for s_ in range(10):
        a('s_barrier')
        reads(s_)
        if s_: mfmas(s_ - 1)
        a('s_waitcnt lgkmcnt(0)')
    mfmas(9)
    stamp(a)
    gelu_consts(a, T)
    a('s_nop 6')
    gelu_batch(a, zt, WK, T + 2)
    rb_batch(a, [ac + x for ac in zt for x in (0, 2)], WK)
    SM = T + 8; M2 = T + 16
    for j in range(wn):
        for x in (0, 2):
            r = SM + 4 * j + x
            a(f'v_pk_add_f32 v[{r}:{r+1}], v[{zacc(0,j)+x}:{zacc(0,j)+x+1}], v[{zacc(1,j)+x}:{zacc(1,j)+x+1}]')
            a(f'v_pk_add_f32 v[{r}:{r+1}], v[{r}:{r+1}], v[{zacc(2,j)+x}:{zacc(2,j)+x+1}]')
    a('s_nop 1')
    dpp_rowsum(a, [SM + k for k in range(8)])
    for k in range(8):
        a(f'v_mul_f32 v{SM+k}, {fhex(1.0/48)}, v{SM+k}')
    for i in range(3):
        for j in range(wn):
            for x in (0, 2):
                w = WK + 8 * i + 4 * j + x
                a(f'v_pk_add_f32 v[{w}:{w+1}], v[{zacc(i,j)+x}:{zacc(i,j)+x+1}], v[{SM+4*j+x}:{SM+4*j+x+1}] neg_lo:[0,1] neg_hi:[0,1]')
    for i in range(3):
        for j in range(wn):
            for x in (0, 2):
                w = WK + 8 * i + 4 * j + x
                r = M2 + 4 * j + x
                if i == 0: a(f'v_pk_mul_f32 v[{r}:{r+1}], v[{w}:{w+1}], v[{w}:{w+1}]')
                else: a(f'v_pk_fma_f32 v[{r}:{r+1}], v[{w}:{w+1}], v[{w}:{w+1}], v[{r}:{r+1}]')
    a('s_nop 1')
    dpp_rowsum(a, [M2 + k for k in range(8)])
    for j in range(wn):
        for x in range(4):
            a(f'v_mov_b32 v{PB+8*j+2*x}, v{SM+4*j+x}')
            a(f'v_mov_b32 v{PB+8*j+2*x+1}, v{M2+4*j+x}')
    a('s_lshl_b32 s10, s4, 1')
    a('s_add_u32 s10, s10, s13          ; part')
    a('s_lshl_b32 s10, s10, 9')
    a('s_lshl_b32 s11, s5, 14')
    a('s_add_u32 s10, s10, s11')
    a('s_lshl_b32 s11, s14, 8')
    a('s_add_u32 s10, s10, s11')
    a('v_lshlrev_b32 v6, 5, v3')
    a('v_cmp_eq_u32 vcc, 0, v5')
    a('s_and_saveexec_b64 s[88:89], vcc')
    for j in range(wn):
        a(f'buffer_store_dwordx4 v[{PB+8*j}:{PB+8*j+3}], v6, s[56:59], s10 offen offset:{128*j} sc1')
        a(f'buffer_store_dwordx4 v[{PB+8*j+4}:{PB+8*j+7}], v6, s[56:59], s10 offen offset:{128*j+16} sc1')
    a('s_mov_b64 exec, s[88:89]')
    stamp(a)
    for s_ in range(10, 20):
        if s_ == 12: a('s_waitcnt vmcnt(0)')
        a('s_barrier')
        if s_ == 12:
            Ls = a.newlabel('Lsg')
            a('s_cmp_lg_u32 s3, 0')
            a(f's_cbranch_scc1 {Ls}')
            a('v_mov_b32 v6, 0')
            a('v_mov_b32 v7, 1')
            a('s_mov_b64 s[88:89], exec')
            a('s_mov_b64 exec, 1')
            a('buffer_atomic_add v7, v6, s[84:87], s92 offen sc1')
            a('s_mov_b64 exec, s[88:89]')
            a.label(Ls)
        reads(s_)
        if s_ > 10: mfmas(s_ - 1)
        a('s_waitcnt lgkmcnt(0)')
    mfmas(19)
    stamp(a)
    gelu_consts(a, T)
    a('s_nop 6')
    gelu_batch(a, yt, WK, T + 2)
    for ac in yt:
        a(f'v_cvt_pk_bf16_f32 v{ac}, v{ac}, v{ac+1}')
        a(f'v_cvt_pk_bf16_f32 v{ac+1}, v{ac+2}, v{ac+3}')
    a('s_barrier')
    for i in range(3):
        for j in range(wn):
            a(f'ds_write_b64 v20, v[{yacc(i,j)}:{yacc(i,j)+1}] offset:{16*j*RS+32*i}')
    a('s_waitcnt lgkmcnt(0)')
    a(f's_branch {Ljn}')
    a.label(Lld)
    for s_ in range(20):
        if s_ < 4: cnt = 2 * (9 - s_) + 3 * s_
        else: cnt = 3 * min(3, 19 - s_)
        a(f's_waitcnt vmcnt({cnt})')
        a('s_barrier')
        if s_ + NSA - 1 < 20: issueA(s_ + NSA - 1)
    a('s_barrier')
    a.label(Ljn)
    sync_wait(a, 92, 8, wave=4)
    stamp(a)
    a('v_lshrrev_b32 v6, 4, v23')
    a('v_lshlrev_b32 v6, 3, v6')
    a('v_lshl_add_u32 v6, v5, 9, v6')
    a('s_lshl_b32 s11, s5, 14')
    G0 = PB
    a(f'buffer_load_dwordx2 v[{G0}:{G0+1}], v6, s[56:59], s11 offen sc1')
    a(f'buffer_load_dwordx2 v[{G0+2}:{G0+3}], v6, s[56:59], s11 offen offset:256 sc1')
    for r in range(NR1):
        a(f'ds_read_b128 v[{CH+4*r}:{CH+4*r+3}], v{OL1+r}')
    for r in range(NR1):
        a(f's_waitcnt lgkmcnt({NR1-1-r})')
        a(f'buffer_store_dwordx4 v[{CH+4*r}:{CH+4*r+3}], v{OG1+r}, s[52:55], s15 offen')
    a(f's_waitcnt vmcnt({NR1})')
    stamp(a)
    a(f'v_mov_b32 v{G0+4}, v{G0}')
    a(f'v_mov_b32 v{G0+5}, v{G0+2}')
    a('s_nop 1')
    dpp_rowsum(a, [G0 + 4, G0 + 5])
    a(f'v_mul_f32 v{G0+4}, {fhex(1.0/16)}, v{G0+4}')
    a(f'v_mul_f32 v{G0+5}, {fhex(1.0/16)}, v{G0+5}')
    a(f'v_sub_f32 v{G0}, v{G0}, v{G0+4}')
    a(f'v_sub_f32 v{G0+2}, v{G0+2}, v{G0+5}')
    a(f'v_mul_f32 v{G0}, v{G0}, v{G0}')
    a(f'v_mul_f32 v{G0+2}, v{G0+2}, v{G0+2}')
    a(f's_mov_b32 s10, {fhex(48.0)}')
    a(f'v_fma_f32 v{G0+1}, v{G0}, s10, v{G0+1}')
    a(f'v_fma_f32 v{G0+3}, v{G0+2}, s10, v{G0+3}')
    a('s_nop 1')
    dpp_rowsum(a, [G0 + 1, G0 + 3])
    a(f'v_mul_f32 v{G0+1}, {fhex(1.0/768)}, v{G0+1}')
    a(f'v_mul_f32 v{G0+3}, {fhex(1.0/768)}, v{G0+3}')
    TT = CH + 8
    rb2(a, G0 + 4, G0 + 5, TT)
    rb2(a, G0 + 1, G0 + 3, TT)
    a(f'v_add_f32 v{G0+1}, 0x3727c5ac, v{G0+1}')
    a(f'v_add_f32 v{G0+3}, 0x3727c5ac, v{G0+3}')
    rb2(a, G0 + 1, G0 + 3, TT)
    a(f'v_sqrt_f32 v{G0+1}, v{G0+1}')
    a(f'v_sqrt_f32 v{G0+3}, v{G0+3}')
    a('s_nop 0')
    rb2(a, G0 + 1, G0 + 3, TT)
    a(f'v_rcp_f32 v{G0+1}, v{G0+1}')
    a(f'v_rcp_f32 v{G0+3}, v{G0+3}')
    a(f'v_mov_b32 v{G0}, v{G0+4}')
    a(f'v_mov_b32 v{G0+2}, v{G0+5}')
    a('v_lshrrev_b32 v6, 4, v23')
    a('v_lshlrev_b32 v6, 3, v6')
    a(f'ds_write_b64 v6, v[{G0}:{G0+1}] offset:{TAB}')
    a(f'ds_write_b64 v6, v[{G0+2}:{G0+3}] offset:{TAB+256}')
    a('s_lshl_b32 s10, s14, 8')
    a('v_lshlrev_b32 v7, 5, v3')
    a('v_add_u32 v7, s10, v7')
    a('s_waitcnt lgkmcnt(0)')
    a('s_barrier')
    L3 = only_compute(a)
    for j in range(wn):
        a(f'ds_read_b128 v[{PB+8*j}:{PB+8*j+3}], v7 offset:{TAB+128*j}')
        a(f'ds_read_b128 v[{PB+8*j+4}:{PB+8*j+7}], v7 offset:{TAB+128*j+16}')
    a('s_waitcnt lgkmcnt(0)')
    for i in range(3):
        for j in range(wn):
            for x in range(4):
                a(f'v_sub_f32 v{zacc(i,j)+x}, v{zacc(i,j)+x}, v{PB+8*j+2*x}')
    rb_batch(a, [ac + x for ac in zt for x in (0, 2)], WK)
    for i in range(3):
        for j in range(wn):
            for x in range(4):
                a(f'v_mul_f32 v{zacc(i,j)+x}, v{zacc(i,j)+x}, v{PB+8*j+2*x+1}')
    for ac in zt:
        a(f'v_cvt_pk_bf16_f32 v{ac}, v{ac}, v{ac+1}')
        a(f'v_cvt_pk_bf16_f32 v{ac+1}, v{ac+2}, v{ac+3}')
    for i in range(3):
        for j in range(wn):
            a(f'ds_write_b64 v21, v[{zacc(i,j)}:{zacc(i,j)+1}] offset:{16*i*RS2+32*j}')
    a('s_waitcnt lgkmcnt(0)')
    a.label(L3)
    a('s_barrier')
    for r in range(NR2):
        a(f'ds_read_b128 v[{CH+4*r}:{CH+4*r+3}], v{OL2+r}')
    for r in range(NR2):
        a(f's_waitcnt lgkmcnt({NR2-1-r})')
        a(f'buffer_store_dwordx4 v[{CH+4*r}:{CH+4*r+3}], v{OG2+r}, s[60:63], s72 offen')
    return CH + 10, AOFF + NSA * ASTG

def trans_addr(a, g, RS, TOFF):
    a(f's_mul_i32 s10, s14, {g.wn*16*RS}')
    a(f's_mul_i32 s11, s13, {g.wm*16*2}')
    a('s_add_u32 s10, s10, s11')
    a(f's_add_u32 s10, s10, {TOFF}')
    a(f'v_mul_u32_u24 v20, {RS}, v5')
    a('v_lshl_add_u32 v20, v3, 3, v20')
    a('v_add_u32 v20, s10, v20')

def phase_g2(a, layer, sig_cnt):
    srd_ws_rt(a, 44, Z2[0], Z2[1], SZ_Z2); srd_ptr(a, 48, P_WSP, S * S * 2); srd_ws(a, 52, PP, S * FH * 2)
    srd_ws(a, 56, ZZ, S * F * 2); srd_ptr(a, 60, P_BSP, S * 2)
    g = Gemm(a, 96, 64, 2048, 2, 2, 7, LDT if G2LD is None else G2LD[0], 4096 if G2LD is None else G2LD[1], 44, 48)
    a('s_mul_i32 s6, s4, 96')
    a('s_lshl_b32 s7, s5, 6')
    g.setup()
    g.prologue()
    T = g.FR; ACC = g.ACC; wn = g.wn
    TOFF = 65536; RS = 208
    OLDS = g.free; OGL = OLDS + 2; OZ = OGL + 2
    ZR = (OZ + 2 + 3) // 4 * 4; BR = ZR + 8; CH = BR + 4
    NR = chunk_map(a, 64, 12, RS, TOFF, 1536, OLDS, OGL, extra=[(OZ, 3072)])
    a('s_mul_i32 s15, s7, 1536')
    a('s_lshl_b32 s11, s6, 1')
    a('s_add_u32 s15, s15, s11')
    a('s_mul_i32 s72, s7, 3072')
    a('s_add_u32 s72, s72, s11')
    for r in range(NR):
        a(f'buffer_load_dwordx4 v[{ZR+4*r}:{ZR+4*r+3}], v{OZ+r}, s[56:59], s72 offen')
    a(f's_mul_i32 s10, s14, {wn*16}')
    a('s_add_u32 s10, s10, s7')
    a('s_lshl_b32 s73, s10, 1')
    a('v_lshlrev_b32 v22, 1, v5')
    for j in range(wn):
        a(f'buffer_load_ushort v{BR+j}, v22, s[60:63], s73 offen offset:{32*j}')
    trans_addr(a, g, RS, TOFF)
    g.run(extra_young=NR + wn)
    stamp(a)
    a('s_waitcnt vmcnt(0)')
    a('s_barrier')
    L1 = only_compute(a)
    for j in range(wn):
        a(f'v_lshlrev_b32 v{BR+j}, 16, v{BR+j}')
    a('s_nop 3')
    rb_batch(a, [ACC + 4 * (i * wn + j) + x for (i, j) in g.tiles for x in (0, 2)], T)
    for (i, j) in g.tiles:
        ac = ACC + 4 * (i * wn + j)
        for x in range(4):
            a(f'v_add_f32 v{ac+x}, v{ac+x}, v{BR+j}')
    for (i, j) in g.tiles:
        ac = ACC + 4 * (i * wn + j)
        a(f'v_cvt_pk_bf16_f32 v{ac}, v{ac}, v{ac+1}')
        a(f'v_cvt_pk_bf16_f32 v{ac+1}, v{ac+2}, v{ac+3}')
    for (i, j) in g.tiles:
        ac = ACC + 4 * (i * wn + j)
        a(f'ds_write_b64 v20, v[{ac}:{ac+1}] offset:{16*j*RS+32*i}')
    a('s_waitcnt lgkmcnt(0)')
    a.label(L1)
    a('s_barrier')
    for r in range(NR):
        a(f'ds_read_b128 v[{CH+4*r}:{CH+4*r+3}], v{OLDS+r}')
    for r in range(NR):
        a(f's_waitcnt lgkmcnt({NR-1-r})')
        for x in range(4):
            t = T + 4 * (x & 1)
            unpack(a, t, t + 1, CH + 4 * r + x)
            unpack(a, t + 2, t + 3, ZR + 4 * r + x)
            a(f'v_pk_mul_f32 v[{t}:{t+1}], v[{t}:{t+1}], v[{t+2}:{t+3}]')
            a(f'v_cvt_pk_bf16_f32 v{CH+4*r+x}, v{t}, v{t+1}')
        a(f'buffer_store_dwordx4 v[{CH+4*r}:{CH+4*r+3}], v{OGL+r}, s[52:55], s15 offen {SC()}')
    stamp(a)
    npf = pf_wout(a)
    sync_signal(a, sig_cnt, npf)
    stamp(a)
    return CH + 8, max(g.NS * g.STG, TOFF + 64 * RS)

def e_rows(a, xsrd, xcache, ER, EY):
    XA = 48; NA = 60; TT = 72
    for jx in range(5):
        unpack(a, XA + 2 * jx, XA + 2 * jx + 1, ER + jx)
    ln_row1(a, XA, 10, 640, TT, NA, 64)
    for jx in range(5):
        unpack(a, TT + 2 * jx, TT + 2 * jx + 1, EY + jx)
    for i in range(0, 10, 2):
        a(f'v_pk_mul_f32 v[{NA+i}:{NA+i+1}], v[{NA+i}:{NA+i+1}], v[{TT+i}:{TT+i+1}]')
    for jx in range(5):
        rb2(a, NA + 2 * jx, NA + 2 * jx + 1, TT + 10 + (jx & 1))
    for i in range(0, 10, 2):
        a(f'v_pk_add_f32 v[{XA+i}:{XA+i+1}], v[{XA+i}:{XA+i+1}], v[{NA+i}:{NA+i+1}]')
    for jx in range(5):
        a(f'v_cvt_pk_bf16_f32 v{ER+jx}, v{XA+2*jx}, v{XA+2*jx+1}')
        unpack(a, XA + 2 * jx, XA + 2 * jx + 1, ER + jx)
        a(f'buffer_store_dword v{ER+jx}, v21, s[60:63], s15 offen offset:{256*jx}')
    ln_row1(a, XA, 10, 640, TT, NA, 64)
    for jx in range(5):
        a(f'v_cvt_pk_bf16_f32 v{EY+jx}, v{NA+2*jx}, v{NA+2*jx+1}')
        a(f'buffer_store_dword v{EY+jx}, v21, s[52:55], s15 offen offset:{256*jx} {SC()}')

def phase_g3(a, final, wait_cnt, sig_cnt, mid_cnt=None):
    srd_ws(a, 44, WOUTT, FH * D * 2); srd_ws(a, 48, PP, S * FH * 2)
    g = Gemm(a, 80, 64, 768, 1, 4, 8, 1536, 1536, 44, 48)
    g.bcache = 'sc1'
    a('s_mul_i32 s6, s4, 80')
    a('s_lshl_b32 s7, s5, 6')
    g.setup()
    T = g.FR; ACC = g.ACC; wn = g.wn
    TOFF = 65536; RS = 176
    OLDS = g.free; OGL = OLDS + 2
    ZR = (OGL + 2 + 3) // 4 * 4; CH = ZR + 8
    srd_ws(a, 60, X1, SZ_SD)
    a(f's_add_u32 s10, s{P_WS}, {X2}')
    a(f's_addc_u32 s11, s{P_WS+1}, 0')
    a('s_cmp_lg_u32 s101, 0')
    a(f's_cselect_b32 s52, s{P_OUT}, s10')
    a(f's_cselect_b32 s53, s{P_OUT+1}, s11')
    a(f's_mov_b32 s54, {SZ_SD}')
    a('s_mov_b32 s55, 0x20000')
    NR = chunk_map(a, 64, 10, RS, TOFF, 1280, OLDS, OGL)
    a('s_mul_i32 s15, s7, 1280')
    a('s_lshl_b32 s11, s6, 1')
    a('s_add_u32 s15, s15, s11')
    for r in range(NR):
        a(f'buffer_load_dwordx4 v[{ZR+4*r}:{ZR+4*r+3}], v{OGL+r}, s[60:63], s15 offen')
    trans_addr(a, g, RS, TOFF)
    sync_wait(a, wait_cnt, 8, pre=lambda: g.prologue('A'))
    stamp(a)
    g.prologue('B')
    g.run(split_prologue=True)
    stamp(a)
    a('s_waitcnt vmcnt(0)')
    a('s_barrier')
    L1 = only_compute(a)
    a('s_nop 4')
    for (i, j) in g.tiles:
        ac = ACC + 4 * (i * wn + j)
        a(f'v_cvt_pk_bf16_f32 v{ac}, v{ac}, v{ac+1}')
        a(f'v_cvt_pk_bf16_f32 v{ac+1}, v{ac+2}, v{ac+3}')
        a(f'ds_write_b64 v20, v[{ac}:{ac+1}] offset:{16*j*RS+32*i}')
    a('s_waitcnt lgkmcnt(0)')
    a.label(L1)
    a('s_barrier')
    for r in range(NR):
        a(f'ds_read_b128 v[{CH+4*r}:{CH+4*r+3}], v{OLDS+r}')
    for r in range(NR):
        a(f's_waitcnt lgkmcnt({NR-1-r})')
        for x in range(4):
            t = T + 4 * (x & 1)
            unpack(a, t, t + 1, CH + 4 * r + x)
            unpack(a, t + 2, t + 3, ZR + 4 * r + x)
            a(f'v_pk_add_f32 v[{t}:{t+1}], v[{t}:{t+1}], v[{t+2}:{t+3}]')
            a(f'v_cvt_pk_bf16_f32 v{CH+4*r+x}, v{t}, v{t+1}')
        a(f'buffer_store_dwordx4 v[{CH+4*r}:{CH+4*r+3}], v{OGL+r}, s[52:55], s15 offen {SC()}')
    a('s_cmp_lg_u32 s101, 0')
    a(f's_cbranch_scc1 {final}')
    srd_ws(a, 56, YY, SZ_SD)
    a('s_lshl_b32 s10, s4, 3')
    a('s_add_u32 s10, s10, s7')
    a('s_add_u32 s10, s10, s3')
    a('s_mul_i32 s15, s10, 1280')
    a('v_lshlrev_b32 v21, 2, v0')
    ER = 24; EY = 30
    for jx in range(5):
        a(f'buffer_load_dword v{EY+jx}, v21, s[56:59], s15 offen offset:{256*jx}')
    stamp(a)
    npf = pf_win(a)
    sync_signal(a, mid_cnt, npf + 5)
    sync_wait(a, mid_cnt, 8)
    stamp(a)
    for jx in range(5):
        a(f'buffer_load_dword v{ER+jx}, v21, s[52:55], s15 offen offset:{256*jx} sc1')
    srd_ws(a, 52, HH, SZ_SD)
    a('s_waitcnt vmcnt(0)')
    stamp(a)
    e_rows(a, 0, '', ER, EY)
    stamp(a)
    sync_signal(a, sig_cnt)
    stamp(a)
    return max(CH + 8, 96), max(g.NS * g.STG, TOFF + 64 * RS)

def phase_e1(a, sig_cnt):
    srd_ptr(a, 44, P_Q, SZ_SD)
    srd_ws(a, 48, YT, SZ_T)
    srd_ws(a, 56, YY, SZ_SD)
    srd_ws(a, 60, X1, SZ_SD)
    srd_ws(a, 52, HH, SZ_SD)
    a('s_lshl_b32 s10, s5, 3')
    a('s_add_u32 s10, s10, s4')
    a('s_lshl_b32 s11, s10, 3')
    a('s_add_u32 s11, s11, s3')
    a('s_mul_i32 s15, s11, 1280')
    a('v_lshlrev_b32 v21, 2, v0')
    ER = 24; EY = 30
    a('s_lshl_b32 s12, s10, 4')
    a(f'v_mul_u32_u24 v6, {LDT}, v23')
    a('v_add_u32 v6, s12, v6')
    a(f'v_add_u32 v7, {512*LDT}, v6')
    a('buffer_load_dwordx4 v[36:39], v6, s[48:51], 0 offen')
    a('buffer_load_dwordx4 v[40:43], v7, s[48:51], 0 offen')
    for jx in range(5):
        a(f'buffer_load_dword v{ER+jx}, v21, s[44:47], s15 offen offset:{256*jx}')
    a('v_lshlrev_b32 v6, 4, v23')
    a('s_waitcnt vmcnt(5)')
    a('ds_write_b128 v6, v[36:39]')
    a('ds_write_b128 v6, v[40:43] offset:8192')
    a('v_lshlrev_b32 v7, 5, v0')
    a('s_lshl_b32 s12, s3, 1')
    a('v_add_u32 v7, s12, v7')
    a('s_waitcnt lgkmcnt(0)')
    a('s_barrier')
    for jx in range(5):
        a(f'ds_read_u16 v{EY+jx}, v7 offset:{2048*jx}')
        a(f'ds_read_u16 v{36+jx}, v7 offset:{2048*jx+16}')
    a('s_waitcnt vmcnt(0) lgkmcnt(0)')
    for jx in range(5):
        a(f'v_lshl_or_b32 v{EY+jx}, v{36+jx}, 16, v{EY+jx}')
        a(f'buffer_store_dword v{EY+jx}, v21, s[56:59], s15 offen offset:{256*jx}')
    stamp(a)
    a('s_nop 1')
    e_rows(a, 0, '', ER, EY)
    stamp(a)
    sync_signal(a, sig_cnt)
    stamp(a)
    return 96, 16384

def entry(a, name, layer, target):
    a.begin_kernel(name)
    Lx = a.newlabel('Lx')
    a('s_cmp_ge_u32 s2, 256')
    a(f's_cbranch_scc1 {Lx}')
    stamp_reset(); stamp(a)
    load_ptrs(a)
    common_prologue(a)
    a(f's_mov_b32 s101, {layer}')
    a('s_waitcnt lgkmcnt(0)')
    srd_ws(a, 84, CNT, NCNT * 128)
    a(f's_branch {target}')
    a.label(Lx)
    a.end_kernel(name, 256, 102)

def gen_shared(a):
    LE1 = 'Lbody_e1'; LG1 = 'Lbody_g1'; LG2 = 'Lbody_g2'; LEND = 'Lbody_end'
    entry(a, 'g1f0_kernel', 0, LE1)
    entry(a, 'mid_kernel', 0, LG2)
    entry(a, 'last_kernel', 1, LG2)
    a.lines.append('.p2align 6')
    gen._stampn[0] = 2
    a.label(LE1)
    cnt_reg(a, 91, 192)
    t0, l0 = phase_e1(a, 91)
    a.label(LG1)
    gen._stampn[0] = 24
    t1, l1 = phase_g1(a, None, 91)
    a(f's_branch {LEND}')
    a.label(LG2)
    gen._stampn[0] = 2
    cnt_reg_rt(a, 90, 0, 64); cnt_reg(a, 91, 32); cnt_reg(a, 93, 160)
    t2, l2 = phase_g2(a, None, 90)
    t3, l3 = phase_g3(a, LEND, 90, 91, 93)
    a('s_mov_b32 s101, 1')
    a(f's_branch {LG1}')
    a.label(LEND)
    if gen.STAMP:
        gen._stampn[0] = 40
        stamp(a)
        a('s_waitcnt vmcnt(0)')
        stamp(a)
        stamp_flush(a, 37)
    a('s_endpgm')
    assert max(t0, t1, t2, t3) <= 250
    lds = max(l0, l1, l2, l3)
    return [('g1f0_kernel', 256, 512, lds), ('mid_kernel', 256, 512, lds), ('last_kernel', 256, 512, lds)]

def main():
    if 'stamp' in sys.argv[2:]: gen.STAMP = True
    if 'prio' in sys.argv[2:]: gen2.PRIO = True
    if 'tlb' in sys.argv[2:]: gen.TLBWARM = True
    gen.CODEWARM = True
    a = Asm()
    prep = gen_prep(a, zero=(CNT, 65536))
    conv = gen_conv(a)
    rest = gen_shared(a)
    launches = [prep, conv] + rest
    hdr = open('interleave_layers__ssm_conv_h3__mixer_gmlp__prompt.s.ref').read().split('; Override launch')[0]
    txt = a.text(launches, hdr).replace('CODE_TAIL_BYTES', '33000')
    out = sys.argv[1] if len(sys.argv) > 1 else 'interleave_layers__ssm_conv_h3__mixer_gmlp__prompt.s'
    open(out, 'w').write(txt)
    print('wrote', out, len(txt), 'bytes')

if __name__ == '__main__':
    main()
```

```python
import sys
sys.path.insert(0, 'dev')
from asmlib import *

S, D, F, FH = 2048, 640, 1536, 768
WINT  = 0x0000000
WOUTT = 0x0200000
LDT = 4224
UT    = 0x0300000
YT    = 0x0600000
YY    = 0x0900000
X1    = 0x0C00000
HH    = 0x0F00000
ZZ    = 0x1200000
Z2NT  = 0x1800000
PP    = 0x1C00000
X2    = 0x1F00000
SZ_SD = S * D * 2
SZ_T = D * LDT
SZ_Z2 = FH * LDT

P_Q, P_K, P_V, P_SK, P_SSMK, P_SSMD, P_BX, P_WIN, P_WSP, P_BSP, P_WOUT, P_OUT, P_DBG, P_WS = \
    [16 + 2 * i for i in range(14)]

import struct
def fhex(f): return '0x%08x' % struct.unpack('<I', struct.pack('<f', f))[0]

STAMP = False
TLBWARM = False
CODEWARM = False
_stampn = [0]
def stamp_reset():
    _stampn[0] = 0
def stamp(a):
    if not STAMP: return
    i = _stampn[0]; _stampn[0] += 1
    assert i < 60
    a('s_memtime s[98:99]')
    a('s_waitcnt lgkmcnt(0)')
    a(f'v_writelane_b32 v251, s98, {i}')
def stamp_flush(a, wg=0):
    if not STAMP: return
    L = a.newlabel('Lst')
    a(f's_cmp_lg_u32 s2, {wg}')
    a(f's_cbranch_scc1 {L}')
    a('s_cmp_lg_u32 s3, 0')
    a(f's_cbranch_scc1 {L}')
    a('v_mbcnt_lo_u32_b32 v250, -1, 0')
    a('v_mbcnt_hi_u32_b32 v250, -1, v250')
    a('v_lshlrev_b32 v250, 2, v250')
    a('global_store_dword v250, v251, s[40:41]')
    a.label(L)

def load_ptrs(a):
    a('''s_load_dwordx16 s[16:31], s[0:1], 0
         s_load_dwordx8 s[32:39], s[0:1], 64
         s_load_dwordx4 s[40:43], s[0:1], 96''')

def srd_ptr(a, d, p, nbytes, off=0):
    if off:
        a(f's_add_u32 s{d}, s{p}, {off}')
        a(f's_addc_u32 s{d+1}, s{p+1}, 0')
    else:
        a(f's_mov_b32 s{d}, s{p}')
        a(f's_mov_b32 s{d+1}, s{p+1}')
    a(f's_mov_b32 s{d+2}, {nbytes}')
    a(f's_mov_b32 s{d+3}, 0x20000')

def srd_ws(a, d, off, nbytes):
    srd_ptr(a, d, P_WS, nbytes, off)

def unpack(a, lo, hi, src):
    a(f'v_lshlrev_b32 v{lo}, 16, v{src}')
    a(f'v_and_b32 v{hi}, 0xffff0000, v{src}')

def rb2(a, x0, x1, tmp):
    a(f'v_cvt_pk_bf16_f32 v{tmp}, v{x0}, v{x1}')
    unpack(a, x0, x1, tmp)

def gen_prep(a, zero=None):
    name = 'prep_kernel'
    a.begin_kernel(name)
    Lend = a.newlabel('Lend'); Lw1 = a.newlabel('Lw1'); Lw2 = a.newlabel('Lw2'); Ltr = a.newlabel('Ltr'); Ltr2 = a.newlabel('Ltr2')
    nz = (zero[1] + 4095) // 4096 if zero else 0
    a(f's_cmp_ge_u32 s2, {680+nz}')
    a(f's_cbranch_scc1 {Lend}')
    load_ptrs(a)
    a('v_and_b32 v1, 7, v0          ; cg')
    a('v_lshrrev_b32 v2, 3, v0')
    a('s_waitcnt lgkmcnt(0)')
    if zero:
        Lnz = a.newlabel('Lnz')
        a('s_cmp_lt_u32 s2, 680')
        a(f's_cbranch_scc1 {Lnz}')
        srd_ws(a, 44, zero[0], zero[1])
        a('s_sub_u32 s3, s2, 680')
        a('s_lshl_b32 s3, s3, 12')
        a('v_lshlrev_b32 v3, 4, v0')
        for i in range(4): a(f'v_mov_b32 v{4+i}, 0')
        a('buffer_store_dwordx4 v[4:7], v3, s[44:47], s3 offen')
        if CODEWARM:
            a('s_getpc_b64 s[60:61]')
            a('s_add_u32 s60, s60, 2048')
            a('s_addc_u32 s61, s61, 0')
            for i in range(3):
                a(f'global_load_dwordx4 v[{8+4*i}:{11+4*i}], v3, s[60:61]')
                a('s_add_u32 s60, s60, 4096')
                a('s_addc_u32 s61, s61, 0')
            a('s_waitcnt vmcnt(0)')
        a(f's_branch {Lend}')
        a.label(Lnz)
    a('s_cmp_ge_u32 s2, 320')
    a(f's_cbranch_scc1 {Lw1}')
    a('s_mov_b32 s4, 0x1999999a')
    a('s_mul_hi_u32 s5, s2, s4      ; sblk')
    a('s_mul_i32 s6, s5, 10')
    a('s_sub_u32 s6, s2, s6         ; dblk')
    srd_ptr(a, 44, P_K, SZ_SD)
    srd_ptr(a, 48, P_V, SZ_SD)
    srd_ptr(a, 56, P_SK, D * 8)
    srd_ws(a, 52, UT, SZ_T)
    a('s_mul_i32 s7, s5, 64*1280')
    a('s_lshl_b32 s8, s6, 7')
    a('s_add_u32 s7, s7, s8')
    a('v_mul_u32_u24 v3, 2560, v2')
    a('v_lshl_add_u32 v3, v1, 4, v3')
    a('v_add_u32 v3, s7, v3')
    for i in range(5):
        if i < 3:
            a(f'v_subrev_u32 v{10+i}, {1280*(3-i)}, v3')
            a(f'buffer_load_dwordx4 v[{16+4*i}:{19+4*i}], v{10+i}, s[44:47], 0 offen')
        else:
            a(f'buffer_load_dwordx4 v[{16+4*i}:{19+4*i}], v3, s[44:47], 0 offen offset:{1280*(i-3)}')
    for i in range(2):
        a(f'buffer_load_dwordx4 v[{36+4*i}:{39+4*i}], v3, s[48:51], 0 offen offset:{1280*i}')
    a('s_lshl_b32 s8, s6, 9')
    a('v_lshlrev_b32 v5, 6, v1')
    a('v_add_u32 v5, s8, v5')
    for i in range(4):
        a(f'buffer_load_dwordx4 v[{44+4*i}:{47+4*i}], v5, s[56:59], 0 offen offset:{16*i}')
    a('s_waitcnt vmcnt(0)')
    KF = 64
    SK = 70
    VF = 74
    A0, A1, T0, T1, TMP = 76, 77, 78, 79, 80
    RES = 84
    for e in range(8):
        dw = e // 2; hi = e & 1
        def ext(dst, src):
            if hi: a(f'v_and_b32 v{dst}, 0xffff0000, v{src}')
            else:  a(f'v_lshlrev_b32 v{dst}, 16, v{src}')
        for i in range(5): ext(KF + i, 16 + 4 * i + dw)
        for i in range(2): ext(VF + i, 36 + 4 * i + dw)
        unpack(a, SK + 0, SK + 1, 44 + 2 * e)
        unpack(a, SK + 2, SK + 3, 44 + 2 * e + 1)
        a(f'v_mul_f32 v{A0}, v{KF+0}, v{SK+3}')
        a(f'v_mul_f32 v{A1}, v{KF+1}, v{SK+3}')
        rb2(a, A0, A1, TMP)
        for i in range(1, 4):
            a(f'v_mul_f32 v{T0}, v{KF+i}, v{SK+3-i}')
            a(f'v_mul_f32 v{T1}, v{KF+i+1}, v{SK+3-i}')
            rb2(a, T0, T1, TMP)
            a(f'v_add_f32 v{A0}, v{A0}, v{T0}')
            a(f'v_add_f32 v{A1}, v{A1}, v{T1}')
            rb2(a, A0, A1, TMP)
        a(f'v_mul_f32 v{A0}, v{A0}, v{VF}')
        a(f'v_mul_f32 v{A1}, v{A1}, v{VF+1}')
        a(f'v_cvt_pk_bf16_f32 v{RES+e}, v{A0}, v{A1}')
    a(f's_mov_b32 s60, {LDT}')
    a(f's_mul_i32 s61, s6, {64*LDT}')
    a('s_lshl_b32 s8, s5, 7')
    a('s_add_u32 s61, s61, s8')
    a(f's_branch {Ltr2}')
    a.label(Lw1)
    a('s_cmp_ge_u32 s2, 560')
    a(f's_cbranch_scc1 {Lw2}')
    a('s_sub_u32 s3, s2, 320')
    a('s_mov_b32 s4, 0x0aaaaaab')
    a('s_mul_hi_u32 s5, s3, s4      ; kblk')
    a('s_mul_i32 s6, s5, 24')
    a('s_sub_u32 s6, s3, s6         ; fblk')
    srd_ptr(a, 44, P_WIN, D * F * 2)
    srd_ws(a, 52, WINT, D * F * 2)
    a('s_mov_b32 s9, 3072')
    a('s_mul_i32 s7, s5, 64*3072')
    a('s_lshl_b32 s8, s6, 7')
    a('s_add_u32 s7, s7, s8')
    a('s_mov_b32 s60, 1280')
    a('s_mul_i32 s61, s6, 64*1280')
    a('s_lshl_b32 s8, s5, 7')
    a('s_add_u32 s61, s61, s8')
    a(f's_branch {Ltr}')
    a.label(Lw2)
    a('s_sub_u32 s3, s2, 560')
    a('s_mov_b32 s4, 0x1999999a')
    a('s_mul_hi_u32 s5, s3, s4      ; fblk')
    a('s_mul_i32 s6, s5, 10')
    a('s_sub_u32 s6, s3, s6         ; dblk')
    srd_ptr(a, 44, P_WOUT, FH * D * 2)
    srd_ws(a, 52, WOUTT, FH * D * 2)
    a('s_mov_b32 s9, 1280')
    a('s_mul_i32 s7, s5, 64*1280')
    a('s_lshl_b32 s8, s6, 7')
    a('s_add_u32 s7, s7, s8')
    a('s_mov_b32 s60, 1536')
    a('s_mul_i32 s61, s6, 64*1536')
    a('s_lshl_b32 s8, s5, 7')
    a('s_add_u32 s61, s61, s8')
    a.label(Ltr)
    a('v_lshlrev_b32 v3, 1, v2')
    a('v_mul_lo_u32 v3, v3, s9')
    a('v_lshl_add_u32 v3, v1, 4, v3')
    a('v_add_u32 v3, s7, v3')
    a('v_add_u32 v4, s9, v3')
    a('buffer_load_dwordx4 v[16:19], v3, s[44:47], 0 offen')
    a('buffer_load_dwordx4 v[20:23], v4, s[44:47], 0 offen')
    a('s_mov_b32 s10, 0x05040100')
    a('s_mov_b32 s11, 0x07060302')
    a('s_waitcnt vmcnt(0)')
    for j in range(4):
        a(f'v_perm_b32 v{84+2*j}, v{20+j}, v{16+j}, s10')
        a(f'v_perm_b32 v{85+2*j}, v{20+j}, v{16+j}, s11')
    a.label(Ltr2)
    a('v_mul_u32_u24 v5, 1088, v1')
    a('v_lshl_add_u32 v5, v2, 2, v5')
    for e in range(8):
        a(f'ds_write_b32 v5, v{84+e} offset:{136*e}')
    a('v_lshrrev_b32 v6, 2, v0       ; c')
    a('v_and_b32 v7, 3, v0           ; seg')
    a('v_mul_u32_u24 v8, 136, v6')
    a('v_lshl_add_u32 v8, v7, 5, v8')
    a('v_mul_lo_u32 v9, v6, s60')
    a('v_lshl_add_u32 v9, v7, 5, v9')
    a('v_add_u32 v9, s61, v9')
    a('s_waitcnt lgkmcnt(0)')
    a('s_barrier')
    for i in range(4):
        a(f'ds_read_b64 v[{16+2*i}:{17+2*i}], v8 offset:{8*i}')
    a('s_waitcnt lgkmcnt(0)')
    a('buffer_store_dwordx4 v[16:19], v9, s[52:55], 0 offen')
    a('buffer_store_dwordx4 v[20:23], v9, s[52:55], 0 offen offset:16')
    a.label(Lend)
    a.end_kernel(name, 96, 72)
    return (name, 680 + nz, 256, 64 * 136)

def gen_conv(a):
    name = 'conv_kernel'
    a.begin_kernel(name)
    Lend = a.newlabel('Lend')
    UB = 37504; WB = UB + 7680
    Lwarm = a.newlabel('Lwarm')
    a('s_cmp_ge_u32 s2, 214')
    a(f's_cbranch_scc1 {Lend}')
    stamp_reset(); stamp(a)
    load_ptrs(a)
    a('v_lshrrev_b32 v1, 6, v0')
    a('v_and_b32 v0, 63, v0')
    a('s_nop 0')
    a('v_readfirstlane_b32 s3, v1     ; wave')
    a('s_nop 3')
    a('s_cmp_eq_u32 s3, 3')
    a(f's_cbranch_scc1 {Lwarm}')
    a('s_mul_i32 s4, s2, 3')
    a('s_add_u32 s4, s4, s3           ; channel d')
    a('s_cmp_ge_u32 s4, 640')
    a(f's_cbranch_scc1 {Lend}')
    a(f's_mul_i32 s5, s3, {WB}')
    a('s_lshl_b32 s6, s4, 12')
    a(f's_mul_i32 s13, s4, {LDT}       ; d*LDT')
    a('s_waitcnt lgkmcnt(0)')
    stamp(a)
    a(f's_add_u32 s44, s{P_SSMK}, s6')
    a(f's_addc_u32 s45, s{P_SSMK+1}, 0')
    a('s_mov_b32 s46, 4096')
    a('s_mov_b32 s47, 0x20000')
    srd_ws(a, 48, UT, SZ_T)
    srd_ws(a, 52, YT, SZ_T)
    srd_ptr(a, 56, P_SSMD, D * 2)
    a('v_lshlrev_b32 v2, 4, v0')
    HR = 140
    for j in range(4):
        a(f'buffer_load_dwordx4 v[{HR+8*j}:{HR+8*j+3}], v2, s[44:47], 0 offen offset:{1024*j}')
        a(f'buffer_load_dwordx4 v[{HR+8*j+4}:{HR+8*j+7}], v2, s[44:47], 0 offen offset:{1024*j+16}')
    for j in range(4):
        a(f'buffer_load_dwordx4 v[{100+4*j}:{103+4*j}], v2, s[48:51], s13 offen offset:{1024*j}')
    a('v_lshrrev_b32 v3, 3, v0')
    a('v_and_b32 v4, 7, v0')
    a('v_add_u32 v3, v3, v4')
    a('v_subrev_u32 v3, 7, v3')
    a('v_max_i32 v4, 0, v3')
    a('v_lshlrev_b32 v4, 1, v4')
    a('buffer_load_ushort v5, v4, s[44:47], 0 offen')
    a('s_lshl_b32 s7, s4, 1')
    a('v_mov_b32 v6, 0')
    a('buffer_load_ushort v7, v6, s[56:59], s7 offen')
    a('v_and_b32 v8, 15, v0           ; ii / m')
    a('v_lshrrev_b32 v9, 4, v0        ; kq / q')
    a('v_lshlrev_b32 v10, 2, v9')
    a('v_and_b32 v11, 2, v9')
    a('v_lshlrev_b32 v11, 1, v11')
    a('v_xor_b32 v10, v10, v11        ; a[q] = r0 (mod 16)')
    a('v_sub_u32 v18, 15, v8')
    a('v_mul_u32_u24 v18, 96, v18')
    a('v_lshlrev_b32 v19, 1, v10')
    a('v_sub_u32 v18, v18, v19')
    a('v_add_u32 v18, s5, v18')
    a(f'v_add_u32 v18, {UB+56-32}, v18')
    a('v_lshlrev_b32 v10, 1, v10')
    a('v_lshl_add_u32 v10, v8, 6, v10')
    a('v_add_u32 v10, s5, v10')
    a('v_mov_b32 v12, 0')
    a('v_mov_b32 v13, 0')
    a('v_mov_b32 v14, 0')
    a('v_mov_b32 v15, 0')
    a('v_min_u32 v16, 26, v0')
    a('v_lshlrev_b32 v16, 4, v16')
    a('v_add_u32 v16, s5, v16')
    a('ds_write_b128 v16, v[12:15]')
    a('v_lshlrev_b32 v16, 4, v0')
    a('v_add_u32 v16, s5, v16')
    a(f'ds_write_b128 v16, v[12:15] offset:{UB+64*96}')
    a('v_min_u32 v16, 25, v0')
    a('v_lshlrev_b32 v16, 4, v16')
    a('v_add_u32 v16, s5, v16')
    a(f'ds_write_b128 v16, v[12:15] offset:{UB+64*96+1024}')
    a('v_mul_u32_u24 v16, 144, v0')
    a('v_add_u32 v16, s5, v16          ; 144*l + base')
    E0 = 20
    E1 = 29
    D1 = 39
    for j in range(4):
        d = HR + 8 * j
        a(f's_waitcnt vmcnt({12 - 2*j})')
        for k in range(7):
            a(f'v_alignbit_b32 v{E0+k}, v{d+k+1}, v{d+k}, 16')
        for k in range(1, 7):
            a(f'v_alignbit_b32 v{E1+k}, v{d+k+1}, v{d+k}, 16')
            a(f'v_mov_b32 v{D1+k}, v{d+k}')
        for p in range(8):
            off = 9216 * j + 16 * (p + (34 if p == 0 else 35))
            if p % 2 == 0:
                k = p // 2
                src = d + k if k % 2 == 0 else D1 + k
            else:
                k = (p - 1) // 2
                src = E0 + k if k % 2 == 0 else E1 + k
            assert src % 2 == 0
            a(f'ds_write_b128 v16, v[{src}:{src+3}] offset:{off}')
        a('s_nop 1')
    a('s_waitcnt vmcnt(0)')
    a('s_barrier')
    a('v_cmp_gt_i32 vcc, 0, v3')
    a('s_nop 1')
    a('v_cndmask_b32 v5, v5, v12, vcc')
    a('v_lshlrev_b32 v16, 1, v0')
    a('v_add_u32 v16, s5, v16')
    a('ds_write_b16 v16, v5 offset:432')
    a('v_sub_u32 v16, 63, v0          ; 63-l ; pc = (63-l) + 64*(3-j)')
    a('v_lshrrev_b32 v17, 2, v16')
    a('v_and_b32 v16, 3, v16')
    a('v_mul_u32_u24 v17, 96, v17')
    a('v_lshl_add_u32 v17, v16, 4, v17')
    a('v_add_u32 v17, s5, v17')
    for j in range(4):
        s0 = 100 + 4 * j
        t0 = 48 + 4 * j
        for x in range(4):
            a(f'v_alignbit_b32 v{t0+x}, v{s0+3-x}, v{s0+3-x}, 16')
        a(f'ds_write_b128 v17, v[{t0}:{t0+3}] offset:{UB + 96*16*(3-j)}')
    a('v_lshrrev_b32 v16, 1, v8')
    a('v_and_b32 v16, 4, v16')
    a('v_xor_b32 v16, v8, v16         ; rr')
    a('v_lshl_add_u32 v16, v9, 3, v16')
    a('v_lshrrev_b32 v17, 3, v16')
    a('v_add_u32 v16, v16, v17        ; x + (x>>3)')
    a('v_lshlrev_b32 v16, 4, v16')
    a('v_add_u32 v16, s5, v16         ; A addr')
    a('v_sub_u32 v17, 15, v8')
    a('v_mul_u32_u24 v17, 96, v17')
    a('v_lshl_add_u32 v17, v9, 4, v17')
    a('v_add_u32 v17, s5, v17')
    a(f'v_add_u32 v17, {UB}, v17        ; B addr')
    ACC = 64
    for i in range(32):
        a(f'v_mov_b32 v{ACC+i}, 0')
    for i in range(16):
        a(f'v_mov_b32 v{164+i}, 0')
    FR = [20, 140, 96]
    def nreads(t): return (2 + 4 - (t >> 4)) if t < 64 else 0
    def reads(t):
        f = FR[t % 3]
        for j in range(2):
            a(f'ds_read_b128 v[{f+4*j}:{f+4*j+3}], v16 offset:{576*t+288*j}')
        for c in range(t >> 4, 4):
            a(f'ds_read_b128 v[{f+8+4*c}:{f+11+4*c}], v17 offset:{96*(48-16*c+t)}')
    a('s_waitcnt lgkmcnt(0)')
    stamp(a)
    reads(0); reads(1)
    for t in range(64):
        if t + 2 < 64: reads(t + 2)
        a(f's_waitcnt lgkmcnt({nreads(t+1) + nreads(t+2)})')
        f = FR[t % 3]
        for c in range(t >> 4, 4):
            for j in range(2):
                ac = ACC + 4 * (2 * c + j)
                if c >= 2 and (t & 1) and t >= 32: ac = 164 + 4 * (2 * (c - 2) + j)
                a(f'v_mfma_f32_16x16x32_bf16 v[{ac}:{ac+3}], v[{f+4*j}:{f+4*j+3}], v[{f+8+4*c}:{f+11+4*c}], v[{ac}:{ac+3}]')
    a('s_nop 7')
    a('s_nop 1')
    for i in range(16):
        a(f'v_add_f32 v{ACC+16+i}, v{ACC+16+i}, v{164+i}')
    stamp(a)
    for c in range(4):
        for j in range(2):
            ur = 120 + 2 * (2 * c + j)
            a(f'ds_read_b64 v[{ur}:{ur+1}], v18 offset:{96*(48-16*c) + 32*(1-j)}')
    a('v_lshlrev_b32 v7, 16, v7       ; D as f32')
    a('s_nop 7')
    a('s_waitcnt lgkmcnt(0)')
    for c in range(4):
        for j in range(2):
            ac = ACC + 4 * (2 * c + j)
            ur = 120 + 2 * (2 * c + j)
            rb2(a, ac, ac + 1, 18)
            rb2(a, ac + 2, ac + 3, 19)
            unpack(a, 23, 22, ur)
            unpack(a, 21, 20, ur + 1)
            for x in range(4):
                a(f'v_mul_f32 v{20+x}, v{20+x}, v7')
            rb2(a, 20, 21, 18)
            rb2(a, 22, 23, 19)
            for x in range(4):
                a(f'v_add_f32 v{ac+x}, v{ac+x}, v{20+x}')
            a(f'v_cvt_pk_bf16_f32 v{ur}, v{ac}, v{ac+1}')
            a(f'v_cvt_pk_bf16_f32 v{ur+1}, v{ac+2}, v{ac+3}')
            a(f'ds_write_b64 v10, v[{ur}:{ur+1}] offset:{1024*c+32*j}')
    a('v_add_u32 v16, s5, v2')
    a('s_waitcnt lgkmcnt(0)')
    for x in range(4):
        a(f'ds_read_b128 v[{20+4*x}:{23+4*x}], v16 offset:{1024*x}')
    for x in range(4):
        a(f's_waitcnt lgkmcnt({3-x})')
        a(f'buffer_store_dwordx4 v[{20+4*x}:{23+4*x}], v2, s[52:55], s13 offen offset:{1024*x}')
    if STAMP:
        stamp(a)
        a('s_waitcnt vmcnt(0)')
        stamp(a)
        stamp_flush(a, 37)
    a(f's_branch {Lend}')
    a.label(Lwarm)
    a('s_waitcnt lgkmcnt(0)')
    a('s_barrier')
    srd_ptr(a, 44, P_WSP, S * S * 2)
    srd_ptr(a, 48, P_Q, SZ_SD)
    a('s_mul_i32 s4, s2, 40960')
    a('s_mul_i32 s5, s2, 13312')
    a('v_lshlrev_b32 v1, 4, v0')
    if CODEWARM:
        a('s_getpc_b64 s[60:61]')
        a('s_lshr_b32 s6, s2, 3')
        a('s_mul_i32 s6, s6, 3072')
        a('s_add_u32 s60, s60, s6')
        a('s_addc_u32 s61, s61, 0')
        a('s_cmp_ge_u32 s6, CODE_TAIL_BYTES')
        Lc = a.newlabel('Lcw')
        a(f's_cbranch_scc1 {Lc}')
        for i in range(3):
            a(f'global_load_dwordx4 v[{170+4*i}:{173+4*i}], v1, s[60:61] offset:{1024*i}')
        a.label(Lc)
    if TLBWARM:
        srd_ws(a, 52, 0, 0x2900000)
        srd_ptr(a, 56, P_OUT, SZ_SD)
        a('v_mul_u32_u24 v2, 655360, v0')
        a('buffer_load_dword v3, v2, s[52:55], 0 offen')
        a('v_mul_u32_u24 v2, 40960, v0')
        a('buffer_load_dword v4, v2, s[56:59], 0 offen')
    for i in range(13):
        a(f'buffer_load_dwordx4 v[{8+4*i}:{11+4*i}], v1, s[48:51], s5 offen')
        a('s_add_u32 s5, s5, 1024')
    for i in range(40):
        a(f'buffer_load_dwordx4 v[{8+4*(i%40)}:{11+4*(i%40)}], v1, s[44:47], s4 offen')
        a('s_add_u32 s4, s4, 1024')
    a('s_waitcnt vmcnt(0)')
    a.label(Lend)
    a.end_kernel(name, 256 if STAMP else 184, 102 if STAMP else 72)
    return (name, 214, 256, 3 * WB)

def reduce2(a, va, vb, sbase):
    for n in (8, 4, 2, 1):
        a('s_nop 1')
        a(f'v_add_f32_dpp v{va}, v{va}, v{va} row_ror:{n} row_mask:0xf bank_mask:0xf')
        a(f'v_add_f32_dpp v{vb}, v{vb}, v{vb} row_ror:{n} row_mask:0xf bank_mask:0xf')
    a('s_nop 0')
    for i in range(4):
        a(f'v_readlane_b32 s{sbase+i}, v{va}, {16*i}')
    for i in range(4):
        a(f'v_readlane_b32 s{sbase+4+i}, v{vb}, {16*i}')
    a(f'v_mov_b32 v{va}, s{sbase}')
    a(f'v_add_f32 v{va}, s{sbase+1}, v{va}')
    a(f'v_add_f32 v{va}, s{sbase+2}, v{va}')
    a(f'v_add_f32 v{va}, s{sbase+3}, v{va}')
    a(f'v_mov_b32 v{vb}, s{sbase+4}')
    a(f'v_add_f32 v{vb}, s{sbase+5}, v{vb}')
    a(f'v_add_f32 v{vb}, s{sbase+6}, v{vb}')
    a(f'v_add_f32 v{vb}, s{sbase+7}, v{vb}')

def ln_rows2(a, xa, xb, n, ntot, t, outa, outb, sbase):
    sa, sb_, ma, mb, ra, rb_ = t, t + 1, t + 2, t + 3, t + 4, t + 5
    tm = t + 6
    da = t + 8; db = t + 8 + n
    inv = 1.0 / ntot
    import struct
    invh = '0x%08x' % struct.unpack('<I', struct.pack('<f', inv))[0]
    for (x, s_) in ((xa, sa), (xb, sb_)):
        a(f'v_add_f32 v{s_}, v{x}, v{x+1}')
        for i in range(2, n):
            a(f'v_add_f32 v{s_}, v{s_}, v{x+i}')
    reduce2(a, sa, sb_, sbase)
    a(f'v_mul_f32 v{ma}, {invh}, v{sa}')
    a(f'v_mul_f32 v{mb}, {invh}, v{sb_}')
    for (x, d, m, s_) in ((xa, da, ma, sa), (xb, db, mb, sb_)):
        for i in range(n):
            a(f'v_sub_f32 v{d+i}, v{x+i}, v{m}')
        a(f'v_mul_f32 v{s_}, v{d}, v{d}')
        for i in range(1, n):
            a(f'v_fmac_f32 v{s_}, v{d+i}, v{d+i}')
    reduce2(a, sa, sb_, sbase)
    a(f'v_mul_f32 v{sa}, {invh}, v{sa}')
    a(f'v_mul_f32 v{sb_}, {invh}, v{sb_}')
    rb2(a, ma, mb, tm)
    rb2(a, sa, sb_, tm)
    a(f'v_add_f32 v{sa}, 0x3727c5ac, v{sa}')
    a(f'v_add_f32 v{sb_}, 0x3727c5ac, v{sb_}')
    rb2(a, sa, sb_, tm)
    a(f'v_sqrt_f32 v{sa}, v{sa}')
    a(f'v_sqrt_f32 v{sb_}, v{sb_}')
    a('s_nop 0')
    rb2(a, sa, sb_, tm)
    a(f'v_rcp_f32 v{ra}, v{sa}')
    a(f'v_rcp_f32 v{rb_}, v{sb_}')
    a('s_nop 0')
    for (x, o, m, r) in ((xa, outa, ma, ra), (xb, outb, mb, rb_)):
        for i in range(0, n, 2):
            a(f'v_sub_f32 v{o+i}, v{x+i}, v{m}')
            a(f'v_sub_f32 v{o+i+1}, v{x+i+1}, v{m}')
            rb2(a, o + i, o + i + 1, tm)
            a(f'v_mul_f32 v{o+i}, v{o+i}, v{r}')
            a(f'v_mul_f32 v{o+i+1}, v{o+i+1}, v{r}')
            rb2(a, o + i, o + i + 1, tm)

def ln_row1(a, x, n, ntot, t, out, sbase):
    s1, s2, m, r, tm = t, t + 1, t + 2, t + 3, t + 4
    d = t + 8
    invh = fhex(1.0 / ntot)
    sp = sbase + 8
    a('s_nop 0')
    a(f'v_readfirstlane_b32 s{sp}, v{x}')
    a('s_nop 1')
    for i in range(n):
        a(f'v_subrev_f32 v{d+i}, s{sp}, v{x+i}')
    a(f'v_add_f32 v{s1}, v{d}, v{d+1}')
    a(f'v_mul_f32 v{s2}, v{d}, v{d}')
    for i in range(1, n):
        if i >= 2: a(f'v_add_f32 v{s1}, v{s1}, v{d+i}')
        a(f'v_fmac_f32 v{s2}, v{d+i}, v{d+i}')
    reduce2(a, s1, s2, sbase)
    a(f'v_mul_f32 v{s1}, {invh}, v{s1}')
    a(f'v_mul_f32 v{s2}, {invh}, v{s2}')
    a(f'v_fma_f32 v{s2}, -v{s1}, v{s1}, v{s2}  ; var')
    a(f'v_max_f32 v{s2}, 0, v{s2}')
    a(f'v_add_f32 v{m}, s{sp}, v{s1}           ; mean')
    rb2(a, m, s2, tm)
    a(f'v_add_f32 v{s2}, 0x3727c5ac, v{s2}')
    a(f'v_cvt_pk_bf16_f32 v{tm}, v{s2}, v{s2}')
    a(f'v_lshlrev_b32 v{s2}, 16, v{tm}')
    a(f'v_sqrt_f32 v{s2}, v{s2}')
    a('s_nop 0')
    a(f'v_cvt_pk_bf16_f32 v{tm}, v{s2}, v{s2}')
    a(f'v_lshlrev_b32 v{s2}, 16, v{tm}')
    a(f'v_rcp_f32 v{r}, v{s2}')
    for i in range(n):
        a(f'v_sub_f32 v{out+i}, v{x+i}, v{m}')
    for i in range(0, n, 2):
        rb2(a, out + i, out + i + 1, tm + (i // 2) % 2)
    for i in range(n):
        a(f'v_mul_f32 v{out+i}, v{out+i}, v{r}')
    for i in range(0, n, 2):
        rb2(a, out + i, out + i + 1, tm + (i // 2) % 2)

def gen_e(a, first):
    name = 'e1_kernel' if first else 'e2_kernel'
    a.begin_kernel(name)
    Lend = a.newlabel('Lend')
    a('s_cmp_ge_u32 s2, 256')
    a(f's_cbranch_scc1 {Lend}')
    stamp_reset(); stamp(a)
    load_ptrs(a)
    a('v_lshrrev_b32 v1, 6, v0')
    a('v_and_b32 v2, 63, v0          ; lane')
    a('s_and_b32 s5, s2, 7')
    a('s_lshl_b32 s5, s5, 5')
    a('s_lshr_b32 s6, s2, 3')
    a('s_add_u32 s5, s5, s6')
    a('s_waitcnt lgkmcnt(0)')
    stamp(a)
    if first:
        srd_ptr(a, 44, P_Q, SZ_SD)
        srd_ws(a, 48, YT, SZ_T)
    else:
        srd_ws(a, 44, X2, SZ_SD)
    srd_ws(a, 52, YY, SZ_SD)
    srd_ws(a, 56, X1, SZ_SD)
    srd_ws(a, 60, HH, SZ_SD)
    a('s_mul_i32 s3, s5, 8*1280')
    a('v_mul_u32_u24 v3, 1280, v1')
    a('v_lshl_add_u32 v3, v2, 2, v3')
    a('v_add_u32 v3, s3, v3')
    XR = 16; YR = 22
    if first:
        a('s_lshl_b32 s4, s5, 4')
        a(f'v_mul_u32_u24 v4, {LDT}, v0')
        a('v_add_u32 v4, s4, v4')
        a(f'v_add_u32 v5, {512*LDT}, v4')
        a('buffer_load_dwordx4 v[36:39], v4, s[48:51], 0 offen')
        a('buffer_load_dwordx4 v[40:43], v5, s[48:51], 0 offen')
    for j in range(5):
        a(f'buffer_load_dword v{XR+j}, v3, s[44:47], 0 offen offset:{256*j}')
    if first:
        a('v_lshlrev_b32 v4, 4, v0')
        a('s_waitcnt vmcnt(5)')
        a('ds_write_b128 v4, v[36:39]')
        a('ds_write_b128 v4, v[40:43] offset:8192')
        a('v_lshlrev_b32 v5, 5, v2')
        a('v_lshl_add_u32 v5, v1, 1, v5')
        a('s_waitcnt lgkmcnt(0)')
        a('s_barrier')
        for j in range(5):
            a(f'ds_read_u16 v{YR+j}, v5 offset:{2048*j}')
            a(f'ds_read_u16 v{36+j}, v5 offset:{2048*j+16}')
        a('s_waitcnt vmcnt(0) lgkmcnt(0)')
        for j in range(5):
            a(f'v_lshl_or_b32 v{YR+j}, v{36+j}, 16, v{YR+j}')
        for j in range(5):
            a(f'buffer_store_dword v{YR+j}, v3, s[52:55], 0 offen offset:{256*j}')
    else:
        for j in range(5):
            a(f'buffer_load_dword v{YR+j}, v3, s[52:55], 0 offen offset:{256*j}')
        a('s_waitcnt vmcnt(0)')
    XA = 48; NA = 60; T = 72
    stamp(a)
    for j in range(5):
        unpack(a, XA + 2 * j, XA + 2 * j + 1, XR + j)
    ln_row1(a, XA, 10, 640, T, NA, 64)
    for j in range(5):
        unpack(a, T + 2 * j, T + 2 * j + 1, YR + j)
    for i in range(10):
        a(f'v_mul_f32 v{NA+i}, v{NA+i}, v{T+i}')
    for j in range(5):
        rb2(a, NA + 2 * j, NA + 2 * j + 1, T + 10 + (j & 1))
    for i in range(10):
        a(f'v_add_f32 v{XA+i}, v{XA+i}, v{NA+i}')
    for j in range(5):
        a(f'v_cvt_pk_bf16_f32 v{XR+j}, v{XA+2*j}, v{XA+2*j+1}')
        unpack(a, XA + 2 * j, XA + 2 * j + 1, XR + j)
        a(f'buffer_store_dword v{XR+j}, v3, s[56:59], 0 offen offset:{256*j}')
    ln_row1(a, XA, 10, 640, T, NA, 64)
    for j in range(5):
        a(f'v_cvt_pk_bf16_f32 v{YR+j}, v{NA+2*j}, v{NA+2*j+1}')
        a(f'buffer_store_dword v{YR+j}, v3, s[60:63], 0 offen offset:{256*j}')
    if STAMP:
        stamp(a)
        a('s_waitcnt vmcnt(0)')
        stamp(a)
        stamp_flush(a, 37)
    a.label(Lend)
    a.end_kernel(name, 256 if STAMP else 96, 102 if STAMP else 80)
    return (name, 256, 512, 16384 if first else 0)

def gen_ln2(a):
    name = 'ln2_kernel'
    a.begin_kernel(name)
    Lend = a.newlabel('Lend')
    a('s_cmp_ge_u32 s2, 128')
    a(f's_cbranch_scc1 {Lend}')
    stamp_reset(); stamp(a)
    load_ptrs(a)
    a('v_lshrrev_b32 v1, 6, v0       ; wave')
    a('v_and_b32 v2, 63, v0          ; lane')
    a('s_and_b32 s5, s2, 7')
    a('s_lshl_b32 s5, s5, 4')
    a('s_lshr_b32 s6, s2, 3')
    a('s_add_u32 s5, s5, s6')
    a('s_waitcnt lgkmcnt(0)')
    stamp(a)
    srd_ws(a, 44, ZZ, S * F * 2)
    srd_ws(a, 48, Z2NT, SZ_Z2)
    a('s_mul_i32 s3, s5, 16*3072')
    a('s_add_u32 s3, s3, 1536')
    a('v_mul_u32_u24 v3, 4*3072, v1')
    a('v_lshl_add_u32 v3, v2, 2, v3')
    a('v_add_u32 v3, s3, v3')
    R = 16
    for r in range(4):
        if r: a(f'v_add_u32 v{3+r}, {3072*r}, v3')
    for r in range(4):
        for j in range(6):
            a(f'buffer_load_dword v{R+6*r+j}, v{3+r}, s[44:47], 0 offen offset:{256*j}')
    a('v_lshlrev_b32 v8, 6, v2')
    a('v_lshl_add_u32 v8, v1, 3, v8')
    a('s_waitcnt vmcnt(0)')
    XA, XB, T = 48, 60, 80
    stamp(a)
    for p in range(2):
        for j in range(6):
            unpack(a, XA + 2 * j, XA + 2 * j + 1, R + 12 * p + j)
            unpack(a, XB + 2 * j, XB + 2 * j + 1, R + 12 * p + 6 + j)
        ln_rows2(a, XA, XB, 12, 768, T, XA, XB, 64)
        for i in range(12):
            a(f'v_cvt_pk_bf16_f32 v{T+i}, v{XA+i}, v{XB+i}')
            a(f'ds_write_b32 v8, v{T+i} offset:{4096*(i//2) + 32*(i&1) + 4*p}')
    a('v_lshlrev_b32 v9, 5, v0')
    a('s_lshl_b32 s4, s5, 5')
    a(f'v_mul_u32_u24 v10, {LDT}, v0')
    a('v_add_u32 v10, s4, v10')
    a('s_waitcnt lgkmcnt(0)')
    a('s_barrier')
    for i in range(3):
        a(f'ds_read_b128 v[{16+8*i}:{19+8*i}], v9 offset:{8192*i}')
        a(f'ds_read_b128 v[{20+8*i}:{23+8*i}], v9 offset:{8192*i+16}')
    a('s_waitcnt lgkmcnt(0)')
    for i in range(3):
        if i: a(f'v_add_u32 v10, {256*LDT}, v10')
        a(f'buffer_store_dwordx4 v[{16+8*i}:{19+8*i}], v10, s[48:51], 0 offen')
        a(f'buffer_store_dwordx4 v[{20+8*i}:{23+8*i}], v10, s[48:51], 0 offen offset:16')
    if STAMP:
        stamp(a)
        a('s_waitcnt vmcnt(0)')
        stamp(a)
        stamp_flush(a, 37)
    a.label(Lend)
    a.end_kernel(name, 256 if STAMP else 128, 102 if STAMP else 80)
    return (name, 128, 256, 24576)

def gen_gemm(a, name, kind, BM, BN, K, WM, WN, NS, ntm, ntn, ldA, ldB, final=False):
    wm = BM // WM // 16; wn = BN // WN // 16
    nst = K // 64
    STG = (BM + BN) * 128
    ngA = BM // 8; ngB = BN // 8
    nAw = (ngA + 3) // 4; nBw = (ngB + 3) // 4
    npw = nAw + nBw
    a.begin_kernel(name)
    Lend = a.newlabel('Lend')
    a(f's_cmp_ge_u32 s2, {ntm*ntn}')
    a(f's_cbranch_scc1 {Lend}')
    stamp_reset(); stamp(a)
    load_ptrs(a)
    a('v_lshrrev_b32 v1, 6, v0')
    a('v_and_b32 v0, 63, v0')
    a('s_nop 0')
    a('v_readfirstlane_b32 s3, v1     ; wave')
    assert ntm in (8, 16)
    a('s_and_b32 s10, s2, 7')
    a('s_lshr_b32 s11, s2, 3')
    if ntm == 8:
        a('s_and_b32 s4, s11, 7')
        a('s_lshr_b32 s5, s11, 3')
        a('s_lshl_b32 s10, s10, 2')
        a('s_add_u32 s5, s5, s10')
    else:
        a('s_and_b32 s4, s11, 7')
        a('s_and_b32 s12, s10, 1')
        a('s_lshl_b32 s12, s12, 3')
        a('s_add_u32 s4, s4, s12')
        a('s_lshr_b32 s5, s11, 3')
        a('s_lshr_b32 s10, s10, 1')
        a('s_lshl_b32 s10, s10, 2')
        a('s_add_u32 s5, s5, s10')
    a(f's_mul_i32 s6, s4, {BM}          ; m0')
    a(f's_mul_i32 s7, s5, {BN}          ; n0')
    a('s_waitcnt lgkmcnt(0)')
    stamp(a)
    if kind == 'g1':
        srd_ws(a, 44, WINT, D * F * 2); srd_ws(a, 48, HH, SZ_SD); srd_ws(a, 52, ZZ, S * F * 2); ldo = 3072
    elif kind == 'g2':
        srd_ws(a, 44, Z2NT, FH * S * 2); srd_ptr(a, 48, P_WSP, S * S * 2); srd_ws(a, 52, PP, S * FH * 2); ldo = 1536
        srd_ws(a, 56, ZZ, S * F * 2); srd_ptr(a, 60, P_BSP, S * 2)
    else:
        srd_ws(a, 44, WOUTT, FH * D * 2); srd_ws(a, 48, PP, S * FH * 2); ldo = 1280
        if final: srd_ptr(a, 52, P_OUT, SZ_SD)
        else: srd_ws(a, 52, X2, SZ_SD)
        srd_ws(a, 56, X1, SZ_SD)
    a(f's_mul_i32 s8, s6, {ldA}         ; A soffset')
    a(f's_mul_i32 s9, s7, {ldB}         ; B soffset')
    a('v_lshrrev_b32 v2, 3, v0        ; l>>3')
    a('v_lshrrev_b32 v3, 4, v0        ; l>>4')
    a('v_and_b32 v4, 7, v0            ; l&7')
    VA = 8; VB = VA + nAw
    SMA = 64; SMB = SMA + nAw
    def grp_setup(i, ng, ld, vdst, sdst, ldsbase):
        if 4 * i + 3 < ng:
            a(f's_add_u32 s10, s3, {4*i}')
        else:
            assert ng - 4 * i == 2
            a('s_and_b32 s10, s3, 1')
            a(f's_add_u32 s10, s10, {4*i}')
        a('s_lshl_b32 s11, s10, 2')
        a('v_add_u32 v5, s11, v3')
        a('v_and_b32 v5, 7, v5')
        a('v_xor_b32 v5, v5, v4')
        a('s_lshl_b32 s11, s10, 3')
        a('v_add_u32 v6, s11, v2          ; row')
        a(f's_mov_b32 s12, {ld}')
        a('v_mul_lo_u32 v6, v6, s12')
        a(f'v_lshl_add_u32 v{vdst}, v5, 4, v6')
        a(f's_lshl_b32 s{sdst}, s10, 10')
        if ldsbase: a(f's_add_u32 s{sdst}, s{sdst}, {ldsbase}')
    for i in range(nAw): grp_setup(i, ngA, ldA, VA + i, SMA + i, 0)
    for i in range(nBw): grp_setup(i, ngB, ldB, VB + i, SMB + i, BM * 128)
    def issue(st):
        buf = (st % NS) * STG
        for i in range(nAw):
            a(f's_add_u32 m0, s{SMA+i}, {buf}')
            a('s_nop 0')
            a(f'buffer_load_dwordx4 v{VA+i}, s[44:47], s8 offen lds')
        for i in range(nBw):
            a(f's_add_u32 m0, s{SMB+i}, {buf}')
            a('s_nop 0')
            a(f'buffer_load_dwordx4 v{VB+i}, s[48:51], s9 offen lds')
        a('s_add_u32 s8, s8, 128')
        a('s_add_u32 s9, s9, 128')
    for st in range(min(NS - 1, nst)):
        issue(st)
    if WN == 4:   a('s_mov_b32 s13, 0'); a('s_mov_b32 s14, s3')
    elif WN == 2: a('s_lshr_b32 s13, s3, 1'); a('s_and_b32 s14, s3, 1')
    else:         a('s_mov_b32 s13, s3'); a('s_mov_b32 s14, 0')
    a('v_and_b32 v5, 15, v0')
    a('v_lshrrev_b32 v6, 1, v5')
    a('v_xor_b32 v6, v6, v3')
    a('v_lshlrev_b32 v6, 4, v6')
    a('v_lshl_add_u32 v6, v5, 7, v6')
    a('v_xor_b32 v7, 64, v6           ; ks=1')
    nwin = (NS * STG + 65535) // 65536
    RA = 24; RBb = RA + 2 * nwin
    a(f's_mul_i32 s10, s13, {wm*16*128}')
    a(f's_mul_i32 s11, s14, {wn*16*128}')
    a(f's_add_u32 s11, s11, {BM*128}')
    for w in range(nwin):
        for ks in range(2):
            a(f'v_add_u32 v{RA+2*w+ks}, s10, v{6+ks}')
            a(f'v_add_u32 v{RBb+2*w+ks}, s11, v{6+ks}')
            if w:
                a(f'v_add_u32 v{RA+2*w+ks}, {65536*w}, v{RA+2*w+ks}')
                a(f'v_add_u32 v{RBb+2*w+ks}, {65536*w}, v{RBb+2*w+ks}')
    FR = 40
    nfr = wm + wn
    ACC = FR + 2 * nfr * 4
    for i in range(wm * wn * 4):
        a(f'v_mov_b32 v{ACC+i}, 0')
    for st in range(nst):
        later = min(NS - 2, nst - 1 - st)
        a(f's_waitcnt vmcnt({later*npw})')
        a('s_barrier')
        if st in (0, 1, nst // 2, nst - 1): stamp(a)
        if st + NS - 1 < nst: issue(st + NS - 1)
        buf = (st % NS) * STG
        for ks in range(2):
            for i in range(wm):
                off = buf + i * 2048
                w = off >> 16
                a(f'ds_read_b128 v[{FR+(ks*nfr+i)*4}:{FR+(ks*nfr+i)*4+3}], v{RA+2*w+ks} offset:{off&65535}')
            for j in range(wn):
                off = buf + j * 2048
                w = off >> 16
                a(f'ds_read_b128 v[{FR+(ks*nfr+wm+j)*4}:{FR+(ks*nfr+wm+j)*4+3}], v{RBb+2*w+ks} offset:{off&65535}')
        for ks in range(2):
            a(f's_waitcnt lgkmcnt({nfr if ks == 0 else 0})')
            for i in range(wm):
                for j in range(wn):
                    ac = ACC + 4 * (i * wn + j)
                    fa = FR + (ks * nfr + i) * 4; fb = FR + (ks * nfr + wm + j) * 4
                    a(f'v_mfma_f32_16x16x32_bf16 v[{ac}:{ac+3}], v[{fa}:{fa+3}], v[{fb}:{fb+3}], v[{ac}:{ac+3}]')
    stamp(a)
    a(f's_mov_b32 s12, {ldo}')
    a('v_mul_lo_u32 v2, v5, s12')
    a('v_lshl_add_u32 v2, v3, 3, v2')
    a(f's_mul_i32 s10, s14, {wn*16}')
    a('s_add_u32 s10, s10, s7          ; n base')
    a(f's_mul_i32 s11, s13, {wm*16}')
    a('s_add_u32 s11, s11, s6          ; m base')
    a(f's_mul_i32 s15, s10, {ldo}')
    a('s_lshl_b32 s11, s11, 1')
    a('s_add_u32 s15, s15, s11')
    T = FR
    if kind == 'g2':
        a('s_mov_b32 s12, 3072')
        a('v_mul_lo_u32 v4, v5, s12')
        a('v_lshl_add_u32 v4, v3, 3, v4')
        a('s_mul_i32 s72, s10, 3072')
        a('s_add_u32 s72, s72, s11')
        a('v_lshlrev_b32 v6, 1, v5')
        a('s_lshl_b32 s73, s10, 1')
        ZR = ACC + wm * wn * 4
        BR = ZR + wm * wn * 2
        for j in range(wn):
            for i in range(wm):
                r = ZR + 2 * (i * wn + j)
                a(f'buffer_load_dwordx2 v[{r}:{r+1}], v4, s[56:59], s72 offen offset:{32*i}')
            a(f'buffer_load_ushort v{BR+j}, v6, s[60:63], s73 offen offset:{32*j}')
            if j + 1 < wn: a(f's_add_u32 s72, s72, {16*3072}')
        top = BR + wn
    elif kind == 'g3':
        ZR = ACC + wm * wn * 4
        a('s_mov_b32 s72, s15')
        for j in range(wn):
            for i in range(wm):
                r = ZR + 2 * (i * wn + j)
                a(f'buffer_load_dwordx2 v[{r}:{r+1}], v2, s[56:59], s72 offen offset:{32*i}')
            if j + 1 < wn: a(f's_add_u32 s72, s72, {16*ldo}')
        top = ZR + wm * wn * 2
    else:
        top = ACC + wm * wn * 4
    a('s_nop 7')
    a('s_waitcnt vmcnt(0)')
    for j in range(wn):
        if kind == 'g2':
            a(f'v_lshlrev_b32 v{BR+j}, 16, v{BR+j}')
        for i in range(wm):
            ac = ACC + 4 * (i * wn + j)
            rb2(a, ac, ac + 1, T)
            rb2(a, ac + 2, ac + 3, T + 1)
            if kind == 'g1':
                c1 = -2.0 * 1.4426950408889634 * 0.7978845608028654
                c2 = c1 * 0.044715
                import struct
                h = lambda f: '0x%08x' % struct.unpack('<I', struct.pack('<f', f))[0]
                a(f's_mov_b32 s74, {h(c1)}')
                for x in range(4):
                    a(f'v_mul_f32 v{T+4+x}, v{ac+x}, v{ac+x}')
                for x in range(4):
                    a(f'v_mul_f32 v{T+4+x}, {h(c2)}, v{T+4+x}')
                for x in range(4):
                    a(f'v_add_f32 v{T+4+x}, s74, v{T+4+x}')
                for x in range(4):
                    a(f'v_mul_f32 v{T+4+x}, v{T+4+x}, v{ac+x}')
                for x in range(4):
                    a(f'v_exp_f32 v{T+4+x}, v{T+4+x}')
                a('s_nop 0')
                for x in range(4):
                    a(f'v_add_f32 v{T+4+x}, 1.0, v{T+4+x}')
                for x in range(4):
                    a(f'v_rcp_f32 v{T+4+x}, v{T+4+x}')
                a('s_nop 0')
                for x in range(4):
                    a(f'v_mul_f32 v{ac+x}, v{ac+x}, v{T+4+x}')
            elif kind == 'g2':
                r = ZR + 2 * (i * wn + j)
                for x in range(4):
                    a(f'v_add_f32 v{ac+x}, v{ac+x}, v{BR+j}')
                rb2(a, ac, ac + 1, T)
                rb2(a, ac + 2, ac + 3, T + 1)
                unpack(a, T + 4, T + 5, r)
                unpack(a, T + 6, T + 7, r + 1)
                for x in range(4):
                    a(f'v_mul_f32 v{ac+x}, v{ac+x}, v{T+4+x}')
            else:
                r = ZR + 2 * (i * wn + j)
                unpack(a, T + 4, T + 5, r)
                unpack(a, T + 6, T + 7, r + 1)
                for x in range(4):
                    a(f'v_add_f32 v{ac+x}, v{ac+x}, v{T+4+x}')
            a(f'v_cvt_pk_bf16_f32 v{ac}, v{ac}, v{ac+1}')
            a(f'v_cvt_pk_bf16_f32 v{ac+1}, v{ac+2}, v{ac+3}')
            a(f'buffer_store_dwordx2 v[{ac}:{ac+1}], v2, s[52:55], s15 offen offset:{32*i}')
        if j + 1 < wn: a(f's_add_u32 s15, s15, {16*ldo}')
    if STAMP:
        stamp(a)
        a('s_waitcnt vmcnt(0)')
        stamp(a)
        stamp_flush(a, 37)
    a.label(Lend)
    a.end_kernel(name, 256 if STAMP else max(top, 64), 102 if STAMP else 80)
    return (name, ntm * ntn, 256, NS * STG)


def gen_gemm2(a, name, kind, BM, BN, K, WM, WN, KS, NS, ntm, ntn, ldA, ldB, final=False):
    assert WM * WN * KS == 8
    wm = BM // WM // 16; wn = BN // WN // 16
    nst = K // 64
    STG = (BM + BN) * 128
    ngA = BM // 8; ngB = BN // 8
    slots = []
    for g0 in range(0, ngA, 8): slots.append(('A', g0, min(8, ngA - g0)))
    for g0 in range(0, ngB, 8): slots.append(('B', g0, min(8, ngB - g0)))
    npw = sum(1 for s_ in slots if s_[2] == 8)
    a.begin_kernel(name)
    Lend = a.newlabel('Lend')
    a(f's_cmp_ge_u32 s2, {ntm*ntn}')
    a(f's_cbranch_scc1 {Lend}')
    stamp_reset(); stamp(a)
    load_ptrs(a)
    a('v_mov_b32 v23, v0              ; tid')
    a('v_lshrrev_b32 v1, 6, v0')
    a('v_and_b32 v0, 63, v0')
    a('s_nop 0')
    a('v_readfirstlane_b32 s3, v1     ; wave')
    a('s_and_b32 s10, s2, 7')
    a('s_lshr_b32 s11, s2, 3')
    lg = ntm.bit_length() - 1
    a(f's_and_b32 s4, s11, {ntm-1}      ; mt')
    a(f's_lshr_b32 s5, s11, {lg}')
    a(f's_lshl_b32 s10, s10, {5-lg}')
    a('s_add_u32 s5, s5, s10')
    a(f's_mul_i32 s6, s4, {BM}          ; m0')
    a(f's_mul_i32 s7, s5, {BN}          ; n0')
    a(f's_mul_i32 s8, s6, {ldA}         ; A soffset')
    a(f's_mul_i32 s9, s7, {ldB}         ; B soffset')
    a('v_lshrrev_b32 v2, 3, v0        ; l>>3')
    a('v_lshrrev_b32 v3, 4, v0        ; l>>4')
    a('v_and_b32 v4, 7, v0            ; l&7')
    VS = 8; SS = 64
    for i, (op, g0, nw) in enumerate(slots):
        ld = ldA if op == 'A' else ldB
        a(f's_add_u32 s10, s3, {g0}')
        a('s_lshl_b32 s11, s10, 2')
        a('v_add_u32 v5, s11, v3')
        a('v_and_b32 v5, 7, v5')
        a('v_xor_b32 v5, v5, v4')
        a('s_lshl_b32 s11, s10, 3')
        a('v_add_u32 v6, s11, v2          ; row')
        a(f's_mov_b32 s12, {ld}')
        a('v_mul_lo_u32 v6, v6, s12')
        a(f'v_lshl_add_u32 v{VS+i}, v5, 4, v6')
        a(f's_lshl_b32 s{SS+i}, s10, 10')
        if op == 'B': a(f's_add_u32 s{SS+i}, s{SS+i}, {BM*128}')
    a('s_and_b32 s10, s3, 3')
    a('s_lshr_b32 s75, s3, 2')
    if KS == 2:
        if WN == 4:   a('s_mov_b32 s13, 0'); a('s_mov_b32 s14, s10')
        elif WN == 2: a('s_lshr_b32 s13, s10, 1'); a('s_and_b32 s14, s10, 1')
        else:         a('s_mov_b32 s13, s10'); a('s_mov_b32 s14, 0')
    else:
        assert WM == 2 and WN == 4
        a('s_mov_b32 s13, s75'); a('s_mov_b32 s14, s10')
    a('s_waitcnt lgkmcnt(0)')
    stamp(a)
    if kind == 'g1':
        srd_ws(a, 44, WINT, D * F * 2); srd_ws(a, 48, HH, SZ_SD); srd_ws(a, 52, ZZ, S * F * 2); ldo = 3072
    elif kind == 'g2':
        srd_ws(a, 44, Z2NT, SZ_Z2); srd_ptr(a, 48, P_WSP, S * S * 2); srd_ws(a, 52, PP, S * FH * 2); ldo = 1536
        srd_ws(a, 56, ZZ, S * F * 2); srd_ptr(a, 60, P_BSP, S * 2)
    else:
        srd_ws(a, 44, WOUTT, FH * D * 2); srd_ws(a, 48, PP, S * FH * 2); ldo = 1280
        if final: srd_ptr(a, 52, P_OUT, SZ_SD)
        else: srd_ws(a, 52, X2, SZ_SD)
        srd_ws(a, 56, X1, SZ_SD)
    def issue(st):
        buf = (st % NS) * STG
        for i, (op, g0, nw) in enumerate(slots):
            Ls = None
            if nw < 8:
                Ls = a.newlabel('Lsk')
                a(f's_cmp_ge_u32 s3, {nw}')
                a(f's_cbranch_scc1 {Ls}')
            a(f's_add_u32 m0, s{SS+i}, {buf}')
            a('s_nop 0')
            if op == 'A': a(f'buffer_load_dwordx4 v{VS+i}, s[44:47], s8 offen lds')
            else:         a(f'buffer_load_dwordx4 v{VS+i}, s[48:51], s9 offen lds')
            if Ls: a.label(Ls)
        a('s_add_u32 s8, s8, 128')
        a('s_add_u32 s9, s9, 128')
    for st in range(0, min(NS - 1, nst)):
        issue(st)
    T_ = wm * wn
    tiles = [(i, j) for i in range(wm) for j in range(wn)]
    if KS == 2:
        h = (T_ + 1) // 2
        keep = [tiles[:h], tiles[h:]]
    else:
        keep = [tiles]
    nwin = (NS * STG + 65535) // 65536
    RA = 24; RBb = RA + 2 * nwin
    FR = 40
    nfr = wm + wn
    nks = 2 if KS == 1 else 1
    ACC = FR + max(nks * nfr * 4, 24)
    CPR = BM // 8
    NCH = BN * CPR
    NR = (NCH + 511) // 512
    RS = BM * 2 + 16
    TOFF = 65536
    OLDS = ACC + T_ * 4
    OGL = OLDS + NR
    ZR = (OGL + NR + 3) // 4 * 4
    BR = ZR + 4 * NR
    top = BR + wn
    magic = {12: 43691, 10: 52429}[CPR]
    a('v_and_b32 v5, 15, v0')
    a(f's_mul_i32 s15, s7, {ldo}')
    a('s_lshl_b32 s11, s6, 1')
    a('s_add_u32 s15, s15, s11')
    if kind == 'g2':
        a('s_mul_i32 s72, s7, 3072')
        a('s_add_u32 s72, s72, s11')
    for r in range(NR):
        a(f'v_add_u32 v6, {512*r}, v23')
        a(f'v_mul_u32_u24 v7, {magic}, v6')
        a('v_lshrrev_b32 v7, 19, v7       ; row')
        a(f'v_mul_u32_u24 v20, {CPR}, v7')
        a('v_sub_u32 v20, v6, v20         ; c')
        a(f'v_mul_u32_u24 v{OLDS+r}, {RS}, v7')
        a(f'v_lshl_add_u32 v{OLDS+r}, v20, 4, v{OLDS+r}')
        a(f'v_add_u32 v{OLDS+r}, {TOFF}, v{OLDS+r}')
        a(f'v_mul_u32_u24 v{OGL+r}, {ldo}, v7')
        a(f'v_lshl_add_u32 v{OGL+r}, v20, 4, v{OGL+r}')
        if kind == 'g2':
            a(f'v_mul_u32_u24 v21, 3072, v7')
            a('v_lshl_add_u32 v21, v20, 4, v21')
        if 512 * (r + 1) > NCH:
            a(f'v_cmp_gt_u32 vcc, {NCH}, v6')
            a('v_mov_b32 v22, 0x7ffffff0')
            a('s_nop 0')
            a(f'v_cndmask_b32 v{OGL+r}, v22, v{OGL+r}, vcc')
            if kind == 'g2': a('v_cndmask_b32 v21, v22, v21, vcc')
            a(f'v_mov_b32 v22, {TOFF}')
            a(f'v_cndmask_b32 v{OLDS+r}, v22, v{OLDS+r}, vcc')
        if kind == 'g2':
            a(f'buffer_load_dwordx4 v[{ZR+4*r}:{ZR+4*r+3}], v21, s[56:59], s72 offen')
        elif kind == 'g3':
            a(f'buffer_load_dwordx4 v[{ZR+4*r}:{ZR+4*r+3}], v{OGL+r}, s[56:59], s15 offen')
    npre = NR if kind != 'g1' else 0
    if kind == 'g2':
        a(f's_mul_i32 s10, s14, {wn*16}')
        a('s_add_u32 s10, s10, s7          ; n base')
        a('s_lshl_b32 s73, s10, 1')
        a('v_lshlrev_b32 v22, 1, v5')
        for j in range(wn):
            a(f'buffer_load_ushort v{BR+j}, v22, s[60:63], s73 offen offset:{32*j}')
        npre += wn
    a(f's_mul_i32 s10, s14, {wn*16*RS}')
    a(f's_mul_i32 s11, s13, {wm*16*2}')
    a('s_add_u32 s10, s10, s11')
    a(f's_add_u32 s10, s10, {TOFF}')
    a(f'v_mul_u32_u24 v20, {RS}, v5')
    a('v_lshl_add_u32 v20, v3, 3, v20')
    a('v_add_u32 v20, s10, v20')
    a('v_lshrrev_b32 v6, 1, v5')
    a('v_xor_b32 v6, v6, v3')
    a('v_lshlrev_b32 v6, 4, v6')
    a('v_lshl_add_u32 v6, v5, 7, v6')
    if KS == 2:
        a('s_lshl_b32 s10, s75, 6')
        a('v_xor_b32 v6, s10, v6')
    else:
        a('v_xor_b32 v7, 64, v6           ; ks=1')
    a(f's_mul_i32 s10, s13, {wm*16*128}')
    a(f's_mul_i32 s11, s14, {wn*16*128}')
    a(f's_add_u32 s11, s11, {BM*128}')
    for w in range(nwin):
        for ks in range(nks):
            a(f'v_add_u32 v{RA+2*w+ks}, s10, v{6+ks}')
            a(f'v_add_u32 v{RBb+2*w+ks}, s11, v{6+ks}')
            if w:
                a(f'v_add_u32 v{RA+2*w+ks}, {65536*w}, v{RA+2*w+ks}')
                a(f'v_add_u32 v{RBb+2*w+ks}, {65536*w}, v{RBb+2*w+ks}')
    for i in range(T_ * 4):
        a(f'v_mov_b32 v{ACC+i}, 0')
    for st in range(nst):
        later = min(NS - 2, nst - 1 - st)
        extra = npre if st < NS - 1 and st == 0 else 0
        cnt = later * npw + (npre if st == 0 else 0)
        a(f's_waitcnt vmcnt({cnt})')
        a('s_barrier')
        if st in (0, 1, nst // 2, nst - 1): stamp(a)
        doiss = st + NS - 1 < nst
        if doiss:
            L1 = a.newlabel('Le')
            a('s_cmp_lg_u32 s75, 0')
            a(f's_cbranch_scc1 {L1}')
            issue(st + NS - 1)
            a.label(L1)
        buf = (st % NS) * STG
        for ks in range(nks):
            for i in range(wm):
                off = buf + i * 2048
                w = off >> 16
                a(f'ds_read_b128 v[{FR+(ks*nfr+i)*4}:{FR+(ks*nfr+i)*4+3}], v{RA+2*w+ks} offset:{off&65535}')
            for j in range(wn):
                off = buf + j * 2048
                w = off >> 16
                a(f'ds_read_b128 v[{FR+(ks*nfr+wm+j)*4}:{FR+(ks*nfr+wm+j)*4+3}], v{RBb+2*w+ks} offset:{off&65535}')
        for ks in range(nks):
            a(f's_waitcnt lgkmcnt({nfr if ks < nks-1 else 0})')
            for i in range(wm):
                for j in range(wn):
                    ac = ACC + 4 * (i * wn + j)
                    fa = FR + (ks * nfr + i) * 4; fb = FR + (ks * nfr + wm + j) * 4
                    a(f'v_mfma_f32_16x16x32_bf16 v[{ac}:{ac+3}], v[{fa}:{fa+3}], v[{fb}:{fb+3}], v[{ac}:{ac+3}]')
        if doiss:
            L2 = a.newlabel('Ll')
            a('s_cmp_eq_u32 s75, 0')
            a(f's_cbranch_scc1 {L2}')
            issue(st + NS - 1)
            a.label(L2)
    stamp(a)
    T = FR
    def epi1(tl):
        for (i, j) in tl:
            ac = ACC + 4 * (i * wn + j)
            if kind == 'g3':
                a(f'v_cvt_pk_bf16_f32 v{ac}, v{ac}, v{ac+1}')
                a(f'v_cvt_pk_bf16_f32 v{ac+1}, v{ac+2}, v{ac+3}')
            else:
                rb2(a, ac, ac + 1, T)
                rb2(a, ac + 2, ac + 3, T + 1)
                if kind == 'g1':
                    for x in range(4):
                        a(f'v_mul_f32 v{T+4+x}, v{ac+x}, v{ac+x}')
                    for x in range(4):
                        a(f'v_fma_f32 v{T+4+x}, v{T+4+x}, s77, v{T+3}')
                    for x in range(4):
                        a(f'v_mul_f32 v{T+4+x}, v{T+4+x}, v{ac+x}')
                    for x in range(4):
                        a(f'v_exp_f32 v{T+4+x}, v{T+4+x}')
                    a('s_nop 0')
                    for x in range(4):
                        a(f'v_add_f32 v{T+4+x}, 1.0, v{T+4+x}')
                    for x in range(4):
                        a(f'v_rcp_f32 v{T+4+x}, v{T+4+x}')
                    a('s_nop 0')
                    for x in range(4):
                        a(f'v_mul_f32 v{ac+x}, v{ac+x}, v{T+4+x}')
                else:
                    for x in range(4):
                        a(f'v_add_f32 v{ac+x}, v{ac+x}, v{BR+j}')
                a(f'v_cvt_pk_bf16_f32 v{ac}, v{ac}, v{ac+1}')
                a(f'v_cvt_pk_bf16_f32 v{ac+1}, v{ac+2}, v{ac+3}')
            a(f'ds_write_b64 v20, v[{ac}:{ac+1}] offset:{16*j*RS+32*i}')
    if kind == 'g1':
        c1 = -2.0 * 1.4426950408889634 * 0.7978845608028654
        a(f's_mov_b32 s77, {fhex(c1*0.044715)}')
        a(f'v_mov_b32 v{T+3}, {fhex(c1)}')
    if kind == 'g2':
        for j in range(wn):
            a(f'v_lshlrev_b32 v{BR+j}, 16, v{BR+j}')
    a('s_barrier')
    a('s_nop 4')
    if KS == 1:
        epi1(tiles)
    else:
        a('v_lshlrev_b32 v6, 4, v0')
        a(f's_mul_i32 s10, s3, {T_*1024}')
        a('s_xor_b32 s11, s3, 4')
        a(f's_mul_i32 s11, s11, {T_*1024}')
        a('v_add_u32 v7, s11, v6')
        a('v_add_u32 v6, s10, v6')
        Lk1 = a.newlabel('Lk1'); Lkd = a.newlabel('Lkd')
        a('s_cmp_lg_u32 s75, 0')
        a(f's_cbranch_scc1 {Lk1}')
        for ksi in range(2):
            if ksi == 1: a.label(Lk1)
            send = keep[1 - ksi]; kp = keep[ksi]
            for (i, j) in send:
                ac = ACC + 4 * (i * wn + j)
                a(f'ds_write_b128 v6, v[{ac}:{ac+3}] offset:{1024*(i*wn+j)}')
            a('s_waitcnt lgkmcnt(0)')
            a('s_barrier')
            for n_, (i, j) in enumerate(kp):
                a(f'ds_read_b128 v[{T+8+4*n_}:{T+11+4*n_}], v7 offset:{1024*(i*wn+j)}')
            a('s_waitcnt lgkmcnt(0)')
            for n_, (i, j) in enumerate(kp):
                ac = ACC + 4 * (i * wn + j)
                for x in range(4):
                    a(f'v_add_f32 v{ac+x}, v{ac+x}, v{T+8+4*n_+x}')
            epi1(kp)
            if ksi == 0: a(f's_branch {Lkd}')
        a.label(Lkd)
    a('s_waitcnt lgkmcnt(0)')
    a('s_barrier')
    for r in range(NR):
        a(f'ds_read_b128 v[{ACC+4*r}:{ACC+4*r+3}], v{OLDS+r}')
    for r in range(NR):
        a(f's_waitcnt lgkmcnt({NR-1-r})')
        if kind != 'g1':
            for x in range(4):
                unpack(a, T, T + 1, ACC + 4 * r + x)
                unpack(a, T + 2, T + 3, ZR + 4 * r + x)
                op = 'v_mul_f32' if kind == 'g2' else 'v_add_f32'
                a(f'{op} v{T}, v{T}, v{T+2}')
                a(f'{op} v{T+1}, v{T+1}, v{T+3}')
                a(f'v_cvt_pk_bf16_f32 v{ACC+4*r+x}, v{T}, v{T+1}')
        a(f'buffer_store_dwordx4 v[{ACC+4*r}:{ACC+4*r+3}], v{OGL+r}, s[52:55], s15 offen')
    if STAMP:
        stamp(a)
        a('s_waitcnt vmcnt(0)')
        stamp(a)
        stamp_flush(a, 37)
    a.label(Lend)
    a.end_kernel(name, 256 if STAMP else max(top, 64), 102 if STAMP else 80)
    return (name, ntm * ntn, 512, max(NS * STG, TOFF + BN * RS))

def main():
    global STAMP
    if len(sys.argv) > 2 and sys.argv[2] == 'stamp': STAMP = True
    a = Asm()
    prep = gen_prep(a)
    conv = gen_conv(a)
    e1 = gen_e(a, True)
    e2 = gen_e(a, False)
    ln2 = gen_ln2(a)
    g1 = gen_gemm2(a, 'g1_kernel', 'g1', 96, 128, 640, 2, 4, 1, 5, 16, 16, 1280, 1280)
    g2 = gen_gemm2(a, 'g2_kernel', 'g2', 96, 64, 2048, 2, 2, 2, 7, 8, 32, LDT, 4096)
    g3 = gen_gemm2(a, 'g3_kernel', 'g3', 80, 64, 768, 1, 4, 2, 8, 8, 32, 1536, 1536)
    g3f = gen_gemm2(a, 'g3f_kernel', 'g3', 80, 64, 768, 1, 4, 2, 8, 8, 32, 1536, 1536, final=True)
    launches = [prep, conv, e1, g1, ln2, g2, g3, e2, g1, ln2, g2, g3f]
    hdr = open('interleave_layers__ssm_conv_h3__mixer_gmlp__prompt.s.ref').read().split('; Override launch')[0]
    txt = a.text(launches, hdr)
    out = sys.argv[1] if len(sys.argv) > 1 else 'interleave_layers__ssm_conv_h3__mixer_gmlp__prompt.s'
    open(out, 'w').write(txt)
    print('wrote', out, len(txt), 'bytes')

if __name__ == '__main__':
    main()
```
